```python
import torch

def _softmax(x, axis=-1):
    return torch.softmax(x, dim=axis)
def _gelu(x):
    return torch.nn.functional.gelu(x, approximate="tanh")
def _silu(x):
    return torch.nn.functional.silu(x)
def _sigmoid(x):
    return torch.sigmoid(x)
def _layernorm(x, axis=-1, eps=1e-5):
    m = x.mean(dim=axis, keepdim=True)
    v = x.var(dim=axis, keepdim=True, unbiased=False)
    return (x - m) / torch.sqrt(v + eps)
def _scatter_add(tgt, idx, src, axis=0):
    return tgt.clone().index_add_(axis, idx, src)
def _segment_sum(src, seg, n):
    out = torch.zeros((n,) + src.shape[1:], dtype=src.dtype)
    return out.index_add_(0, seg, src)
def _pad(x, pw):
    flat = tuple(v for pair in reversed(pw) for v in pair)
    return torch.nn.functional.pad(x, flat)

kernel_name = 'standalone__molecular_angular_gemnet__graph'

def setup_inputs():

    _w = (lambda a: (lambda t: t.to(torch.bfloat16) if t.is_floating_point() else t)(torch.as_tensor(a)))
    N, deg, De, L = 10000, 16, 16, 1
    E = N * deg
    T = E * deg
    NR = 8
    dist = torch.rand(E).to(float)
    angle = (torch.rand(T) * torch.pi).to(float)
    centers = torch.linspace(0.0, 1.0, NR).to(float)
    ang_freq = torch.arange(1, L + 1).to(float)
    return {
        "m": _w((lambda *s: torch.randn(*s, dtype=torch.bfloat16) * 0.05)(E, De)),
        "idx_in": _w((lambda lo, hi, *s: torch.randint(lo, hi, s))(0, E, T).to(torch.int64)),
        "idx_out": _w((lambda lo, hi, *s: torch.randint(lo, hi, s))(0, E, T).to(torch.int64)),
        "dist": _w(dist),
        "angle": _w(angle),
        "centers": _w(centers),
        "ang_freq": _w(ang_freq),
        "w_rbf": _w((lambda *s: torch.randn(*s, dtype=torch.bfloat16) * 0.2)(NR, De)),
        "w_sbf": _w((lambda *s: torch.randn(*s, dtype=torch.bfloat16) * 0.2)(NR * L, De)),
        "w_down": _w((lambda *s: torch.randn(*s, dtype=torch.bfloat16) * 0.2)(De, De)),
        "w_up": _w((lambda *s: torch.randn(*s, dtype=torch.bfloat16) * 0.2)(De, De)),
    }

def reference(m, idx_in, idx_out, dist, angle, centers, ang_freq, w_rbf, w_sbf, w_down, w_up):
    E, De = m.shape[0], m.shape[1]
    NR = centers.shape[0]
    L = ang_freq.shape[0]
    rbf = torch.exp(-10.0 * (dist[:, None] - centers[None, :]) ** 2)
    cbf = torch.cos(ang_freq[None, :] * angle[:, None])
    rbf_t = rbf[idx_out]
    sbf = torch.reshape(rbf_t[:, :, None] * cbf[:, None, :], (-1, NR * L))
    x = (m[idx_in] @ w_down) * (sbf @ w_sbf)
    agg = _segment_sum(x, idx_out, E)
    return m + (agg @ w_up) * (rbf @ w_rbf)
```

```python
import re

TRANS = ("v_exp_f32", "v_log_f32", "v_rcp_f32", "v_rsq_f32", "v_sqrt_f32", "v_sin_f32", "v_cos_f32")


def regs_of(tok):
    tok = tok.strip()
    tok = re.sub(r"^-|^abs\(|\)$|^\|||\|$", "", tok)
    m = re.fullmatch(r"([vsa])(\d+)", tok)
    if m:
        return {(m.group(1), int(m.group(2)))}
    m = re.fullmatch(r"([vsa])\[(\d+):(\d+)\]", tok)
    if m:
        return {(m.group(1), i) for i in range(int(m.group(2)), int(m.group(3)) + 1)}
    if tok == "vcc":
        return {("s", "vcc")}
    if tok == "exec":
        return {("s", "exec")}
    if tok == "m0":
        return {("s", "m0")}
    return set()


def split_ops(s):
    out, depth, cur = [], 0, ""
    for ch in s:
        if ch in "[(":
            depth += 1
        if ch in "])":
            depth -= 1
        if ch == "," and depth == 0:
            out.append(cur.strip())
            cur = ""
        else:
            cur += ch
    if cur.strip():
        out.append(cur.strip())
    return out


class Ins:
    def __init__(self, text):
        self.text = text
        t = text.split(";")[0].strip()
        parts = t.split(None, 1)
        self.mn = parts[0]
        rest = parts[1] if len(parts) > 1 else ""
        ops = split_ops(rest)
        if ops:
            last = ops[-1].split()
            self.mods = " ".join(last[1:])
            ops[-1] = last[0]
        else:
            self.mods = ""
        self.ops = ops
        mn = self.mn
        self.mfma = mn.startswith("v_mfma")
        self.valu = mn.startswith("v_") and not self.mfma
        self.ds = mn.startswith("ds_")
        self.vmem = mn.startswith(("buffer_", "global_", "flat_"))
        self.salu = mn.startswith("s_")
        self.dpp = "_dpp" in mn or "quad_perm" in text or "row_" in self.mods
        self.trans = mn.replace("_e32", "").replace("_e64", "") in TRANS
        R = [regs_of(o) for o in ops]
        self.w, self.r = set(), set()
        self.store_data = set()
        self.srcc = set()
        self.ab = set()
        if self.mfma:
            self.w = R[0]
            self.ab = R[1] | R[2]
            self.srcc = R[3] if len(R) > 3 else set()
            self.r = self.ab | self.srcc
            self.passes = 8 if "32x32" in mn else 4
        elif self.valu:
            nd = 1
            if re.match(r"v_(add|sub|subrev|addc|subb|subbrev)_co_", mn) or mn.startswith("v_mad_u64"):
                nd = 2
            for x in R[:nd]:
                self.w |= x
            for x in R[nd:]:
                self.r |= x
            if mn.startswith(("v_fmac", "v_dot2c", "v_writelane")) or self.dpp:
                self.r |= R[0]
            if mn.startswith("v_permlane") or mn.startswith("v_swap"):
                self.w |= R[1]
                self.r |= R[0]
        elif self.ds:
            if mn.startswith("ds_read") or "_rtn" in mn or "permute" in mn or "swizzle" in mn:
                self.w = R[0]
                for x in R[1:]:
                    self.r |= x
            else:
                for x in R:
                    self.r |= x
        elif self.vmem:
            if "_load" in mn and "lds" not in self.mods.split() and "_lds" not in mn:
                self.w = R[0]
                for x in R[1:]:
                    self.r |= x
                if "d16" in mn:
                    self.r |= R[0]
            else:
                for x in R:
                    self.r |= x
                if re.search(r"store_dwordx[34]", mn):
                    self.store_data = R[0] if mn.startswith("buffer_") else R[1]
        elif self.salu:
            if mn.startswith(("s_cmp", "s_waitcnt", "s_nop", "s_barrier", "s_branch", "s_cbranch", "s_endpgm", "s_sleep", "s_setprio")):
                for x in R:
                    self.r |= x
            elif R:
                self.w = set(R[0])
                for x in R[1:]:
                    self.r |= x
                if "saveexec" in mn:
                    self.w |= {("s", "exec")}
        self.states = 1
        if mn == "s_nop":
            self.states = int(ops[0], 0) + 1

    def dpp_src(self):
        return regs_of(self.ops[1]) if self.dpp else set()


def need(p, c):
    n = 0
    pv = {x for x in p.w if x[0] in "va"}
    ps = {x for x in p.w if x[0] == "s"}
    if p.valu:
        if c.dpp and pv & c.r:
            n = max(n, 2)
        if c.mn.startswith(("v_readlane", "v_readfirstlane")) and pv & c.r:
            n = max(n, 1)
        if c.mn.startswith("v_permlane") and pv & c.r:
            n = max(n, 2)
        if (c.valu or c.mfma) and ps & c.r:
            n = max(n, 2)
            if c.mn.startswith(("v_readlane", "v_writelane")) and ps & regs_of(c.ops[2]):
                n = max(n, 4)
        if c.vmem and ps & c.r:
            n = max(n, 5)
        if c.salu and ps & c.r:
            n = max(n, 1)
        if p.trans and c.valu and not c.trans and pv & c.r:
            n = max(n, 1)
        if p.trans and (c.ds or c.vmem or c.mfma) and pv & c.r:
            n = max(n, 1)
        if c.mfma and pv & c.r:
            n = max(n, 2)
        if "sdwa" in p.mn and "dst_sel:DWORD" not in p.text and c.valu and pv & (c.r | c.w):
            n = max(n, 1)
    if p.mfma:
        d = {4: 8, 8: 12}[p.passes]
        if c.mfma:
            if p.w & c.ab:
                n = max(n, d)
            elif p.w & c.srcc and p.w != c.srcc:
                n = max(n, d - 2)
            elif p.w & c.w and p.w != c.srcc:
                n = max(n, d)
        elif (c.valu or c.ds or c.vmem) and p.w & (c.r | c.w):
            n = max(n, d)
        if c.valu and p.srcc & c.w:
            n = max(n, {4: 3, 8: 7}[p.passes])
    if p.store_data and (c.valu or c.ds or c.vmem) and p.store_data & c.w:
        n = max(n, 2)
    if p.salu and ("s", "m0") in p.w and (c.vmem or c.ds):
        n = max(n, 1)
    return n


class Asm:
    def __init__(self):
        self.lines = []
        self.hist = []
        self.nops = 0

    def raw(self, text):
        self.lines.append(text)

    def label(self, name):
        self.lines.append(name + ":")

    def comment(self, text):
        self.lines.append("    ; " + text)

    def __call__(self, text):
        for ln in text.strip().split("\n"):
            ln = ln.strip()
            if not ln:
                continue
            if ln.startswith(";"):
                self.lines.append("    " + ln)
                continue
            if ln.endswith(":"):
                self.label(ln[:-1])
                continue
            c = Ins(ln)
            dist, pad = 0, 0
            for p in reversed(self.hist[-24:]):
                pad = max(pad, need(p, c) - dist)
                dist += p.states
                if dist >= 24:
                    break
            while pad > 0:
                k = min(pad, 16)
                nop = Ins("s_nop %d" % (k - 1))
                self.lines.append("    " + nop.text)
                self.hist.append(nop)
                self.nops += 1
                pad -= k
            self.lines.append("    " + ln)
            self.hist.append(c)

    def text(self):
        return "\n".join(self.lines) + "\n"
```

```python
import sys, argparse
from emit import Asm

E, T = 160000, 2560000
NB, BS = 256, 625
NCH, CH = 256, 10000
HALF = 80000
CH_STRIDE = 84096
OFFROW = 2176
BIG = 1 << 26

P = dict(ws_rec=0, ld_pol="nt", st_pol="", rec_pol="", depth=4, ts=0, k1_pref=0, no_ds=0, no_gather=0, no_valu=0, half=80000, prio=0)


def header(p):
    ref = open("standalone__molecular_angular_gemnet__graph.s.ref").read().split("\n")
    out = [l for l in ref if l.startswith(";") and "@launch" not in l and "Override launch" not in l and "grid=ceil" not in l]
    out.append("; @launch kernel=bin_kernel grid=(256,1,1) block=(1024,1,1) lds=87296")
    out.append("; @launch kernel=acc_kernel grid=(256,1,1) block=(1024,1,1) lds=%d" % (81920 + 16 * 1536))
    out.append('.amdgcn_target "amdgcn-amd-amdhsa--gfx950"')
    out.append(".text")
    return "\n".join(out) + "\n"


def kd(name, vgpr, sgpr):
    return f""".amdhsa_kernel {name}
  .amdhsa_next_free_vgpr {vgpr}
  .amdhsa_next_free_sgpr {sgpr}
  .amdhsa_accum_offset {(vgpr + 3) // 4 * 4}
  .amdhsa_group_segment_fixed_size 0
  .amdhsa_kernarg_size 112
  .amdhsa_user_sgpr_count 2
  .amdhsa_user_sgpr_kernarg_segment_ptr 1
  .amdhsa_system_sgpr_workgroup_id_x 1
  .amdhsa_float_denorm_mode_32 3
.end_amdhsa_kernel
"""


def srd(a, d, lo, nbytes, add=None):
    if add is None:
        a(f"s_mov_b32 s{d}, s{lo}")
        a(f"s_and_b32 s{d+1}, s{lo+1}, 0xffff")
    else:
        a(f"s_add_u32 s{d}, s{lo}, {add}")
        a(f"s_addc_u32 s{d+1}, s{lo+1}, 0")
        a(f"s_and_b32 s{d+1}, s{d+1}, 0xffff")
    a(f"s_mov_b32 s{d+2}, {nbytes}")
    a(f"s_mov_b32 s{d+3}, 0x20000")


class Stamps:
    def __init__(self, a, p, kern):
        self.a, self.on, self.n, self.kern = a, p["ts"], 0, kern

    def mark(self):
        if self.on:
            op = "s_memtime" if self.on == 2 else "s_memrealtime"
            self.a(f"{op} s[{80 + 2 * self.n}:{81 + 2 * self.n}]")
            self.n += 1

    def flush(self, ws_lo, wave_sgpr):
        if not self.on:
            return
        a = self.a
        a("s_waitcnt lgkmcnt(0)")
        a(f"s_cmp_lg_u32 s{wave_sgpr}, 0")
        a(f"s_cbranch_scc1 TS_DONE_{self.kern}")
        a(f"s_lshl_b32 s96, s2, 6")
        a(f"s_add_u32 s96, s96, {(200 << 20) + self.kern * 16384}")
        a(f"s_add_u32 s98, s{ws_lo}, s96")
        a(f"s_addc_u32 s99, s{ws_lo+1}, 0")
        a("v_mov_b32 v2, 0")
        for i in range(self.n):
            a(f"v_mov_b32 v4, s{80 + 2 * i}")
            a(f"v_mov_b32 v5, s{81 + 2 * i}")
            a(f"global_store_dwordx2 v2, v[4:5], s[98:99] offset:{8 * i}")
        a(f"TS_DONE_{self.kern}:")


def scan_add(a, v):
    for sh in (1, 2, 4, 8):
        a(f"v_add_u32_dpp v{v}, v{v}, v{v} row_shr:{sh} row_mask:0xf bank_mask:0xf bound_ctrl:0")
    a(f"v_add_u32_dpp v{v}, v{v}, v{v} row_bcast:15 row_mask:0xa bank_mask:0xf")
    a(f"v_add_u32_dpp v{v}, v{v}, v{v} row_bcast:31 row_mask:0xc bank_mask:0xf")


def k1(a, p):
    STAGE = 2080
    ld = (" " + p["ld_pol"]) if p["ld_pol"] else ""
    st = (" " + p["st_pol"]) if p["st_pol"] else ""
    ts = Stamps(a, p, 0)
    a.raw(".globl bin_kernel\n.p2align 8\n.type bin_kernel,@function\nbin_kernel:")
    a(f"""
    s_cmp_ge_u32 s2, {NCH}
    s_cbranch_scc1 K1_END
    s_load_dwordx4 s[4:7], s[0:1], 8
    s_load_dwordx2 s[8:9], s[0:1], 32
    s_load_dwordx2 s[10:11], s[0:1], 48
    s_load_dwordx2 s[12:13], s[0:1], 104
    """)
    ts.mark()
    a(f"""
    v_lshlrev_b32 v1, 3, v0
    v_lshlrev_b32 v2, 2, v0
    v_lshrrev_b32 v70, 6, v0
    s_mul_i32 s40, s2, {CH * 4}
    s_mul_i32 s45, s2, {CH * 2}
    v_cmp_gt_u32 vcc, 1000, v0
    v_readfirstlane_b32 s3, v70
    """)
    for j in range(1, 5):
        a(f"s_add_u32 s{40+j}, s40, {8000*j}")
        a(f"s_add_u32 s{45+j}, s45, {4000*j}")
    a("s_mov_b64 s[50:51], vcc")
    a("s_waitcnt lgkmcnt(0)")
    srd(a, 16, 4, T * 4)
    srd(a, 20, 6, T * 4)
    srd(a, 24, 8, T * 2)
    a("s_load_dword s14, s[10:11], 0")
    a("s_mov_b64 exec, s[50:51]")
    for j in range(5):
        a(f"buffer_load_dwordx2 v[{4+2*j}:{5+2*j}], v1, s[20:23], s{40+j} offen{ld}")
        a(f"buffer_load_dwordx2 v[{14+2*j}:{15+2*j}], v1, s[16:19], s{40+j} offen{ld}")
        a(f"buffer_load_dword v{24+j}, v2, s[24:27], s{45+j} offen{ld}")
    a("s_mov_b64 exec, -1")
    a(f"""
    v_mov_b32 v90, 0
    v_mov_b32 v91, 0
    v_mov_b32 v92, 0
    v_mov_b32 v93, 0
    v_lshlrev_b32 v94, 4, v0
    v_add_u32 v95, 0x10000, v94
    v_mov_b32 v3, 8
    v_cmp_gt_u32 vcc, 320, v0
    ds_write_b128 v94, v[90:93]
    ds_write_b128 v94, v[90:93] offset:16384
    ds_write_b128 v94, v[90:93] offset:32768
    ds_write_b128 v94, v[90:93] offset:49152
    ds_write_b128 v95, v[90:93]
    s_mov_b64 exec, vcc
    ds_write_b128 v95, v[90:93] offset:16384
    s_mov_b64 exec, -1
    s_mul_i32 s56, s2, {CH_STRIDE}
    s_mul_i32 s57, s2, {OFFROW}
    s_add_u32 s58, s56, {p['ws_rec']}
    s_mov_b32 s60, 6871948
    s_mov_b32 s61, {p['half']}
    s_mov_b32 s62, {-BS}
    s_mov_b32 s63, 0xffff0000
    """)
    srd(a, 28, 12, 0, add="s58")
    srd(a, 32, 12, NCH * OFFROW, add=str(p["ws_rec"] + NCH * CH_STRIDE))
    a("s_waitcnt lgkmcnt(0)")
    a("s_lshl_b32 s14, s14, 16")
    a("s_barrier")
    a("s_mov_b64 exec, s[50:51]")
    for j in range(5):
        o0, o1, i0, i1, an = 4 + 2 * j, 5 + 2 * j, 14 + 2 * j, 15 + 2 * j, 24 + j
        k0, k1_, r0, r1 = 30 + 2 * j, 31 + 2 * j, 40 + 2 * j, 41 + 2 * j
        ra, rb = 50 + 4 * j, 52 + 4 * j
        q0, q1, x0, x1, l0, l1 = 70, 71, 72, 73, 74, 75
        a(f"""
        s_waitcnt vmcnt({15 - 3 * j - 2})
        v_mul_hi_u32_u24 v{q0}, s60, v{o0}
        v_mul_hi_u32_u24 v{q1}, s60, v{o1}
        v_cmp_le_u32 vcc, s61, v{i0}
        v_cmp_le_u32 s[52:53], s61, v{i1}
        v_mad_i32_i24 v{l0}, v{q0}, s62, v{o0}
        v_mad_i32_i24 v{l1}, v{q1}, s62, v{o1}
        v_addc_co_u32 v{k0}, vcc, v{q0}, v{q0}, vcc
        v_addc_co_u32 v{k1_}, s[52:53], v{q1}, v{q1}, s[52:53]
        v_lshlrev_b32 v{k0}, 2, v{k0}
        v_lshlrev_b32 v{k1_}, 2, v{k1_}
        ds_add_rtn_u32 v{r0}, v{k0}, v3
        ds_add_rtn_u32 v{r1}, v{k1_}, v3
        v_lshl_add_u32 v{ra}, v{i0}, 5, 32
        v_lshl_add_u32 v{rb}, v{i1}, 5, 32
        s_waitcnt vmcnt({15 - 3 * j - 3})
        v_lshlrev_b32 v{x0}, 16, v{an}
        v_and_b32 v{x1}, s63, v{an}
        v_mul_f32 v{x0}, s14, v{x0}
        v_mul_f32 v{x1}, s14, v{x1}
        v_cvt_pk_bf16_f32 v{x0}, v{x0}, v{x1}
        v_and_b32 v{x1}, s63, v{x0}
        v_lshlrev_b32 v{x0}, 16, v{x0}
        v_mul_f32 v{x1}, 0.15915494, v{x1}
        v_mul_f32 v{x0}, 0.15915494, v{x0}
        v_fract_f32 v{x1}, v{x1}
        v_fract_f32 v{x0}, v{x0}
        v_cos_f32 v{x1}, v{x1}
        v_cos_f32 v{x0}, v{x0}
        v_cvt_pk_bf16_f32 v{x0}, v{x0}, v{x1}
        v_lshl_or_b32 v{ra+1}, v{x0}, 16, v{l0}
        v_and_or_b32 v{rb+1}, v{x0}, s63, v{l1}
        """)
    a("s_mov_b64 exec, -1")
    a("s_waitcnt lgkmcnt(0)")
    ts.mark()
    a("s_barrier")
    a("s_cmp_lg_u32 s3, 0")
    a("s_cbranch_scc1 K1_SCANNED")
    a("""
    v_lshlrev_b32 v70, 5, v0
    ds_read_b128 v[72:75], v70
    ds_read_b128 v[76:79], v70 offset:16
    s_waitcnt lgkmcnt(0)
    """)
    for i in range(8):
        a(f"v_add_u32 v{72+i}, 8, v{72+i}")
    for i in range(8):
        a(f"v_and_b32 v{72+i}, -16, v{72+i}")
    for i in range(1, 8):
        a(f"v_add_u32 v{72+i}, v{71+i}, v{72+i}")
    a("v_mov_b32 v71, v79")
    scan_add(a, 71)
    a(f"v_sub_u32 v80, v71, v79")
    a(f"v_readlane_b32 s54, v71, 63")
    a(f"v_add_u32 v80, {STAGE}, v80")
    for i in range(1, 8):
        a(f"v_add_u32 v{80+i}, v80, v{71+i}")
    a(f"""
    ds_write_b128 v70, v[80:83]
    ds_write_b128 v70, v[84:87] offset:16
    v_mov_b32 v71, s54
    v_mov_b32 v88, 2048
    s_sub_u32 s55, s56, {STAGE}
    ds_write_b32 v88, v71
    """)
    for i in range(8):
        a(f"v_add_u32 v{72+i}, s55, v{80+i}")
    a(f"""
    v_add_u32 v71, s56, v71
    buffer_store_dwordx4 v[72:75], v70, s[32:35], s57 offen{st}
    buffer_store_dwordx4 v[76:79], v70, s[32:35], s57 offen offset:16{st}
    s_mov_b64 exec, 1
    buffer_store_dword v71, v88, s[32:35], s57 offen{st}
    s_mov_b64 exec, -1
    s_waitcnt lgkmcnt(0)
    """)
    a("K1_SCANNED:")
    a("s_barrier")
    ts.mark()
    a("v_mov_b32 v88, 2048")
    a("ds_read_b32 v89, v88")
    a("s_mov_b64 exec, s[50:51]")
    for i in range(10):
        a(f"ds_read_b32 v{70+i}, v{30+i}")
    for i in range(10):
        a("s_waitcnt lgkmcnt(9)")
        a(f"v_add_u32 v{70+i}, v{70+i}, v{40+i}")
        a(f"ds_write_b64 v{70+i}, v[{50+2*i}:{51+2*i}]")
    a("s_mov_b64 exec, -1")
    a("v_readfirstlane_b32 s30, v89")
    a("s_waitcnt lgkmcnt(0)")
    a("s_barrier")
    ts.mark()
    a(f"v_add_u32 v96, {STAGE}, v94")
    a(f"v_add_u32 v97, {STAGE}, v95")
    for i in range(5):
        base, off = (96, 16384 * i) if i < 4 else (97, 16384 * (i - 4))
        a(f"ds_read_b128 v[{4+4*i}:{7+4*i}], v{base} offset:{off}")
    a("s_cmp_lt_u32 s3, 3")
    a("s_cbranch_scc0 K1_NO6")
    a(f"ds_read_b128 v[24:27], v97 offset:16384")
    a(f"v_add_u32 v75, {5*16384}, v94")
    a("s_waitcnt lgkmcnt(0)")
    a(f"buffer_store_dwordx4 v[24:27], v75, s[28:31], 0 offen{st}")
    a("K1_NO6:")
    for i in range(1, 5):
        a(f"v_add_u32 v{70+i}, {i*16384}, v94")
    for i in range(5):
        a(f"s_waitcnt lgkmcnt({4 - i})")
        a(f"buffer_store_dwordx4 v[{4+4*i}:{7+4*i}], v{94 if i == 0 else 70+i}, s[28:31], 0 offen{st}")
    if p["ts"]:
        a("s_waitcnt vmcnt(0)")
        ts.mark()
        ts.flush(12, 3)
    a("K1_END:")
    a("s_endpgm")


def k2(a, p):
    DEPTH = p["depth"]
    NBLK, NU = 6, 24
    MK = 81920
    rp = (" " + p["rec_pol"]) if p["rec_pol"] else ""
    ts = Stamps(a, p, 1)
    vCoff, vLoff, vSel, vMask = 2, 3, 4, 107
    REC = 8
    RING = 32
    NRING = DEPTH + 1
    vLa, vLb = 64, 65
    vGA = 68
    vC, vL, vX, vD = 70, 71, 75, 80
    vM, vDist, vWd, vWu, vWs, vWr, vCen, vEo = 88, 94, 97, 99, 101, 102, 103, 104
    vG, vDD, vMkW, vMkR, vLane16, vPerm = 108, 109, 110, 111, 112, 113
    vHi = 114
    a.raw(".globl acc_kernel\n.p2align 8\n.type acc_kernel,@function\nacc_kernel:")
    a(f"""
    s_cmp_ge_u32 s2, {NB}
    s_cbranch_scc1 K2_END
    s_load_dwordx2 s[22:23], s[0:1], 104
    s_load_dwordx2 s[4:5], s[0:1], 0
    s_load_dwordx2 s[6:7], s[0:1], 24
    s_load_dwordx2 s[8:9], s[0:1], 40
    s_load_dwordx4 s[12:15], s[0:1], 56
    s_load_dwordx4 s[16:19], s[0:1], 72
    s_load_dwordx2 s[20:21], s[0:1], 88
    """)
    ts.mark()
    a(f"""
    v_and_b32 v1, 63, v0
    v_lshrrev_b32 v32, 6, v0
    s_and_b32 s64, s2, 7
    s_lshl_b32 s64, s64, 5
    v_readfirstlane_b32 s3, v32
    s_lshr_b32 s65, s2, 3
    s_or_b32 s64, s64, s65
    v_and_b32 v36, 15, v1
    v_lshrrev_b32 v37, 4, v1
    v_mul_u32_u24 v33, {OFFROW}, v36
    s_mul_i32 s65, s3, {16 * OFFROW}
    s_lshl_b32 s66, s64, 3
    v_lshl_add_u32 v33, v37, 2, v33
    s_add_u32 s65, s65, s66
    v_mov_b32 v34, 0
    v_mov_b32 v35, 0
    s_waitcnt lgkmcnt(0)
    """)
    srd(a, 32, 22, NCH * OFFROW, add=str(p["ws_rec"] + NCH * CH_STRIDE))
    a(f"""
    s_mov_b32 exec_hi, 0
    buffer_load_dwordx2 v[34:35], v33, s[32:35], s65 offen{rp}
    s_mov_b32 exec_hi, -1
    """)
    srd(a, 24, 4, E * 32)
    srd(a, 36, 6, E * 2)
    srd(a, 40, 20, E * 32)
    srd(a, 28, 22, NCH * CH_STRIDE, add=str(p["ws_rec"]))
    a(f"""
    s_mul_i32 s67, s64, {BS}
    s_lshl_b32 s68, s3, 4
    v_add_u32 v38, s68, v36
    v_lshlrev_b32 v39, 3, v37
    v_mov_b32 v42, 0x80000000
    """)
    for t in range(3):
        a(f"""
        v_add_u32 v40, {256 * t}, v38
        v_cmp_gt_u32 vcc, {BS}, v40
        v_add_u32 v40, s67, v40
        v_lshl_add_u32 v41, v40, 5, v39
        v_lshlrev_b32 v40, 1, v40
        v_cndmask_b32 v{vEo+t}, v42, v41, vcc
        v_cndmask_b32 v40, v42, v40, vcc
        buffer_load_dwordx2 v[{vM+2*t}:{vM+2*t+1}], v{vEo+t}, s[24:27], 0 offen
        buffer_load_ushort v{vDist+t}, v40, s[36:39], 0 offen
        """)
    a(f"""
    v_lshlrev_b32 v40, 1, v36
    v_lshl_add_u32 v41, v37, 7, v40
    v_lshl_add_u32 v40, v37, 6, v40
    v_lshlrev_b32 v42, 2, v37
    global_load_ushort v{vWd}, v41, s[16:17]
    global_load_ushort v{vHi}, v41, s[16:17] offset:32
    global_load_ushort v{vWd+1}, v41, s[16:17] offset:64
    global_load_ushort v{vHi+1}, v41, s[16:17] offset:96
    global_load_ushort v{vWu}, v41, s[18:19]
    global_load_ushort v{vHi+2}, v41, s[18:19] offset:32
    global_load_ushort v{vWu+1}, v41, s[18:19] offset:64
    global_load_ushort v{vHi+3}, v41, s[18:19] offset:96
    global_load_ushort v{vWs}, v40, s[14:15]
    global_load_ushort v{vHi+4}, v40, s[14:15] offset:32
    global_load_ushort v{vWr}, v40, s[12:13]
    global_load_ushort v{vHi+5}, v40, s[12:13] offset:32
    global_load_dword v{vCen}, v42, s[8:9]
    """)
    NPRE = 6 + 13
    a(f"""
    v_mov_b32 v44, 0
    v_mov_b32 v45, 0
    v_mov_b32 v46, 0
    v_mov_b32 v47, 0
    v_lshlrev_b32 v40, 4, v0
    v_add_u32 v41, 0x10000, v40
    s_mul_i32 s69, s3, 1536
    s_add_u32 s69, s69, {MK}
    v_lshlrev_b32 v{vLane16}, 4, v1
    v_lshl_add_u32 v{vMkR}, v1, 2, s69
    v_add_u32 v{vMkW}, s69, v{vLane16}
    ds_write_b128 v40, v[44:47]
    ds_write_b128 v40, v[44:47] offset:16384
    ds_write_b128 v40, v[44:47] offset:32768
    ds_write_b128 v40, v[44:47] offset:49152
    ds_write_b128 v41, v[44:47]
    ds_write_b128 v{vMkW}, v[44:47]
    v_lshl_add_u32 v43, v1, 3, s69
    ds_write_b64 v43, v[44:45] offset:1024
    """)
    a(f"""
    v_and_b32 v40, 3, v1
    v_bfe_u32 v41, v1, 2, 2
    v_lshlrev_b32 v{vCoff}, 3, v40
    v_lshlrev_b32 v{vLoff}, 5, v40
    v_subrev_u32 v{vCoff}, 32, v{vCoff}
    v_lshl_add_u32 v{vLoff}, v41, 3, v{vLoff}
    v_mov_b32 v{vMask}, 0xffff0000
    s_mov_b32 s70, 0x02020000
    s_mov_b32 s71, 0x01000c0c
    v_lshrrev_b32 v42, 2, v1
    v_lshlrev_b32 v42, 2, v42
    v_lshl_add_u32 v{vPerm}, v40, 6, v42
    """)
    for j in range(4):
        a(f"v_xor_b32 v42, {j}, v41")
        a(f"v_mul_lo_u32 v42, v42, s70")
        a(f"v_add_u32 v{vSel+j}, s71, v42")
    a("s_waitcnt lgkmcnt(0)")
    a("s_barrier")
    a(f"s_waitcnt vmcnt({NPRE})")
    ts.mark()
    a(f"""
    v_sub_u32 v35, v35, v34
    v_lshlrev_b32 v40, 26, v37
    v_mov_b32 v41, v35
    """)
    scan_add(a, 41)
    a(f"""
    s_mov_b32 s72, 0x80000000
    v_readlane_b32 s73, v41, 63
    v_sub_u32 v41, v41, v35
    v_sub_u32 v{vDD}, v34, v41
    v_lshrrev_b32 v{vG}, 4, v41
    v_add_u32 v{vDD}, v{vDD}, v40
    s_lshr_b32 s73, s73, 4
    v_writelane_b32 v{vDD}, s72, 32
    s_mov_b32 s74, 0
    s_mov_b32 s79, 0x83ffffff
    """)
    a("K2_ROUND:")
    a(f"""
    s_sub_u32 s75, s73, s74
    s_cmp_le_i32 s75, 0
    s_cbranch_scc1 K2_DONE
    v_subrev_u32 v40, s74, v{vG}
    v_max_i32 v40, 0, v40
    s_lshl_b32 s76, s74, 4
    v_cmp_gt_u32 vcc, {64 * NBLK}, v40
    v_lshl_add_u32 v40, v40, 2, s69
    s_mov_b32 exec_lo, vcc_lo
    s_and_b32 exec_hi, vcc_hi, 1
    ds_max_u32 v40, v{vDD}
    s_mov_b64 exec, -1
    """)
    for k in range(NBLK):
        a(f"ds_read_b32 v{48+k}, v{vMkR} offset:{256*k}")
    a("s_waitcnt lgkmcnt(0)")
    for sh in (1, 2, 4, 8):
        for k in range(NBLK):
            a(f"v_max_u32_dpp v{48+k}, v{48+k}, v{48+k} row_shr:{sh} row_mask:0xf bank_mask:0xf bound_ctrl:0")
    for k in range(NBLK):
        a(f"v_max_u32_dpp v{48+k}, v{48+k}, v{48+k} row_bcast:15 row_mask:0xa bank_mask:0xf")
    for k in range(NBLK):
        a(f"v_max_u32_dpp v{48+k}, v{48+k}, v{48+k} row_bcast:31 row_mask:0xc bank_mask:0xf")
    for k in range(NBLK - 1):
        a(f"v_readlane_b32 s{44+k}, v{48+k}, 63")
    for k in range(1, NBLK - 1):
        a(f"s_max_u32 s{44+k}, s{44+k}, s{43+k}")
    for k in range(1, NBLK):
        a(f"v_max_u32 v{48+k}, s{43+k}, v{48+k}")
    for k in range(NBLK):
        if k:
            a(f"s_add_u32 s76, s76, 1024")
        a(f"v_add3_u32 v{48+k}, v{48+k}, v{vLane16}, s76")
        a(f"v_and_b32 v{48+k}, s79, v{48+k}")
        a(f"ds_bpermute_b32 v{48+k}, v{vPerm}, v{48+k}")
    for k in range(NBLK):
        a(f"s_waitcnt lgkmcnt({NBLK-1-k})")
        a(f"buffer_load_dwordx4 v[{REC+4*k}:{REC+4*k+3}], v{48+k}, s[28:31], 0 offen{rp}")
    if p["no_gather"]:
        a("s_mov_b32 s26, 0")
    a(f"s_add_u32 s75, s75, 15")
    a(f"s_lshr_b32 s75, s75, 4")

    def issue(u):
        kb, kk = divmod(u, 4)
        slot = RING + 4 * (u % NRING)
        for h in range(2):
            a(f"v_add_u32_dpp v{vGA+h}, v{REC+4*kb+2*h}, v{vCoff} quad_perm:[{kk},{kk},{kk},{kk}] row_mask:0xf bank_mask:0xf")
            a(f"buffer_load_dwordx2 v[{slot+2*h}:{slot+2*h+1}], v{vGA+h}, s[24:27], 0 offen")

    def process(u):
        kb, kk = divmod(u, 4)
        slot = RING + 4 * (u % NRING)
        younger = 2 * (min(u + DEPTH, NU - 1) - u)
        qp = f"quad_perm:[{kk},{kk},{kk},{kk}] row_mask:0xf bank_mask:0xf"
        if kk == 0:
            for h in range(2):
                a(f"v_lshlrev_b32_sdwa v{vLa+h}, 7, v{REC+4*kb+2*h+1} dst_sel:DWORD dst_unused:UNUSED_PAD src0_sel:DWORD src1_sel:WORD_0")
        for h in range(2):
            d0, d1 = slot + 2 * h, slot + 2 * h + 1
            a(f"v_and_b32_dpp v{vC}, v{REC+4*kb+2*h+1}, v{vMask} {qp}")
            a(f"v_xor_b32_dpp v{vL}, v{vLa+h}, v{vLoff} {qp}")
            a(f"s_waitcnt vmcnt({younger + 1 - h})")
            for j in range(4):
                a(f"v_perm_b32 v{vX+j}, v{d1}, v{d0}, v{vSel+j}")
            for j in range(1, 4):
                a(f"v_xor_b32 v{vL+j}, {8*j}, v{vL}")
            for j in range(4):
                a(f"v_mul_f32 v{vX+j}, v{vC}, v{vX+j}")
            for j in range(4):
                a(f"v_cvt_f64_f32 v[{vD+2*j}:{vD+2*j+1}], v{vX+j}")
                if not p["no_ds"]:
                    a(f"ds_add_f64 v{vL+j}, v[{vD+2*j}:{vD+2*j+1}]")

    a(f"s_waitcnt vmcnt({NBLK-1})")
    ts.mark()
    for u in range(DEPTH):
        if u == 4:
            a(f"s_waitcnt vmcnt({NBLK-2+8})")
        issue(u)
    for u in range(NU):
        if u + DEPTH < NU:
            if u == 0 and DEPTH == 4:
                a(f"s_waitcnt vmcnt({NBLK-2+2*DEPTH})")
            issue(u + DEPTH)
        process(u)
        if u < NU - 1:
            a(f"s_cmp_le_u32 s75, {u+1}")
            a(f"s_cbranch_scc1 K2_DONE")
    a(f"""
    v_mov_b32 v44, 0
    v_mov_b32 v45, 0
    v_mov_b32 v46, 0
    v_mov_b32 v47, 0
    v_lshl_add_u32 v43, v1, 3, s69
    s_add_u32 s74, s74, {64 * NBLK}
    ds_write_b128 v{vMkW}, v[44:47]
    ds_write_b64 v43, v[44:45] offset:1024
    s_branch K2_ROUND
    """)
    a("K2_DONE:")
    a("s_waitcnt vmcnt(0)")
    ts.mark()
    vS, vR = 8, 20
    for i in range(6):
        a(f"v_lshl_or_b32 v{vWd+i}, v{vHi+i}, 16, v{vWd+i}")
    a(f"""
    v_lshlrev_b32 v32, 16, v{vCen}
    v_and_b32 v33, v{vMask}, v{vCen}
    v_mov_b32 v35, 0
    v_mov_b32 v37, 0
    v_mov_b32 v34, v{vWs}
    v_mov_b32 v36, v{vWr}
    s_mov_b32 s44, 0xc1200000
    s_mov_b32 s45, 0x3fb8aa3b
    """)
    for t in range(3):
        a(f"v_mov_b32 v{41+4*t}, 0")
    def rnd(t):
        x0, x1 = 42 + 4 * t, 43 + 4 * t
        a(f"v_cvt_pk_bf16_f32 v{x0}, v{x0}, v{x1}")
        a(f"v_and_b32 v{x1}, v{vMask}, v{x0}")
        a(f"v_lshlrev_b32 v{x0}, 16, v{x0}")
    for t in range(3):
        x0, x1 = 42 + 4 * t, 43 + 4 * t
        a(f"v_lshlrev_b32 v{vDist+t}, 16, v{vDist+t}")
        a(f"v_sub_f32 v{x0}, v{vDist+t}, v32")
        a(f"v_sub_f32 v{x1}, v{vDist+t}, v33")
        rnd(t)
        a(f"v_mul_f32 v{x0}, v{x0}, v{x0}")
        a(f"v_mul_f32 v{x1}, v{x1}, v{x1}")
        rnd(t)
        a(f"v_mul_f32 v{x0}, s44, v{x0}")
        a(f"v_mul_f32 v{x1}, s44, v{x1}")
        rnd(t)
        a(f"v_mul_f32 v{x0}, s45, v{x0}")
        a(f"v_mul_f32 v{x1}, s45, v{x1}")
        a(f"v_exp_f32 v{x0}, v{x0}")
        a(f"v_exp_f32 v{x1}, v{x1}")
        a(f"v_cvt_pk_bf16_f32 v{40+4*t}, v{x0}, v{x1}")
    for t in range(3):
        a(f"v_mfma_f32_16x16x16_bf16 v[{vS+4*t}:{vS+4*t+3}], v[34:35], v[{40+4*t}:{41+4*t}], 0")
        a(f"v_mfma_f32_16x16x16_bf16 v[{vR+4*t}:{vR+4*t+3}], v[36:37], v[{40+4*t}:{41+4*t}], 0")
    a(f"""
    v_mov_b32 v32, v{vWd}
    v_mov_b32 v33, v{vWd+1}
    v_mov_b32 v34, v{vWd}
    v_mov_b32 v35, v{vWd+1}
    v_mov_b32 v36, v{vWu}
    v_mov_b32 v37, v{vWu+1}
    v_mov_b32 v38, v{vWu}
    v_mov_b32 v39, v{vWu+1}
    v_and_b32 v64, 15, v1
    v_lshrrev_b32 v65, 4, v1
    v_lshlrev_b32 v64, 7, v64
    s_lshl_b32 s46, s3, 11
    v_lshl_add_u32 v64, v65, 5, v64
    v_add_u32 v64, s46, v64
    v_add_u32 v65, 0x10000, v64
    """)
    for t in range(3):
        for i in (0, 2):
            a(f"v_cvt_pk_bf16_f32 v66, v{vR+4*t+i}, v{vR+4*t+i+1}")
            a(f"v_and_b32 v{vR+4*t+i+1}, v{vMask}, v66")
            a(f"v_lshlrev_b32 v{vR+4*t+i}, 16, v66")
    a("s_waitcnt lgkmcnt(0)")
    a("s_barrier")
    ts.mark()
    vA = 40
    for t in range(3):
        base, off = (64, 32768 * t) if t < 2 else (65, 0)
        a(f"ds_read_b128 v[{vA+8*t}:{vA+8*t+3}], v{base} offset:{off}")
        a(f"ds_read_b128 v[{vA+8*t+4}:{vA+8*t+7}], v{base} offset:{off+16}")

    def split(t, f, b):
        a(f"v_cvt_pk_bf16_f32 v{b}, v{f}, v{f+1}")
        a(f"v_cvt_pk_bf16_f32 v{b+1}, v{f+2}, v{f+3}")
        a(f"v_lshlrev_b32 v{b+2}, 16, v{b}")
        a(f"v_and_b32 v{b+3}, v{vMask}, v{b}")
        a(f"v_sub_f32 v{f}, v{f}, v{b+2}")
        a(f"v_sub_f32 v{f+1}, v{f+1}, v{b+3}")
        a(f"v_lshlrev_b32 v{b+2}, 16, v{b+1}")
        a(f"v_and_b32 v{b+3}, v{vMask}, v{b+1}")
        a(f"v_sub_f32 v{f+2}, v{f+2}, v{b+2}")
        a(f"v_sub_f32 v{f+3}, v{f+3}, v{b+3}")
        a(f"v_cvt_pk_bf16_f32 v{b+2}, v{f}, v{f+1}")
        a(f"v_cvt_pk_bf16_f32 v{b+3}, v{f+2}, v{f+3}")

    vF, vB = 68, 80
    def fb(t):
        return (68 + 4 * t, [80, 84, 108][t])
    for t in range(3):
        f, b = fb(t)
        a(f"s_waitcnt lgkmcnt({4 - 2 * t})")
        for i in range(4):
            a(f"v_cvt_f32_f64 v{f+i}, v[{vA+8*t+2*i}:{vA+8*t+2*i+1}]")
        split(t, f, b)
        a(f"v_mfma_f32_16x16x32_bf16 v[{vA+8*t}:{vA+8*t+3}], v[32:35], v[{b}:{b+3}], 0")
    for t in range(3):
        f, b = fb(t)
        for i in range(4):
            a(f"v_mul_f32 v{f+i}, v{vA+8*t+i}, v{vS+4*t+i}")
        split(t, f, b)
        a(f"v_mfma_f32_16x16x32_bf16 v[{vA+8*t+4}:{vA+8*t+7}], v[36:39], v[{b}:{b+3}], 0")
    for t in range(3):
        f, b = fb(t)
        a(f"v_lshlrev_b32 v{f}, 16, v{vM+2*t}")
        a(f"v_and_b32 v{f+1}, v{vMask}, v{vM+2*t}")
        a(f"v_lshlrev_b32 v{f+2}, 16, v{vM+2*t+1}")
        a(f"v_and_b32 v{f+3}, v{vMask}, v{vM+2*t+1}")
        for i in range(4):
            a(f"v_fmac_f32 v{f+i}, v{vA+8*t+4+i}, v{vR+4*t+i}")
        a(f"v_cvt_pk_bf16_f32 v{b}, v{f}, v{f+1}")
        a(f"v_cvt_pk_bf16_f32 v{b+1}, v{f+2}, v{f+3}")
        a(f"buffer_store_dwordx2 v[{b}:{b+1}], v{vEo+t}, s[40:43], 0 offen")
    if p["ts"]:
        a("s_waitcnt vmcnt(0)")
        ts.mark()
        ts.flush(22, 3)
    a("K2_END:")
    a("s_endpgm")


def build(p):
    a = Asm()
    k1(a, p)
    a.hist = []
    k2(a, p)
    sg = 100 if p["ts"] else 80
    return header(p) + a.text() + '.section .rodata,"a"\n.p2align 6\n' + kd("bin_kernel", 104, sg) + ".p2align 6\n" + kd("acc_kernel", 120, sg)


if __name__ == "__main__":
    ap = argparse.ArgumentParser()
    ap.add_argument("-o", default="standalone__molecular_angular_gemnet__graph.s")
    ap.add_argument("kv", nargs="*")
    args = ap.parse_args()
    p = dict(P)
    for kv in args.kv:
        k, v = kv.split("=")
        p[k] = type(P[k])(v.replace("+", " ")) if not isinstance(P[k], int) else int(v, 0)
    open(args.o, "w").write(build(p))
```

```python
import sys, argparse
from emit import Asm

E, T = 160000, 2560000
NB, BS = 256, 625
NCH, CH = 256, 10000
HALF = 80000
CH_STRIDE = 84096
OFFROW = 2176
BIG = 1 << 26

P = dict(ws_rec=0, ld_pol="nt", st_pol="", rec_pol="", depth=4, ts=0, k1_pref=0, no_ds=0, no_gather=0, no_valu=0, half=80000, prio=0, no_load=0, gl=0, dummy=0)


def header(p):
    ref = open("standalone__molecular_angular_gemnet__graph.s.ref").read().split("\n")
    out = [l for l in ref if l.startswith(";") and "@launch" not in l and "Override launch" not in l and "grid=ceil" not in l]
    out.append("; @launch kernel=bin_kernel grid=(256,1,1) block=(1024,1,1) lds=87296")
    out.append("; @launch kernel=acc_kernel grid=(256,1,1) block=(1024,1,1) lds=%d" % (81920 + 16 * 1536))
    for i in range(p["dummy"]):
        out.append("; @launch kernel=nop_kernel grid=(1,1,1) block=(64,1,1) lds=0")
    out.append('.amdgcn_target "amdgcn-amd-amdhsa--gfx950"')
    out.append(".text")
    return "\n".join(out) + "\n"


def kd(name, vgpr, sgpr):
    return f""".amdhsa_kernel {name}
  .amdhsa_next_free_vgpr {vgpr}
  .amdhsa_next_free_sgpr {sgpr}
  .amdhsa_accum_offset {(vgpr + 3) // 4 * 4}
  .amdhsa_group_segment_fixed_size 0
  .amdhsa_kernarg_size 112
  .amdhsa_user_sgpr_count 2
  .amdhsa_user_sgpr_kernarg_segment_ptr 1
  .amdhsa_system_sgpr_workgroup_id_x 1
  .amdhsa_float_denorm_mode_32 3
.end_amdhsa_kernel
"""


def srd(a, d, lo, nbytes, add=None):
    if add is None:
        a(f"s_mov_b32 s{d}, s{lo}")
        a(f"s_and_b32 s{d+1}, s{lo+1}, 0xffff")
    else:
        a(f"s_add_u32 s{d}, s{lo}, {add}")
        a(f"s_addc_u32 s{d+1}, s{lo+1}, 0")
        a(f"s_and_b32 s{d+1}, s{d+1}, 0xffff")
    a(f"s_mov_b32 s{d+2}, {nbytes}")
    a(f"s_mov_b32 s{d+3}, 0x20000")


class Stamps:
    def __init__(self, a, p, kern):
        self.a, self.on, self.n, self.kern = a, p["ts"], 0, kern

    def mark(self):
        if self.on:
            op = "s_memtime" if self.on == 2 else "s_memrealtime"
            self.a(f"{op} s[{80 + 2 * self.n}:{81 + 2 * self.n}]")
            self.n += 1

    def flush(self, ws_lo, wave_sgpr):
        if not self.on:
            return
        a = self.a
        a("s_waitcnt lgkmcnt(0)")
        a(f"s_cmp_lg_u32 s{wave_sgpr}, 0")
        a(f"s_cbranch_scc1 TS_DONE_{self.kern}")
        a(f"s_lshl_b32 s96, s2, 6")
        a(f"s_add_u32 s96, s96, {(200 << 20) + self.kern * 16384}")
        a(f"s_add_u32 s98, s{ws_lo}, s96")
        a(f"s_addc_u32 s99, s{ws_lo+1}, 0")
        a("v_mov_b32 v2, 0")
        for i in range(self.n):
            a(f"v_mov_b32 v4, s{80 + 2 * i}")
            a(f"v_mov_b32 v5, s{81 + 2 * i}")
            a(f"global_store_dwordx2 v2, v[4:5], s[98:99] offset:{8 * i}")
        a(f"TS_DONE_{self.kern}:")


def scan_add(a, v):
    for sh in (1, 2, 4, 8):
        a(f"v_add_u32_dpp v{v}, v{v}, v{v} row_shr:{sh} row_mask:0xf bank_mask:0xf bound_ctrl:0")
    a(f"v_add_u32_dpp v{v}, v{v}, v{v} row_bcast:15 row_mask:0xa bank_mask:0xf")
    a(f"v_add_u32_dpp v{v}, v{v}, v{v} row_bcast:31 row_mask:0xc bank_mask:0xf")


def k1(a, p):
    STAGE = 2080
    ld = (" " + p["ld_pol"]) if p["ld_pol"] else ""
    st = (" " + p["st_pol"]) if p["st_pol"] else ""
    ts = Stamps(a, p, 0)
    a.raw(".globl bin_kernel\n.p2align 8\n.type bin_kernel,@function\nbin_kernel:")
    a(f"""
    s_cmp_ge_u32 s2, {NCH}
    s_cbranch_scc1 K1_END
    s_load_dwordx4 s[4:7], s[0:1], 8
    s_load_dwordx2 s[8:9], s[0:1], 32
    s_load_dwordx2 s[10:11], s[0:1], 48
    s_load_dwordx2 s[12:13], s[0:1], 104
    """)
    ts.mark()
    a(f"""
    v_lshlrev_b32 v1, 3, v0
    v_lshlrev_b32 v2, 2, v0
    v_lshrrev_b32 v70, 6, v0
    s_mul_i32 s40, s2, {CH * 4}
    s_mul_i32 s45, s2, {CH * 2}
    v_cmp_gt_u32 vcc, 1000, v0
    v_readfirstlane_b32 s3, v70
    """)
    for j in range(1, 5):
        a(f"s_add_u32 s{40+j}, s40, {8000*j}")
        a(f"s_add_u32 s{45+j}, s45, {4000*j}")
    a("s_mov_b64 s[50:51], vcc")
    a("s_waitcnt lgkmcnt(0)")
    srd(a, 16, 4, T * 4)
    srd(a, 20, 6, T * 4)
    srd(a, 24, 8, T * 2)
    a("s_load_dword s14, s[10:11], 0")
    a("s_mov_b64 exec, s[50:51]")
    for j in range(5):
        a(f"buffer_load_dwordx2 v[{4+2*j}:{5+2*j}], v1, s[20:23], s{40+j} offen{ld}")
        a(f"buffer_load_dwordx2 v[{14+2*j}:{15+2*j}], v1, s[16:19], s{40+j} offen{ld}")
        a(f"buffer_load_dword v{24+j}, v2, s[24:27], s{45+j} offen{ld}")
    a("s_mov_b64 exec, -1")
    a(f"""
    v_mov_b32 v90, 0
    v_mov_b32 v91, 0
    v_mov_b32 v92, 0
    v_mov_b32 v93, 0
    v_lshlrev_b32 v94, 4, v0
    v_add_u32 v95, 0x10000, v94
    v_mov_b32 v3, 8
    v_cmp_gt_u32 vcc, 320, v0
    ds_write_b128 v94, v[90:93]
    ds_write_b128 v94, v[90:93] offset:16384
    ds_write_b128 v94, v[90:93] offset:32768
    ds_write_b128 v94, v[90:93] offset:49152
    ds_write_b128 v95, v[90:93]
    s_mov_b64 exec, vcc
    ds_write_b128 v95, v[90:93] offset:16384
    s_mov_b64 exec, -1
    s_mul_i32 s56, s2, {CH_STRIDE}
    s_mul_i32 s57, s2, {OFFROW}
    s_add_u32 s58, s56, {p['ws_rec']}
    s_mov_b32 s60, 6871948
    s_mov_b32 s61, {p['half']}
    s_mov_b32 s62, {-BS}
    s_mov_b32 s63, 0xffff0000
    """)
    srd(a, 28, 12, 0, add="s58")
    srd(a, 32, 12, NCH * OFFROW, add=str(p["ws_rec"] + NCH * CH_STRIDE))
    a("s_waitcnt lgkmcnt(0)")
    a("s_lshl_b32 s14, s14, 16")
    a("s_barrier")
    a("s_mov_b64 exec, s[50:51]")
    for j in range(5):
        o0, o1, i0, i1, an = 4 + 2 * j, 5 + 2 * j, 14 + 2 * j, 15 + 2 * j, 24 + j
        k0, k1_, r0, r1 = 30 + 2 * j, 31 + 2 * j, 40 + 2 * j, 41 + 2 * j
        ra, rb = 50 + 4 * j, 52 + 4 * j
        q0, q1, x0, x1, l0, l1 = 70, 71, 72, 73, 74, 75
        a(f"""
        s_waitcnt vmcnt({15 - 3 * j - 2})
        v_mul_hi_u32_u24 v{q0}, s60, v{o0}
        v_mul_hi_u32_u24 v{q1}, s60, v{o1}
        v_cmp_le_u32 vcc, s61, v{i0}
        v_cmp_le_u32 s[52:53], s61, v{i1}
        v_mad_i32_i24 v{l0}, v{q0}, s62, v{o0}
        v_mad_i32_i24 v{l1}, v{q1}, s62, v{o1}
        v_addc_co_u32 v{k0}, vcc, v{q0}, v{q0}, vcc
        v_addc_co_u32 v{k1_}, s[52:53], v{q1}, v{q1}, s[52:53]
        v_lshlrev_b32 v{k0}, 2, v{k0}
        v_lshlrev_b32 v{k1_}, 2, v{k1_}
        ds_add_rtn_u32 v{r0}, v{k0}, v3
        ds_add_rtn_u32 v{r1}, v{k1_}, v3
        v_lshl_add_u32 v{ra}, v{i0}, 5, 32
        v_lshl_add_u32 v{rb}, v{i1}, 5, 32
        s_waitcnt vmcnt({15 - 3 * j - 3})
        v_lshlrev_b32 v{x0}, 16, v{an}
        v_and_b32 v{x1}, s63, v{an}
        v_mul_f32 v{x0}, s14, v{x0}
        v_mul_f32 v{x1}, s14, v{x1}
        v_cvt_pk_bf16_f32 v{x0}, v{x0}, v{x1}
        v_and_b32 v{x1}, s63, v{x0}
        v_lshlrev_b32 v{x0}, 16, v{x0}
        v_mul_f32 v{x1}, 0.15915494, v{x1}
        v_mul_f32 v{x0}, 0.15915494, v{x0}
        v_fract_f32 v{x1}, v{x1}
        v_fract_f32 v{x0}, v{x0}
        v_cos_f32 v{x1}, v{x1}
        v_cos_f32 v{x0}, v{x0}
        v_cvt_pk_bf16_f32 v{x0}, v{x0}, v{x1}
        v_lshl_or_b32 v{ra+1}, v{x0}, 16, v{l0}
        v_and_or_b32 v{rb+1}, v{x0}, s63, v{l1}
        """)
    a("s_mov_b64 exec, -1")
    a("s_waitcnt lgkmcnt(0)")
    ts.mark()
    a("s_barrier")
    a("s_cmp_lg_u32 s3, 0")
    a("s_cbranch_scc1 K1_SCANNED")
    a("""
    v_lshlrev_b32 v70, 5, v0
    ds_read_b128 v[72:75], v70
    ds_read_b128 v[76:79], v70 offset:16
    s_waitcnt lgkmcnt(0)
    """)
    for i in range(8):
        a(f"v_add_u32 v{72+i}, 8, v{72+i}")
    for i in range(8):
        a(f"v_and_b32 v{72+i}, -16, v{72+i}")
    for i in range(1, 8):
        a(f"v_add_u32 v{72+i}, v{71+i}, v{72+i}")
    a("v_mov_b32 v71, v79")
    scan_add(a, 71)
    a(f"v_sub_u32 v80, v71, v79")
    a(f"v_readlane_b32 s54, v71, 63")
    a(f"v_add_u32 v80, {STAGE}, v80")
    for i in range(1, 8):
        a(f"v_add_u32 v{80+i}, v80, v{71+i}")
    a(f"""
    ds_write_b128 v70, v[80:83]
    ds_write_b128 v70, v[84:87] offset:16
    v_mov_b32 v71, s54
    v_mov_b32 v88, 2048
    s_sub_u32 s55, s56, {STAGE}
    ds_write_b32 v88, v71
    """)
    for i in range(8):
        a(f"v_add_u32 v{72+i}, s55, v{80+i}")
    a(f"""
    v_add_u32 v71, s56, v71
    buffer_store_dwordx4 v[72:75], v70, s[32:35], s57 offen{st}
    buffer_store_dwordx4 v[76:79], v70, s[32:35], s57 offen offset:16{st}
    s_mov_b64 exec, 1
    buffer_store_dword v71, v88, s[32:35], s57 offen{st}
    s_mov_b64 exec, -1
    s_waitcnt lgkmcnt(0)
    """)
    a("K1_SCANNED:")
    a("s_barrier")
    ts.mark()
    a("v_mov_b32 v88, 2048")
    a("ds_read_b32 v89, v88")
    a("s_mov_b64 exec, s[50:51]")
    for i in range(10):
        a(f"ds_read_b32 v{70+i}, v{30+i}")
    for i in range(10):
        a("s_waitcnt lgkmcnt(9)")
        a(f"v_add_u32 v{70+i}, v{70+i}, v{40+i}")
        a(f"ds_write_b64 v{70+i}, v[{50+2*i}:{51+2*i}]")
    a("s_mov_b64 exec, -1")
    a("v_readfirstlane_b32 s30, v89")
    a("s_waitcnt lgkmcnt(0)")
    a("s_barrier")
    ts.mark()
    a(f"v_add_u32 v96, {STAGE}, v94")
    a(f"v_add_u32 v97, {STAGE}, v95")
    for i in range(5):
        base, off = (96, 16384 * i) if i < 4 else (97, 16384 * (i - 4))
        a(f"ds_read_b128 v[{4+4*i}:{7+4*i}], v{base} offset:{off}")
    a("s_cmp_lt_u32 s3, 3")
    a("s_cbranch_scc0 K1_NO6")
    a(f"ds_read_b128 v[24:27], v97 offset:16384")
    a(f"v_add_u32 v75, {5*16384}, v94")
    a("s_waitcnt lgkmcnt(0)")
    a(f"buffer_store_dwordx4 v[24:27], v75, s[28:31], 0 offen{st}")
    a("K1_NO6:")
    for i in range(1, 5):
        a(f"v_add_u32 v{70+i}, {i*16384}, v94")
    for i in range(5):
        a(f"s_waitcnt lgkmcnt({4 - i})")
        a(f"buffer_store_dwordx4 v[{4+4*i}:{7+4*i}], v{94 if i == 0 else 70+i}, s[28:31], 0 offen{st}")
    if p["ts"]:
        a("s_waitcnt vmcnt(0)")
        ts.mark()
        ts.flush(12, 3)
    a("K1_END:")
    a("s_endpgm")


def k2(a, p):
    DEPTH = p["depth"]
    NBLK, NU = 6, 24
    MK = 81920
    rp = (" " + p["rec_pol"]) if p["rec_pol"] else ""
    ts = Stamps(a, p, 1)
    vCoff, vLoff, vSel, vMask = 2, 3, 4, 107
    REC = 8
    RING = 32
    NRING = DEPTH + 1
    vLa, vLb = 64, 65
    vGA = 68
    vC, vL, vX, vD = 70, 71, 75, 80
    vM, vDist, vWd, vWu, vWs, vWr, vCen, vEo = 88, 94, 97, 99, 101, 102, 103, 104
    vG, vDD, vMkW, vMkR, vLane16, vPerm = 108, 109, 110, 111, 112, 113
    vHi = 114
    a.raw(".globl acc_kernel\n.p2align 8\n.type acc_kernel,@function\nacc_kernel:")
    a(f"""
    s_cmp_ge_u32 s2, {NB}
    s_cbranch_scc1 K2_END
    s_load_dwordx2 s[22:23], s[0:1], 104
    s_load_dwordx2 s[4:5], s[0:1], 0
    s_load_dwordx2 s[6:7], s[0:1], 24
    s_load_dwordx2 s[8:9], s[0:1], 40
    s_load_dwordx4 s[12:15], s[0:1], 56
    s_load_dwordx4 s[16:19], s[0:1], 72
    s_load_dwordx2 s[20:21], s[0:1], 88
    """)
    ts.mark()
    a(f"""
    v_and_b32 v1, 63, v0
    v_lshrrev_b32 v32, 6, v0
    s_and_b32 s64, s2, 7
    s_lshl_b32 s64, s64, 5
    v_readfirstlane_b32 s3, v32
    s_lshr_b32 s65, s2, 3
    s_or_b32 s64, s64, s65
    v_and_b32 v36, 15, v1
    v_lshrrev_b32 v37, 4, v1
    v_mul_u32_u24 v33, {OFFROW}, v36
    s_mul_i32 s65, s3, {16 * OFFROW}
    s_lshl_b32 s66, s64, 3
    v_lshl_add_u32 v33, v37, 2, v33
    s_add_u32 s65, s65, s66
    v_mov_b32 v34, 0
    v_mov_b32 v35, 0
    s_waitcnt lgkmcnt(0)
    """)
    srd(a, 32, 22, NCH * OFFROW, add=str(p["ws_rec"] + NCH * CH_STRIDE))
    a(f"""
    s_mov_b32 exec_hi, 0
    buffer_load_dwordx2 v[34:35], v33, s[32:35], s65 offen{rp}
    s_mov_b32 exec_hi, -1
    """)
    srd(a, 24, 4, E * 32)
    srd(a, 36, 6, E * 2)
    srd(a, 40, 20, E * 32)
    srd(a, 28, 22, NCH * CH_STRIDE, add=str(p["ws_rec"]))
    a(f"""
    s_mul_i32 s67, s64, {BS}
    s_lshl_b32 s68, s3, 4
    v_add_u32 v38, s68, v36
    v_lshlrev_b32 v39, 3, v37
    v_mov_b32 v42, 0x80000000
    """)
    for t in range(3):
        a(f"""
        v_add_u32 v40, {256 * t}, v38
        v_cmp_gt_u32 vcc, {BS}, v40
        v_add_u32 v40, s67, v40
        v_lshl_add_u32 v41, v40, 5, v39
        v_lshlrev_b32 v40, 1, v40
        v_cndmask_b32 v{vEo+t}, v42, v41, vcc
        v_cndmask_b32 v40, v42, v40, vcc
        buffer_load_dwordx2 v[{vM+2*t}:{vM+2*t+1}], v{vEo+t}, s[24:27], 0 offen
        buffer_load_ushort v{vDist+t}, v40, s[36:39], 0 offen
        """)
    a(f"""
    v_lshlrev_b32 v40, 1, v36
    v_lshl_add_u32 v41, v37, 7, v40
    v_lshl_add_u32 v40, v37, 6, v40
    v_lshlrev_b32 v42, 2, v37
    global_load_ushort v{vWd}, v41, s[16:17]
    global_load_ushort v{vHi}, v41, s[16:17] offset:32
    global_load_ushort v{vWd+1}, v41, s[16:17] offset:64
    global_load_ushort v{vHi+1}, v41, s[16:17] offset:96
    global_load_ushort v{vWu}, v41, s[18:19]
    global_load_ushort v{vHi+2}, v41, s[18:19] offset:32
    global_load_ushort v{vWu+1}, v41, s[18:19] offset:64
    global_load_ushort v{vHi+3}, v41, s[18:19] offset:96
    global_load_ushort v{vWs}, v40, s[14:15]
    global_load_ushort v{vHi+4}, v40, s[14:15] offset:32
    global_load_ushort v{vWr}, v40, s[12:13]
    global_load_ushort v{vHi+5}, v40, s[12:13] offset:32
    global_load_dword v{vCen}, v42, s[8:9]
    """)
    NPRE = 6 + 13
    a(f"""
    v_mov_b32 v44, 0
    v_mov_b32 v45, 0
    v_mov_b32 v46, 0
    v_mov_b32 v47, 0
    v_lshlrev_b32 v40, 4, v0
    v_add_u32 v41, 0x10000, v40
    s_mul_i32 s69, s3, 1536
    s_add_u32 s69, s69, {MK}
    v_lshlrev_b32 v{vLane16}, 4, v1
    v_lshl_add_u32 v{vMkR}, v1, 2, s69
    v_add_u32 v{vMkW}, s69, v{vLane16}
    ds_write_b128 v40, v[44:47]
    ds_write_b128 v40, v[44:47] offset:16384
    ds_write_b128 v40, v[44:47] offset:32768
    ds_write_b128 v40, v[44:47] offset:49152
    ds_write_b128 v41, v[44:47]
    ds_write_b128 v{vMkW}, v[44:47]
    v_lshl_add_u32 v43, v1, 3, s69
    ds_write_b64 v43, v[44:45] offset:1024
    """)
    a(f"""
    v_and_b32 v40, 3, v1
    v_bfe_u32 v41, v1, 2, 2
    v_lshlrev_b32 v{vCoff}, 3, v40
    v_lshlrev_b32 v{vLoff}, 5, v40
    v_subrev_u32 v{vCoff}, {0 if p['gl'] else 32}, v{vCoff}
    v_lshl_add_u32 v{vLoff}, v41, 3, v{vLoff}
    v_mov_b32 v{vMask}, 0xffff0000
    s_mov_b32 s70, 0x02020000
    s_mov_b32 s71, 0x01000c0c
    v_lshrrev_b32 v42, 2, v1
    v_lshlrev_b32 v42, 2, v42
    v_lshl_add_u32 v{vPerm}, v40, 6, v42
    """)
    for j in range(4):
        a(f"v_xor_b32 v42, {j}, v41")
        a(f"v_mul_lo_u32 v42, v42, s70")
        a(f"v_add_u32 v{vSel+j}, s71, v42")
    a("s_waitcnt lgkmcnt(0)")
    a("s_barrier")
    a(f"s_waitcnt vmcnt({NPRE})")
    ts.mark()
    a(f"""
    v_sub_u32 v35, v35, v34
    v_lshlrev_b32 v40, 26, v37
    v_mov_b32 v41, v35
    """)
    scan_add(a, 41)
    a(f"""
    s_mov_b32 s72, 0x80000000
    v_readlane_b32 s73, v41, 63
    v_sub_u32 v41, v41, v35
    v_sub_u32 v{vDD}, v34, v41
    v_lshrrev_b32 v{vG}, 4, v41
    v_add_u32 v{vDD}, v{vDD}, v40
    s_lshr_b32 s73, s73, 4
    v_writelane_b32 v{vDD}, s72, 32
    s_mov_b32 s74, 0
    s_mov_b32 s79, 0x83ffffff
    """)
    a("K2_ROUND:")
    a(f"""
    s_sub_u32 s75, s73, s74
    s_cmp_le_i32 s75, 0
    s_cbranch_scc1 K2_DONE
    v_subrev_u32 v40, s74, v{vG}
    v_max_i32 v40, 0, v40
    s_lshl_b32 s76, s74, 4
    v_cmp_gt_u32 vcc, {64 * NBLK}, v40
    v_lshl_add_u32 v40, v40, 2, s69
    s_mov_b32 exec_lo, vcc_lo
    s_and_b32 exec_hi, vcc_hi, 1
    ds_max_u32 v40, v{vDD}
    s_mov_b64 exec, -1
    """)
    for k in range(NBLK):
        a(f"ds_read_b32 v{48+k}, v{vMkR} offset:{256*k}")
    a("s_waitcnt lgkmcnt(0)")
    for sh in (1, 2, 4, 8):
        for k in range(NBLK):
            a(f"v_max_u32_dpp v{48+k}, v{48+k}, v{48+k} row_shr:{sh} row_mask:0xf bank_mask:0xf bound_ctrl:0")
    for k in range(NBLK):
        a(f"v_max_u32_dpp v{48+k}, v{48+k}, v{48+k} row_bcast:15 row_mask:0xa bank_mask:0xf")
    for k in range(NBLK):
        a(f"v_max_u32_dpp v{48+k}, v{48+k}, v{48+k} row_bcast:31 row_mask:0xc bank_mask:0xf")
    for k in range(NBLK - 1):
        a(f"v_readlane_b32 s{44+k}, v{48+k}, 63")
    for k in range(1, NBLK - 1):
        a(f"s_max_u32 s{44+k}, s{44+k}, s{43+k}")
    for k in range(1, NBLK):
        a(f"v_max_u32 v{48+k}, s{43+k}, v{48+k}")
    for k in range(NBLK):
        if k:
            a(f"s_add_u32 s76, s76, 1024")
        a(f"v_add3_u32 v{48+k}, v{48+k}, v{vLane16}, s76")
        a(f"v_and_b32 v{48+k}, s79, v{48+k}")
        a(f"ds_bpermute_b32 v{48+k}, v{vPerm}, v{48+k}")
    for k in range(NBLK):
        a(f"s_waitcnt lgkmcnt({NBLK-1-k})")
        a(f"buffer_load_dwordx4 v[{REC+4*k}:{REC+4*k+3}], v{48+k}, s[28:31], 0 offen{rp}")
    if p["no_gather"]:
        a("s_mov_b32 s26, 0")
    a(f"s_add_u32 s75, s75, 15")
    a(f"s_lshr_b32 s75, s75, 4")

    def issue(u):
        kb, kk = divmod(u, 4)
        slot = RING + 4 * (u % NRING)
        for h in range(2):
            a(f"v_add_u32_dpp v{vGA+h}, v{REC+4*kb+2*h}, v{vCoff} quad_perm:[{kk},{kk},{kk},{kk}] row_mask:0xf bank_mask:0xf")
            if p["no_load"]:
                continue
            if p["gl"]:
                a(f"global_load_dwordx2 v[{slot+2*h}:{slot+2*h+1}], v{vGA+h}, s[4:5]")
            else:
                a(f"buffer_load_dwordx2 v[{slot+2*h}:{slot+2*h+1}], v{vGA+h}, s[24:27], 0 offen")

    def process(u):
        kb, kk = divmod(u, 4)
        slot = RING + 4 * (u % NRING)
        younger = 2 * (min(u + DEPTH, NU - 1) - u)
        qp = f"quad_perm:[{kk},{kk},{kk},{kk}] row_mask:0xf bank_mask:0xf"
        if kk == 0:
            for h in range(2):
                a(f"v_lshlrev_b32_sdwa v{vLa+h}, 7, v{REC+4*kb+2*h+1} dst_sel:DWORD dst_unused:UNUSED_PAD src0_sel:DWORD src1_sel:WORD_0")
        for h in range(2):
            d0, d1 = slot + 2 * h, slot + 2 * h + 1
            a(f"v_and_b32_dpp v{vC}, v{REC+4*kb+2*h+1}, v{vMask} {qp}")
            a(f"v_xor_b32_dpp v{vL}, v{vLa+h}, v{vLoff} {qp}")
            a(f"s_waitcnt vmcnt({0 if p['no_load'] else younger + 1 - h})")
            if p["no_valu"]:
                continue
            for j in range(4):
                a(f"v_perm_b32 v{vX+j}, v{d1}, v{d0}, v{vSel+j}")
            for j in range(1, 4):
                a(f"v_xor_b32 v{vL+j}, {8*j}, v{vL}")
            for j in range(4):
                a(f"v_mul_f32 v{vX+j}, v{vC}, v{vX+j}")
            for j in range(4):
                a(f"v_cvt_f64_f32 v[{vD+2*j}:{vD+2*j+1}], v{vX+j}")
                if not p["no_ds"]:
                    a(f"ds_add_f64 v{vL+j}, v[{vD+2*j}:{vD+2*j+1}]")

    a(f"s_waitcnt vmcnt({NBLK-1})")
    ts.mark()
    for u in range(DEPTH):
        if u == 4:
            a(f"s_waitcnt vmcnt({NBLK-2+8})")
        issue(u)
    for u in range(NU):
        if u + DEPTH < NU:
            if u == 0 and DEPTH == 4:
                a(f"s_waitcnt vmcnt({NBLK-2+2*DEPTH})")
            issue(u + DEPTH)
        process(u)
        if u < NU - 1:
            a(f"s_cmp_le_u32 s75, {u+1}")
            a(f"s_cbranch_scc1 K2_DONE")
    a(f"""
    v_mov_b32 v44, 0
    v_mov_b32 v45, 0
    v_mov_b32 v46, 0
    v_mov_b32 v47, 0
    v_lshl_add_u32 v43, v1, 3, s69
    s_add_u32 s74, s74, {64 * NBLK}
    ds_write_b128 v{vMkW}, v[44:47]
    ds_write_b64 v43, v[44:45] offset:1024
    s_branch K2_ROUND
    """)
    a("K2_DONE:")
    a("s_waitcnt vmcnt(0)")
    ts.mark()
    vS, vR = 8, 20
    for i in range(6):
        a(f"v_lshl_or_b32 v{vWd+i}, v{vHi+i}, 16, v{vWd+i}")
    a(f"""
    v_lshlrev_b32 v32, 16, v{vCen}
    v_and_b32 v33, v{vMask}, v{vCen}
    v_mov_b32 v35, 0
    v_mov_b32 v37, 0
    v_mov_b32 v34, v{vWs}
    v_mov_b32 v36, v{vWr}
    s_mov_b32 s44, 0xc1200000
    s_mov_b32 s45, 0x3fb8aa3b
    """)
    for t in range(3):
        a(f"v_mov_b32 v{41+4*t}, 0")
    def rnd(t):
        x0, x1 = 42 + 4 * t, 43 + 4 * t
        a(f"v_cvt_pk_bf16_f32 v{x0}, v{x0}, v{x1}")
        a(f"v_and_b32 v{x1}, v{vMask}, v{x0}")
        a(f"v_lshlrev_b32 v{x0}, 16, v{x0}")
    for t in range(3):
        x0, x1 = 42 + 4 * t, 43 + 4 * t
        a(f"v_lshlrev_b32 v{vDist+t}, 16, v{vDist+t}")
        a(f"v_sub_f32 v{x0}, v{vDist+t}, v32")
        a(f"v_sub_f32 v{x1}, v{vDist+t}, v33")
        rnd(t)
        a(f"v_mul_f32 v{x0}, v{x0}, v{x0}")
        a(f"v_mul_f32 v{x1}, v{x1}, v{x1}")
        rnd(t)
        a(f"v_mul_f32 v{x0}, s44, v{x0}")
        a(f"v_mul_f32 v{x1}, s44, v{x1}")
        rnd(t)
        a(f"v_mul_f32 v{x0}, s45, v{x0}")
        a(f"v_mul_f32 v{x1}, s45, v{x1}")
        a(f"v_exp_f32 v{x0}, v{x0}")
        a(f"v_exp_f32 v{x1}, v{x1}")
        a(f"v_cvt_pk_bf16_f32 v{40+4*t}, v{x0}, v{x1}")
    for t in range(3):
        a(f"v_mfma_f32_16x16x16_bf16 v[{vS+4*t}:{vS+4*t+3}], v[34:35], v[{40+4*t}:{41+4*t}], 0")
        a(f"v_mfma_f32_16x16x16_bf16 v[{vR+4*t}:{vR+4*t+3}], v[36:37], v[{40+4*t}:{41+4*t}], 0")
    a(f"""
    v_mov_b32 v32, v{vWd}
    v_mov_b32 v33, v{vWd+1}
    v_mov_b32 v34, v{vWd}
    v_mov_b32 v35, v{vWd+1}
    v_mov_b32 v36, v{vWu}
    v_mov_b32 v37, v{vWu+1}
    v_mov_b32 v38, v{vWu}
    v_mov_b32 v39, v{vWu+1}
    v_and_b32 v64, 15, v1
    v_lshrrev_b32 v65, 4, v1
    v_lshlrev_b32 v64, 7, v64
    s_lshl_b32 s46, s3, 11
    v_lshl_add_u32 v64, v65, 5, v64
    v_add_u32 v64, s46, v64
    v_add_u32 v65, 0x10000, v64
    """)
    for t in range(3):
        for i in (0, 2):
            a(f"v_cvt_pk_bf16_f32 v66, v{vR+4*t+i}, v{vR+4*t+i+1}")
            a(f"v_and_b32 v{vR+4*t+i+1}, v{vMask}, v66")
            a(f"v_lshlrev_b32 v{vR+4*t+i}, 16, v66")
    a("s_waitcnt lgkmcnt(0)")
    a("s_barrier")
    ts.mark()
    vA = 40
    for t in range(3):
        base, off = (64, 32768 * t) if t < 2 else (65, 0)
        a(f"ds_read_b128 v[{vA+8*t}:{vA+8*t+3}], v{base} offset:{off}")
        a(f"ds_read_b128 v[{vA+8*t+4}:{vA+8*t+7}], v{base} offset:{off+16}")

    def split(t, f, b):
        a(f"v_cvt_pk_bf16_f32 v{b}, v{f}, v{f+1}")
        a(f"v_cvt_pk_bf16_f32 v{b+1}, v{f+2}, v{f+3}")
        a(f"v_lshlrev_b32 v{b+2}, 16, v{b}")
        a(f"v_and_b32 v{b+3}, v{vMask}, v{b}")
        a(f"v_sub_f32 v{f}, v{f}, v{b+2}")
        a(f"v_sub_f32 v{f+1}, v{f+1}, v{b+3}")
        a(f"v_lshlrev_b32 v{b+2}, 16, v{b+1}")
        a(f"v_and_b32 v{b+3}, v{vMask}, v{b+1}")
        a(f"v_sub_f32 v{f+2}, v{f+2}, v{b+2}")
        a(f"v_sub_f32 v{f+3}, v{f+3}, v{b+3}")
        a(f"v_cvt_pk_bf16_f32 v{b+2}, v{f}, v{f+1}")
        a(f"v_cvt_pk_bf16_f32 v{b+3}, v{f+2}, v{f+3}")

    vF, vB = 68, 80
    def fb(t):
        return (68 + 4 * t, [80, 84, 108][t])
    for t in range(3):
        f, b = fb(t)
        a(f"s_waitcnt lgkmcnt({4 - 2 * t})")
        for i in range(4):
            a(f"v_cvt_f32_f64 v{f+i}, v[{vA+8*t+2*i}:{vA+8*t+2*i+1}]")
        split(t, f, b)
        a(f"v_mfma_f32_16x16x32_bf16 v[{vA+8*t}:{vA+8*t+3}], v[32:35], v[{b}:{b+3}], 0")
    for t in range(3):
        f, b = fb(t)
        for i in range(4):
            a(f"v_mul_f32 v{f+i}, v{vA+8*t+i}, v{vS+4*t+i}")
        split(t, f, b)
        a(f"v_mfma_f32_16x16x32_bf16 v[{vA+8*t+4}:{vA+8*t+7}], v[36:39], v[{b}:{b+3}], 0")
    for t in range(3):
        f, b = fb(t)
        a(f"v_lshlrev_b32 v{f}, 16, v{vM+2*t}")
        a(f"v_and_b32 v{f+1}, v{vMask}, v{vM+2*t}")
        a(f"v_lshlrev_b32 v{f+2}, 16, v{vM+2*t+1}")
        a(f"v_and_b32 v{f+3}, v{vMask}, v{vM+2*t+1}")
        for i in range(4):
            a(f"v_fmac_f32 v{f+i}, v{vA+8*t+4+i}, v{vR+4*t+i}")
        a(f"v_cvt_pk_bf16_f32 v{b}, v{f}, v{f+1}")
        a(f"v_cvt_pk_bf16_f32 v{b+1}, v{f+2}, v{f+3}")
        a(f"buffer_store_dwordx2 v[{b}:{b+1}], v{vEo+t}, s[40:43], 0 offen")
    if p["ts"]:
        a("s_waitcnt vmcnt(0)")
        ts.mark()
        ts.flush(22, 3)
    a("K2_END:")
    a("s_endpgm")


def build(p):
    a = Asm()
    k1(a, p)
    a.hist = []
    k2(a, p)
    sg = 100 if p["ts"] else 80
    extra = ""
    if p["dummy"]:
        a.raw(".globl nop_kernel\n.p2align 8\n.type nop_kernel,@function\nnop_kernel:\n    s_endpgm")
        extra = ".p2align 6\n" + kd("nop_kernel", 8, 16)
    return header(p) + a.text() + '.section .rodata,"a"\n.p2align 6\n' + kd("bin_kernel", 104, sg) + ".p2align 6\n" + kd("acc_kernel", 120, sg) + extra


if __name__ == "__main__":
    ap = argparse.ArgumentParser()
    ap.add_argument("-o", default="standalone__molecular_angular_gemnet__graph.s")
    ap.add_argument("kv", nargs="*")
    args = ap.parse_args()
    p = dict(P)
    for kv in args.kv:
        k, v = kv.split("=")
        p[k] = type(P[k])(v.replace("+", " ")) if not isinstance(P[k], int) else int(v, 0)
    open(args.o, "w").write(build(p))
```

```python
from emit import Asm

def diag_kernel(spec, mult, nwg=256):
    kA, iA, rA, kB, iB, rB = spec
    a = Asm()
    a.raw(".globl diag_kernel\n.p2align 8\n.type diag_kernel,@function\ndiag_kernel:")
    a(f"""
    s_cmp_lg_u32 s2, 0
    s_cbranch_scc1 DG_END
    s_load_dwordx2 s[4:5], s[0:1], 104
    v_lshlrev_b32 v1, 6, v0
    v_mov_b32 v10, 0
    v_mov_b32 v11, -1
    v_mov_b32 v12, 0
    v_mov_b32 v13, 0
    v_mov_b32 v14, 0
    ds_write_b128 v10, v[{12 if False else 12}:15]
    s_waitcnt lgkmcnt(0)
    s_add_u32 s4, s4, {200 << 20}
    s_addc_u32 s5, s5, 0
    v_add_u32 v2, {kA * 16384 + iA * 8}, v1
    v_add_u32 v3, {kB * 16384 + iB * 8}, v1
    global_load_dword v4, v2, s[4:5]
    global_load_dword v5, v3, s[4:5]
    s_load_dword s6, s[4:5], 0
    s_waitcnt vmcnt(0) lgkmcnt(0)
    s_sub_u32 s6, s6, 100000
    v_subrev_u32 v4, s6, v4
    v_subrev_u32 v5, s6, v5
    v_mov_b32 v20, {-1 if rA == 'min' else 0}
    v_mov_b32 v21, {-1 if rB == 'min' else 0}
    ds_write_b64 v10, v[20:21]
    s_waitcnt lgkmcnt(0)
    s_barrier
    ds_{dict(min='min_u32', max='max_u32', avg='add_u32')[rA]} v10, v4
    ds_{dict(min='min_u32', max='max_u32', avg='add_u32')[rB]} v10, v5 offset:4
    s_waitcnt lgkmcnt(0)
    s_barrier
    ds_read_b64 v[20:21], v10
    s_waitcnt lgkmcnt(0)
    v_readfirstlane_b32 s8, v20
    v_readfirstlane_b32 s9, v21
    s_nop 4
    """)
    if rA != "avg":
        a("s_lshl_b32 s8, s8, 8")
    if rB != "avg":
        a("s_lshl_b32 s9, s9, 8")
    a(f"""
    s_sub_u32 s8, s9, s8
    s_mul_i32 s8, s8, {mult}
    s_lshr_b32 s8, s8, 8
    s_min_u32 s8, s8, 100000
    s_memrealtime s[10:11]
    s_waitcnt lgkmcnt(0)
    s_add_u32 s8, s8, s10
    DG_SPIN:
    s_memrealtime s[10:11]
    s_waitcnt lgkmcnt(0)
    s_sub_u32 s12, s10, s8
    s_cmp_lt_i32 s12, 0
    s_cbranch_scc1 DG_SPIN
    DG_END:
    s_endpgm
    """)
    return a.text()
```

```python
import sys, argparse
from emit import Asm

E, T = 160000, 2560000
NB, BS = 256, 625
NCH, CH = 256, 10000
HALF = 80000
CH_STRIDE = 84096
OFFROW = 2176
BIG = 1 << 26

P = dict(ws_rec=0, ld_pol="nt", st_pol="", rec_pol="", depth=4, ts=0, k1_pref=0, no_ds=0, no_gather=0, no_valu=0, half=80000, prio=0, no_load=0, gl=0, dummy=0, diag='', mult=10)


def header(p):
    ref = open("standalone__molecular_angular_gemnet__graph.s.ref").read().split("\n")
    out = [l for l in ref if l.startswith(";") and "@launch" not in l and "Override launch" not in l and "grid=ceil" not in l]
    out.append("; @launch kernel=bin_kernel grid=(256,1,1) block=(1024,1,1) lds=87296")
    out.append("; @launch kernel=acc_kernel grid=(256,1,1) block=(1024,1,1) lds=%d" % (81920 + 16 * 1536))
    for i in range(p["dummy"]):
        out.append("; @launch kernel=nop_kernel grid=(1,1,1) block=(64,1,1) lds=0")
    if p["diag"]:
        out.append("; @launch kernel=diag_kernel grid=(1,1,1) block=(256,1,1) lds=1024")
    out.append('.amdgcn_target "amdgcn-amd-amdhsa--gfx950"')
    out.append(".text")
    return "\n".join(out) + "\n"


def kd(name, vgpr, sgpr):
    return f""".amdhsa_kernel {name}
  .amdhsa_next_free_vgpr {vgpr}
  .amdhsa_next_free_sgpr {sgpr}
  .amdhsa_accum_offset {(vgpr + 3) // 4 * 4}
  .amdhsa_group_segment_fixed_size 0
  .amdhsa_kernarg_size 112
  .amdhsa_user_sgpr_count 2
  .amdhsa_user_sgpr_kernarg_segment_ptr 1
  .amdhsa_system_sgpr_workgroup_id_x 1
  .amdhsa_float_denorm_mode_32 3
.end_amdhsa_kernel
"""


def srd(a, d, lo, nbytes, add=None):
    if add is None:
        a(f"s_mov_b32 s{d}, s{lo}")
        a(f"s_and_b32 s{d+1}, s{lo+1}, 0xffff")
    else:
        a(f"s_add_u32 s{d}, s{lo}, {add}")
        a(f"s_addc_u32 s{d+1}, s{lo+1}, 0")
        a(f"s_and_b32 s{d+1}, s{d+1}, 0xffff")
    a(f"s_mov_b32 s{d+2}, {nbytes}")
    a(f"s_mov_b32 s{d+3}, 0x20000")


class Stamps:
    def __init__(self, a, p, kern):
        self.a, self.on, self.n, self.kern = a, p["ts"], 0, kern

    def mark(self):
        if self.on:
            op = "s_memtime" if self.on == 2 else "s_memrealtime"
            self.a(f"{op} s[{80 + 2 * self.n}:{81 + 2 * self.n}]")
            self.n += 1

    def flush(self, ws_lo, wave_sgpr):
        if not self.on:
            return
        a = self.a
        a("s_waitcnt lgkmcnt(0)")
        a(f"s_cmp_lg_u32 s{wave_sgpr}, 0")
        a(f"s_cbranch_scc1 TS_DONE_{self.kern}")
        a(f"s_lshl_b32 s96, s2, 6")
        a(f"s_add_u32 s96, s96, {(200 << 20) + self.kern * 16384}")
        a(f"s_add_u32 s98, s{ws_lo}, s96")
        a(f"s_addc_u32 s99, s{ws_lo+1}, 0")
        a("v_mov_b32 v2, 0")
        for i in range(self.n):
            a(f"v_mov_b32 v4, s{80 + 2 * i}")
            a(f"v_mov_b32 v5, s{81 + 2 * i}")
            a(f"global_store_dwordx2 v2, v[4:5], s[98:99] offset:{8 * i}")
        a(f"TS_DONE_{self.kern}:")


def scan_add(a, v):
    for sh in (1, 2, 4, 8):
        a(f"v_add_u32_dpp v{v}, v{v}, v{v} row_shr:{sh} row_mask:0xf bank_mask:0xf bound_ctrl:0")
    a(f"v_add_u32_dpp v{v}, v{v}, v{v} row_bcast:15 row_mask:0xa bank_mask:0xf")
    a(f"v_add_u32_dpp v{v}, v{v}, v{v} row_bcast:31 row_mask:0xc bank_mask:0xf")


def k1(a, p):
    STAGE = 2080
    ld = (" " + p["ld_pol"]) if p["ld_pol"] else ""
    st = (" " + p["st_pol"]) if p["st_pol"] else ""
    ts = Stamps(a, p, 0)
    a.raw(".globl bin_kernel\n.p2align 8\n.type bin_kernel,@function\nbin_kernel:")
    a(f"""
    s_cmp_ge_u32 s2, {NCH}
    s_cbranch_scc1 K1_END
    s_load_dwordx4 s[4:7], s[0:1], 8
    s_load_dwordx2 s[8:9], s[0:1], 32
    s_load_dwordx2 s[10:11], s[0:1], 48
    s_load_dwordx2 s[12:13], s[0:1], 104
    """)
    ts.mark()
    a(f"""
    v_lshlrev_b32 v1, 3, v0
    v_lshlrev_b32 v2, 2, v0
    v_lshrrev_b32 v70, 6, v0
    s_mul_i32 s40, s2, {CH * 4}
    s_mul_i32 s45, s2, {CH * 2}
    v_cmp_gt_u32 vcc, 1000, v0
    v_readfirstlane_b32 s3, v70
    """)
    for j in range(1, 5):
        a(f"s_add_u32 s{40+j}, s40, {8000*j}")
        a(f"s_add_u32 s{45+j}, s45, {4000*j}")
    a("s_mov_b64 s[50:51], vcc")
    a("s_waitcnt lgkmcnt(0)")
    srd(a, 16, 4, T * 4)
    srd(a, 20, 6, T * 4)
    srd(a, 24, 8, T * 2)
    a("s_load_dword s14, s[10:11], 0")
    a("s_mov_b64 exec, s[50:51]")
    for j in range(5):
        a(f"buffer_load_dwordx2 v[{4+2*j}:{5+2*j}], v1, s[20:23], s{40+j} offen{ld}")
        a(f"buffer_load_dwordx2 v[{14+2*j}:{15+2*j}], v1, s[16:19], s{40+j} offen{ld}")
        a(f"buffer_load_dword v{24+j}, v2, s[24:27], s{45+j} offen{ld}")
    a("s_mov_b64 exec, -1")
    a(f"""
    v_mov_b32 v90, 0
    v_mov_b32 v91, 0
    v_mov_b32 v92, 0
    v_mov_b32 v93, 0
    v_lshlrev_b32 v94, 4, v0
    v_add_u32 v95, 0x10000, v94
    v_mov_b32 v3, 8
    v_cmp_gt_u32 vcc, 320, v0
    ds_write_b128 v94, v[90:93]
    ds_write_b128 v94, v[90:93] offset:16384
    ds_write_b128 v94, v[90:93] offset:32768
    ds_write_b128 v94, v[90:93] offset:49152
    ds_write_b128 v95, v[90:93]
    s_mov_b64 exec, vcc
    ds_write_b128 v95, v[90:93] offset:16384
    s_mov_b64 exec, -1
    s_mul_i32 s56, s2, {CH_STRIDE}
    s_mul_i32 s57, s2, {OFFROW}
    s_add_u32 s58, s56, {p['ws_rec']}
    s_mov_b32 s60, 6871948
    s_mov_b32 s61, {p['half']}
    s_mov_b32 s62, {-BS}
    s_mov_b32 s63, 0xffff0000
    """)
    srd(a, 28, 12, 0, add="s58")
    srd(a, 32, 12, NCH * OFFROW, add=str(p["ws_rec"] + NCH * CH_STRIDE))
    a("s_waitcnt lgkmcnt(0)")
    a("s_lshl_b32 s14, s14, 16")
    a("s_barrier")
    a("s_mov_b64 exec, s[50:51]")
    for j in range(5):
        o0, o1, i0, i1, an = 4 + 2 * j, 5 + 2 * j, 14 + 2 * j, 15 + 2 * j, 24 + j
        k0, k1_, r0, r1 = 30 + 2 * j, 31 + 2 * j, 40 + 2 * j, 41 + 2 * j
        ra, rb = 50 + 4 * j, 52 + 4 * j
        q0, q1, x0, x1, l0, l1 = 70, 71, 72, 73, 74, 75
        a(f"""
        s_waitcnt vmcnt({15 - 3 * j - 2})
        v_mul_hi_u32_u24 v{q0}, s60, v{o0}
        v_mul_hi_u32_u24 v{q1}, s60, v{o1}
        v_cmp_le_u32 vcc, s61, v{i0}
        v_cmp_le_u32 s[52:53], s61, v{i1}
        v_mad_i32_i24 v{l0}, v{q0}, s62, v{o0}
        v_mad_i32_i24 v{l1}, v{q1}, s62, v{o1}
        v_addc_co_u32 v{k0}, vcc, v{q0}, v{q0}, vcc
        v_addc_co_u32 v{k1_}, s[52:53], v{q1}, v{q1}, s[52:53]
        v_lshlrev_b32 v{k0}, 2, v{k0}
        v_lshlrev_b32 v{k1_}, 2, v{k1_}
        ds_add_rtn_u32 v{r0}, v{k0}, v3
        ds_add_rtn_u32 v{r1}, v{k1_}, v3
        v_lshl_add_u32 v{ra}, v{i0}, 5, 32
        v_lshl_add_u32 v{rb}, v{i1}, 5, 32
        s_waitcnt vmcnt({15 - 3 * j - 3})
        v_lshlrev_b32 v{x0}, 16, v{an}
        v_and_b32 v{x1}, s63, v{an}
        v_mul_f32 v{x0}, s14, v{x0}
        v_mul_f32 v{x1}, s14, v{x1}
        v_cvt_pk_bf16_f32 v{x0}, v{x0}, v{x1}
        v_and_b32 v{x1}, s63, v{x0}
        v_lshlrev_b32 v{x0}, 16, v{x0}
        v_mul_f32 v{x1}, 0.15915494, v{x1}
        v_mul_f32 v{x0}, 0.15915494, v{x0}
        v_fract_f32 v{x1}, v{x1}
        v_fract_f32 v{x0}, v{x0}
        v_cos_f32 v{x1}, v{x1}
        v_cos_f32 v{x0}, v{x0}
        v_cvt_pk_bf16_f32 v{x0}, v{x0}, v{x1}
        v_lshl_or_b32 v{ra+1}, v{x0}, 16, v{l0}
        v_and_or_b32 v{rb+1}, v{x0}, s63, v{l1}
        """)
    a("s_mov_b64 exec, -1")
    a("s_waitcnt lgkmcnt(0)")
    ts.mark()
    a("s_barrier")
    a("s_cmp_lg_u32 s3, 0")
    a("s_cbranch_scc1 K1_SCANNED")
    a("""
    v_lshlrev_b32 v70, 5, v0
    ds_read_b128 v[72:75], v70
    ds_read_b128 v[76:79], v70 offset:16
    s_waitcnt lgkmcnt(0)
    """)
    for i in range(8):
        a(f"v_add_u32 v{72+i}, 8, v{72+i}")
    for i in range(8):
        a(f"v_and_b32 v{72+i}, -16, v{72+i}")
    for i in range(1, 8):
        a(f"v_add_u32 v{72+i}, v{71+i}, v{72+i}")
    a("v_mov_b32 v71, v79")
    scan_add(a, 71)
    a(f"v_sub_u32 v80, v71, v79")
    a(f"v_readlane_b32 s54, v71, 63")
    a(f"v_add_u32 v80, {STAGE}, v80")
    for i in range(1, 8):
        a(f"v_add_u32 v{80+i}, v80, v{71+i}")
    a(f"""
    ds_write_b128 v70, v[80:83]
    ds_write_b128 v70, v[84:87] offset:16
    v_mov_b32 v71, s54
    v_mov_b32 v88, 2048
    s_sub_u32 s55, s56, {STAGE}
    ds_write_b32 v88, v71
    """)
    for i in range(8):
        a(f"v_add_u32 v{72+i}, s55, v{80+i}")
    a(f"""
    v_add_u32 v71, s56, v71
    buffer_store_dwordx4 v[72:75], v70, s[32:35], s57 offen{st}
    buffer_store_dwordx4 v[76:79], v70, s[32:35], s57 offen offset:16{st}
    s_mov_b64 exec, 1
    buffer_store_dword v71, v88, s[32:35], s57 offen{st}
    s_mov_b64 exec, -1
    s_waitcnt lgkmcnt(0)
    """)
    a("K1_SCANNED:")
    a("s_barrier")
    ts.mark()
    a("v_mov_b32 v88, 2048")
    a("ds_read_b32 v89, v88")
    a("s_mov_b64 exec, s[50:51]")
    for i in range(10):
        a(f"ds_read_b32 v{70+i}, v{30+i}")
    for i in range(10):
        a("s_waitcnt lgkmcnt(9)")
        a(f"v_add_u32 v{70+i}, v{70+i}, v{40+i}")
        a(f"ds_write_b64 v{70+i}, v[{50+2*i}:{51+2*i}]")
    a("s_mov_b64 exec, -1")
    a("v_readfirstlane_b32 s30, v89")
    a("s_waitcnt lgkmcnt(0)")
    a("s_barrier")
    ts.mark()
    a(f"v_add_u32 v96, {STAGE}, v94")
    a(f"v_add_u32 v97, {STAGE}, v95")
    for i in range(5):
        base, off = (96, 16384 * i) if i < 4 else (97, 16384 * (i - 4))
        a(f"ds_read_b128 v[{4+4*i}:{7+4*i}], v{base} offset:{off}")
    a("s_cmp_lt_u32 s3, 3")
    a("s_cbranch_scc0 K1_NO6")
    a(f"ds_read_b128 v[24:27], v97 offset:16384")
    a(f"v_add_u32 v75, {5*16384}, v94")
    a("s_waitcnt lgkmcnt(0)")
    a(f"buffer_store_dwordx4 v[24:27], v75, s[28:31], 0 offen{st}")
    a("K1_NO6:")
    for i in range(1, 5):
        a(f"v_add_u32 v{70+i}, {i*16384}, v94")
    for i in range(5):
        a(f"s_waitcnt lgkmcnt({4 - i})")
        a(f"buffer_store_dwordx4 v[{4+4*i}:{7+4*i}], v{94 if i == 0 else 70+i}, s[28:31], 0 offen{st}")
    if p["ts"]:
        a("s_waitcnt vmcnt(0)")
        ts.mark()
        ts.flush(12, 3)
    a("K1_END:")
    a("s_endpgm")


def k2(a, p):
    DEPTH = p["depth"]
    NBLK, NU = 6, 24
    MK = 81920
    rp = (" " + p["rec_pol"]) if p["rec_pol"] else ""
    ts = Stamps(a, p, 1)
    vCoff, vLoff, vSel, vMask = 2, 3, 4, 107
    REC = 8
    RING = 32
    NRING = DEPTH + 1
    vLa, vLb = 64, 65
    vGA = 68
    vC, vL, vX, vD = 70, 71, 75, 80
    vM, vDist, vWd, vWu, vWs, vWr, vCen, vEo = 88, 94, 97, 99, 101, 102, 103, 104
    vG, vDD, vMkW, vMkR, vLane16, vPerm = 108, 109, 110, 111, 112, 113
    vHi = 114
    a.raw(".globl acc_kernel\n.p2align 8\n.type acc_kernel,@function\nacc_kernel:")
    a(f"""
    s_cmp_ge_u32 s2, {NB}
    s_cbranch_scc1 K2_END
    s_load_dwordx2 s[22:23], s[0:1], 104
    s_load_dwordx2 s[4:5], s[0:1], 0
    s_load_dwordx2 s[6:7], s[0:1], 24
    s_load_dwordx2 s[8:9], s[0:1], 40
    s_load_dwordx4 s[12:15], s[0:1], 56
    s_load_dwordx4 s[16:19], s[0:1], 72
    s_load_dwordx2 s[20:21], s[0:1], 88
    """)
    ts.mark()
    a(f"""
    v_and_b32 v1, 63, v0
    v_lshrrev_b32 v32, 6, v0
    s_and_b32 s64, s2, 7
    s_lshl_b32 s64, s64, 5
    v_readfirstlane_b32 s3, v32
    s_lshr_b32 s65, s2, 3
    s_or_b32 s64, s64, s65
    v_and_b32 v36, 15, v1
    v_lshrrev_b32 v37, 4, v1
    v_mul_u32_u24 v33, {OFFROW}, v36
    s_mul_i32 s65, s3, {16 * OFFROW}
    s_lshl_b32 s66, s64, 3
    v_lshl_add_u32 v33, v37, 2, v33
    s_add_u32 s65, s65, s66
    v_mov_b32 v34, 0
    v_mov_b32 v35, 0
    s_waitcnt lgkmcnt(0)
    """)
    srd(a, 32, 22, NCH * OFFROW, add=str(p["ws_rec"] + NCH * CH_STRIDE))
    a(f"""
    s_mov_b32 exec_hi, 0
    buffer_load_dwordx2 v[34:35], v33, s[32:35], s65 offen{rp}
    s_mov_b32 exec_hi, -1
    """)
    srd(a, 24, 4, E * 32)
    srd(a, 36, 6, E * 2)
    srd(a, 40, 20, E * 32)
    srd(a, 28, 22, NCH * CH_STRIDE, add=str(p["ws_rec"]))
    a(f"""
    s_mul_i32 s67, s64, {BS}
    s_lshl_b32 s68, s3, 4
    v_add_u32 v38, s68, v36
    v_lshlrev_b32 v39, 3, v37
    v_mov_b32 v42, 0x80000000
    """)
    for t in range(3):
        a(f"""
        v_add_u32 v40, {256 * t}, v38
        v_cmp_gt_u32 vcc, {BS}, v40
        v_add_u32 v40, s67, v40
        v_lshl_add_u32 v41, v40, 5, v39
        v_lshlrev_b32 v40, 1, v40
        v_cndmask_b32 v{vEo+t}, v42, v41, vcc
        v_cndmask_b32 v40, v42, v40, vcc
        buffer_load_dwordx2 v[{vM+2*t}:{vM+2*t+1}], v{vEo+t}, s[24:27], 0 offen
        buffer_load_ushort v{vDist+t}, v40, s[36:39], 0 offen
        """)
    a(f"""
    v_lshlrev_b32 v40, 1, v36
    v_lshl_add_u32 v41, v37, 7, v40
    v_lshl_add_u32 v40, v37, 6, v40
    v_lshlrev_b32 v42, 2, v37
    global_load_ushort v{vWd}, v41, s[16:17]
    global_load_ushort v{vHi}, v41, s[16:17] offset:32
    global_load_ushort v{vWd+1}, v41, s[16:17] offset:64
    global_load_ushort v{vHi+1}, v41, s[16:17] offset:96
    global_load_ushort v{vWu}, v41, s[18:19]
    global_load_ushort v{vHi+2}, v41, s[18:19] offset:32
    global_load_ushort v{vWu+1}, v41, s[18:19] offset:64
    global_load_ushort v{vHi+3}, v41, s[18:19] offset:96
    global_load_ushort v{vWs}, v40, s[14:15]
    global_load_ushort v{vHi+4}, v40, s[14:15] offset:32
    global_load_ushort v{vWr}, v40, s[12:13]
    global_load_ushort v{vHi+5}, v40, s[12:13] offset:32
    global_load_dword v{vCen}, v42, s[8:9]
    """)
    NPRE = 6 + 13
    a(f"""
    v_mov_b32 v44, 0
    v_mov_b32 v45, 0
    v_mov_b32 v46, 0
    v_mov_b32 v47, 0
    v_lshlrev_b32 v40, 4, v0
    v_add_u32 v41, 0x10000, v40
    s_mul_i32 s69, s3, 1536
    s_add_u32 s69, s69, {MK}
    v_lshlrev_b32 v{vLane16}, 4, v1
    v_lshl_add_u32 v{vMkR}, v1, 2, s69
    v_add_u32 v{vMkW}, s69, v{vLane16}
    ds_write_b128 v40, v[44:47]
    ds_write_b128 v40, v[44:47] offset:16384
    ds_write_b128 v40, v[44:47] offset:32768
    ds_write_b128 v40, v[44:47] offset:49152
    ds_write_b128 v41, v[44:47]
    ds_write_b128 v{vMkW}, v[44:47]
    v_lshl_add_u32 v43, v1, 3, s69
    ds_write_b64 v43, v[44:45] offset:1024
    """)
    a(f"""
    v_and_b32 v40, 3, v1
    v_bfe_u32 v41, v1, 2, 2
    v_lshlrev_b32 v{vCoff}, 3, v40
    v_lshlrev_b32 v{vLoff}, 5, v40
    v_subrev_u32 v{vCoff}, {0 if p['gl'] else 32}, v{vCoff}
    v_lshl_add_u32 v{vLoff}, v41, 3, v{vLoff}
    v_mov_b32 v{vMask}, 0xffff0000
    s_mov_b32 s70, 0x02020000
    s_mov_b32 s71, 0x01000c0c
    v_lshrrev_b32 v42, 2, v1
    v_lshlrev_b32 v42, 2, v42
    v_lshl_add_u32 v{vPerm}, v40, 6, v42
    """)
    for j in range(4):
        a(f"v_xor_b32 v42, {j}, v41")
        a(f"v_mul_lo_u32 v42, v42, s70")
        a(f"v_add_u32 v{vSel+j}, s71, v42")
    a("s_waitcnt lgkmcnt(0)")
    a("s_barrier")
    a(f"s_waitcnt vmcnt({NPRE})")
    ts.mark()
    a(f"""
    v_sub_u32 v35, v35, v34
    v_lshlrev_b32 v40, 26, v37
    v_mov_b32 v41, v35
    """)
    scan_add(a, 41)
    a(f"""
    s_mov_b32 s72, 0x80000000
    v_readlane_b32 s73, v41, 63
    v_sub_u32 v41, v41, v35
    v_sub_u32 v{vDD}, v34, v41
    v_lshrrev_b32 v{vG}, 4, v41
    v_add_u32 v{vDD}, v{vDD}, v40
    s_lshr_b32 s73, s73, 4
    v_writelane_b32 v{vDD}, s72, 32
    s_mov_b32 s74, 0
    s_mov_b32 s79, 0x83ffffff
    """)
    a("K2_ROUND:")
    a(f"""
    s_sub_u32 s75, s73, s74
    s_cmp_le_i32 s75, 0
    s_cbranch_scc1 K2_DONE
    v_subrev_u32 v40, s74, v{vG}
    v_max_i32 v40, 0, v40
    s_lshl_b32 s76, s74, 4
    v_cmp_gt_u32 vcc, {64 * NBLK}, v40
    v_lshl_add_u32 v40, v40, 2, s69
    s_mov_b32 exec_lo, vcc_lo
    s_and_b32 exec_hi, vcc_hi, 1
    ds_max_u32 v40, v{vDD}
    s_mov_b64 exec, -1
    """)
    for k in range(NBLK):
        a(f"ds_read_b32 v{48+k}, v{vMkR} offset:{256*k}")
    a("s_waitcnt lgkmcnt(0)")
    for sh in (1, 2, 4, 8):
        for k in range(NBLK):
            a(f"v_max_u32_dpp v{48+k}, v{48+k}, v{48+k} row_shr:{sh} row_mask:0xf bank_mask:0xf bound_ctrl:0")
    for k in range(NBLK):
        a(f"v_max_u32_dpp v{48+k}, v{48+k}, v{48+k} row_bcast:15 row_mask:0xa bank_mask:0xf")
    for k in range(NBLK):
        a(f"v_max_u32_dpp v{48+k}, v{48+k}, v{48+k} row_bcast:31 row_mask:0xc bank_mask:0xf")
    for k in range(NBLK - 1):
        a(f"v_readlane_b32 s{44+k}, v{48+k}, 63")
    for k in range(1, NBLK - 1):
        a(f"s_max_u32 s{44+k}, s{44+k}, s{43+k}")
    for k in range(1, NBLK):
        a(f"v_max_u32 v{48+k}, s{43+k}, v{48+k}")
    for k in range(NBLK):
        if k:
            a(f"s_add_u32 s76, s76, 1024")
        a(f"v_add3_u32 v{48+k}, v{48+k}, v{vLane16}, s76")
        a(f"v_and_b32 v{48+k}, s79, v{48+k}")
        a(f"ds_bpermute_b32 v{48+k}, v{vPerm}, v{48+k}")
    for k in range(NBLK):
        a(f"s_waitcnt lgkmcnt({NBLK-1-k})")
        a(f"buffer_load_dwordx4 v[{REC+4*k}:{REC+4*k+3}], v{48+k}, s[28:31], 0 offen{rp}")
    if p["no_gather"]:
        a("s_mov_b32 s26, 0")
    a(f"s_add_u32 s75, s75, 15")
    a(f"s_lshr_b32 s75, s75, 4")

    def issue(u):
        kb, kk = divmod(u, 4)
        slot = RING + 4 * (u % NRING)
        for h in range(2):
            a(f"v_add_u32_dpp v{vGA+h}, v{REC+4*kb+2*h}, v{vCoff} quad_perm:[{kk},{kk},{kk},{kk}] row_mask:0xf bank_mask:0xf")
            if p["no_load"]:
                continue
            if p["gl"]:
                a(f"global_load_dwordx2 v[{slot+2*h}:{slot+2*h+1}], v{vGA+h}, s[4:5]")
            else:
                a(f"buffer_load_dwordx2 v[{slot+2*h}:{slot+2*h+1}], v{vGA+h}, s[24:27], 0 offen")

    def process(u):
        kb, kk = divmod(u, 4)
        slot = RING + 4 * (u % NRING)
        younger = 2 * (min(u + DEPTH, NU - 1) - u)
        qp = f"quad_perm:[{kk},{kk},{kk},{kk}] row_mask:0xf bank_mask:0xf"
        if kk == 0:
            for h in range(2):
                a(f"v_lshlrev_b32_sdwa v{vLa+h}, 7, v{REC+4*kb+2*h+1} dst_sel:DWORD dst_unused:UNUSED_PAD src0_sel:DWORD src1_sel:WORD_0")
        for h in range(2):
            d0, d1 = slot + 2 * h, slot + 2 * h + 1
            a(f"v_and_b32_dpp v{vC}, v{REC+4*kb+2*h+1}, v{vMask} {qp}")
            a(f"v_xor_b32_dpp v{vL}, v{vLa+h}, v{vLoff} {qp}")
            a(f"s_waitcnt vmcnt({0 if p['no_load'] else younger + 1 - h})")
            if p["no_valu"]:
                continue
            for j in range(4):
                a(f"v_perm_b32 v{vX+j}, v{d1}, v{d0}, v{vSel+j}")
            for j in range(1, 4):
                a(f"v_xor_b32 v{vL+j}, {8*j}, v{vL}")
            for j in range(4):
                a(f"v_mul_f32 v{vX+j}, v{vC}, v{vX+j}")
            for j in range(4):
                a(f"v_cvt_f64_f32 v[{vD+2*j}:{vD+2*j+1}], v{vX+j}")
                if not p["no_ds"]:
                    a(f"ds_add_f64 v{vL+j}, v[{vD+2*j}:{vD+2*j+1}]")

    a(f"s_waitcnt vmcnt({NBLK-1})")
    ts.mark()
    for u in range(DEPTH):
        if u == 4:
            a(f"s_waitcnt vmcnt({NBLK-2+8})")
        issue(u)
    for u in range(NU):
        if u + DEPTH < NU:
            if u == 0 and DEPTH == 4:
                a(f"s_waitcnt vmcnt({NBLK-2+2*DEPTH})")
            issue(u + DEPTH)
        process(u)
        if u < NU - 1:
            a(f"s_cmp_le_u32 s75, {u+1}")
            a(f"s_cbranch_scc1 K2_DONE")
    a(f"""
    v_mov_b32 v44, 0
    v_mov_b32 v45, 0
    v_mov_b32 v46, 0
    v_mov_b32 v47, 0
    v_lshl_add_u32 v43, v1, 3, s69
    s_add_u32 s74, s74, {64 * NBLK}
    ds_write_b128 v{vMkW}, v[44:47]
    ds_write_b64 v43, v[44:45] offset:1024
    s_branch K2_ROUND
    """)
    a("K2_DONE:")
    a("s_waitcnt vmcnt(0)")
    ts.mark()
    vS, vR = 8, 20
    for i in range(6):
        a(f"v_lshl_or_b32 v{vWd+i}, v{vHi+i}, 16, v{vWd+i}")
    a(f"""
    v_lshlrev_b32 v32, 16, v{vCen}
    v_and_b32 v33, v{vMask}, v{vCen}
    v_mov_b32 v35, 0
    v_mov_b32 v37, 0
    v_mov_b32 v34, v{vWs}
    v_mov_b32 v36, v{vWr}
    s_mov_b32 s44, 0xc1200000
    s_mov_b32 s45, 0x3fb8aa3b
    """)
    for t in range(3):
        a(f"v_mov_b32 v{41+4*t}, 0")
    def rnd(t):
        x0, x1 = 42 + 4 * t, 43 + 4 * t
        a(f"v_cvt_pk_bf16_f32 v{x0}, v{x0}, v{x1}")
        a(f"v_and_b32 v{x1}, v{vMask}, v{x0}")
        a(f"v_lshlrev_b32 v{x0}, 16, v{x0}")
    for t in range(3):
        x0, x1 = 42 + 4 * t, 43 + 4 * t
        a(f"v_lshlrev_b32 v{vDist+t}, 16, v{vDist+t}")
        a(f"v_sub_f32 v{x0}, v{vDist+t}, v32")
        a(f"v_sub_f32 v{x1}, v{vDist+t}, v33")
        rnd(t)
        a(f"v_mul_f32 v{x0}, v{x0}, v{x0}")
        a(f"v_mul_f32 v{x1}, v{x1}, v{x1}")
        rnd(t)
        a(f"v_mul_f32 v{x0}, s44, v{x0}")
        a(f"v_mul_f32 v{x1}, s44, v{x1}")
        rnd(t)
        a(f"v_mul_f32 v{x0}, s45, v{x0}")
        a(f"v_mul_f32 v{x1}, s45, v{x1}")
        a(f"v_exp_f32 v{x0}, v{x0}")
        a(f"v_exp_f32 v{x1}, v{x1}")
        a(f"v_cvt_pk_bf16_f32 v{40+4*t}, v{x0}, v{x1}")
    for t in range(3):
        a(f"v_mfma_f32_16x16x16_bf16 v[{vS+4*t}:{vS+4*t+3}], v[34:35], v[{40+4*t}:{41+4*t}], 0")
        a(f"v_mfma_f32_16x16x16_bf16 v[{vR+4*t}:{vR+4*t+3}], v[36:37], v[{40+4*t}:{41+4*t}], 0")
    a(f"""
    v_mov_b32 v32, v{vWd}
    v_mov_b32 v33, v{vWd+1}
    v_mov_b32 v34, v{vWd}
    v_mov_b32 v35, v{vWd+1}
    v_mov_b32 v36, v{vWu}
    v_mov_b32 v37, v{vWu+1}
    v_mov_b32 v38, v{vWu}
    v_mov_b32 v39, v{vWu+1}
    v_and_b32 v64, 15, v1
    v_lshrrev_b32 v65, 4, v1
    v_lshlrev_b32 v64, 7, v64
    s_lshl_b32 s46, s3, 11
    v_lshl_add_u32 v64, v65, 5, v64
    v_add_u32 v64, s46, v64
    v_add_u32 v65, 0x10000, v64
    """)
    for t in range(3):
        for i in (0, 2):
            a(f"v_cvt_pk_bf16_f32 v66, v{vR+4*t+i}, v{vR+4*t+i+1}")
            a(f"v_and_b32 v{vR+4*t+i+1}, v{vMask}, v66")
            a(f"v_lshlrev_b32 v{vR+4*t+i}, 16, v66")
    a("s_waitcnt lgkmcnt(0)")
    a("s_barrier")
    ts.mark()
    vA = 40
    for t in range(3):
        base, off = (64, 32768 * t) if t < 2 else (65, 0)
        a(f"ds_read_b128 v[{vA+8*t}:{vA+8*t+3}], v{base} offset:{off}")
        a(f"ds_read_b128 v[{vA+8*t+4}:{vA+8*t+7}], v{base} offset:{off+16}")

    def split(t, f, b):
        a(f"v_cvt_pk_bf16_f32 v{b}, v{f}, v{f+1}")
        a(f"v_cvt_pk_bf16_f32 v{b+1}, v{f+2}, v{f+3}")
        a(f"v_lshlrev_b32 v{b+2}, 16, v{b}")
        a(f"v_and_b32 v{b+3}, v{vMask}, v{b}")
        a(f"v_sub_f32 v{f}, v{f}, v{b+2}")
        a(f"v_sub_f32 v{f+1}, v{f+1}, v{b+3}")
        a(f"v_lshlrev_b32 v{b+2}, 16, v{b+1}")
        a(f"v_and_b32 v{b+3}, v{vMask}, v{b+1}")
        a(f"v_sub_f32 v{f+2}, v{f+2}, v{b+2}")
        a(f"v_sub_f32 v{f+3}, v{f+3}, v{b+3}")
        a(f"v_cvt_pk_bf16_f32 v{b+2}, v{f}, v{f+1}")
        a(f"v_cvt_pk_bf16_f32 v{b+3}, v{f+2}, v{f+3}")

    vF, vB = 68, 80
    def fb(t):
        return (68 + 4 * t, [80, 84, 108][t])
    for t in range(3):
        f, b = fb(t)
        a(f"s_waitcnt lgkmcnt({4 - 2 * t})")
        for i in range(4):
            a(f"v_cvt_f32_f64 v{f+i}, v[{vA+8*t+2*i}:{vA+8*t+2*i+1}]")
        split(t, f, b)
        a(f"v_mfma_f32_16x16x32_bf16 v[{vA+8*t}:{vA+8*t+3}], v[32:35], v[{b}:{b+3}], 0")
    for t in range(3):
        f, b = fb(t)
        for i in range(4):
            a(f"v_mul_f32 v{f+i}, v{vA+8*t+i}, v{vS+4*t+i}")
        split(t, f, b)
        a(f"v_mfma_f32_16x16x32_bf16 v[{vA+8*t+4}:{vA+8*t+7}], v[36:39], v[{b}:{b+3}], 0")
    for t in range(3):
        f, b = fb(t)
        a(f"v_lshlrev_b32 v{f}, 16, v{vM+2*t}")
        a(f"v_and_b32 v{f+1}, v{vMask}, v{vM+2*t}")
        a(f"v_lshlrev_b32 v{f+2}, 16, v{vM+2*t+1}")
        a(f"v_and_b32 v{f+3}, v{vMask}, v{vM+2*t+1}")
        for i in range(4):
            a(f"v_fmac_f32 v{f+i}, v{vA+8*t+4+i}, v{vR+4*t+i}")
        a(f"v_cvt_pk_bf16_f32 v{b}, v{f}, v{f+1}")
        a(f"v_cvt_pk_bf16_f32 v{b+1}, v{f+2}, v{f+3}")
        a(f"buffer_store_dwordx2 v[{b}:{b+1}], v{vEo+t}, s[40:43], 0 offen")
    if p["ts"]:
        a("s_waitcnt vmcnt(0)")
        ts.mark()
        ts.flush(22, 3)
    a("K2_END:")
    a("s_endpgm")


def build(p):
    a = Asm()
    k1(a, p)
    a.hist = []
    k2(a, p)
    sg = 100 if p["ts"] else 80
    extra = ""
    if p["dummy"]:
        a.raw(".globl nop_kernel\n.p2align 8\n.type nop_kernel,@function\nnop_kernel:\n    s_endpgm")
        extra = ".p2align 6\n" + kd("nop_kernel", 8, 16)
    if p["diag"]:
        from diag import diag_kernel
        f = p["diag"].split(",")
        a.raw(diag_kernel((int(f[0]), int(f[1]), f[2], int(f[3]), int(f[4]), f[5]), p["mult"]))
        extra += ".p2align 6\n" + kd("diag_kernel", 32, 32)
    return header(p) + a.text() + '.section .rodata,"a"\n.p2align 6\n' + kd("bin_kernel", 104, sg) + ".p2align 6\n" + kd("acc_kernel", 120, sg) + extra


if __name__ == "__main__":
    ap = argparse.ArgumentParser()
    ap.add_argument("-o", default="standalone__molecular_angular_gemnet__graph.s")
    ap.add_argument("kv", nargs="*")
    args = ap.parse_args()
    p = dict(P)
    for kv in args.kv:
        k, v = kv.split("=")
        p[k] = type(P[k])(v.replace("+", " ")) if not isinstance(P[k], int) else int(v, 0)
    open(args.o, "w").write(build(p))
```

```python
import sys, argparse
from emit import Asm

E, T = 160000, 2560000
NB, BS = 256, 625
NCH, CH = 256, 10000
HALF = 80000
CH_STRIDE = 84096
OFFROW = 2176
BIG = 1 << 26

P = dict(ws_rec=0, ld_pol="nt", st_pol="", rec_pol="", depth=3, ts=0, k1_pref=0, no_ds=0, no_gather=0, no_valu=0, half=80000, prio='', no_load=0, gl=0, dummy=0, diag='', mult=10, order=0, pk=0, alt=0, k2_pref=0, off_pol='', jit=2, guard=16)


def header(p):
    ref = open("standalone__molecular_angular_gemnet__graph.s.ref").read().split("\n")
    out = [l for l in ref if l.startswith(";") and "@launch" not in l and "Override launch" not in l and "grid=ceil" not in l]
    out.append("; @launch kernel=bin_kernel grid=(256,1,1) block=(1024,1,1) lds=87296")
    out.append("; @launch kernel=acc_kernel grid=(256,1,1) block=(1024,1,1) lds=%d" % (81920 + 16 * 1536))
    for i in range(p["dummy"]):
        out.append("; @launch kernel=nop_kernel grid=(1,1,1) block=(64,1,1) lds=0")
    if p["diag"]:
        out.append("; @launch kernel=diag_kernel grid=(1,1,1) block=(256,1,1) lds=1024")
    out.append('.amdgcn_target "amdgcn-amd-amdhsa--gfx950"')
    out.append(".text")
    return "\n".join(out) + "\n"


def kd(name, vgpr, sgpr):
    return f""".amdhsa_kernel {name}
  .amdhsa_next_free_vgpr {vgpr}
  .amdhsa_next_free_sgpr {sgpr}
  .amdhsa_accum_offset {(vgpr + 3) // 4 * 4}
  .amdhsa_group_segment_fixed_size 0
  .amdhsa_kernarg_size 112
  .amdhsa_user_sgpr_count 2
  .amdhsa_user_sgpr_kernarg_segment_ptr 1
  .amdhsa_system_sgpr_workgroup_id_x 1
  .amdhsa_float_denorm_mode_32 3
.end_amdhsa_kernel
"""


def srd(a, d, lo, nbytes, add=None):
    if add is None:
        a(f"s_mov_b32 s{d}, s{lo}")
        a(f"s_and_b32 s{d+1}, s{lo+1}, 0xffff")
    else:
        a(f"s_add_u32 s{d}, s{lo}, {add}")
        a(f"s_addc_u32 s{d+1}, s{lo+1}, 0")
        a(f"s_and_b32 s{d+1}, s{d+1}, 0xffff")
    a(f"s_mov_b32 s{d+2}, {nbytes}")
    a(f"s_mov_b32 s{d+3}, 0x20000")


class Stamps:
    def __init__(self, a, p, kern):
        self.a, self.on, self.n, self.kern = a, p["ts"], 0, kern

    def mark(self):
        if self.on:
            op = "s_memtime" if self.on == 2 else "s_memrealtime"
            self.a(f"{op} s[{80 + 2 * self.n}:{81 + 2 * self.n}]")
            self.n += 1

    def flush(self, ws_lo, wave_sgpr):
        if not self.on:
            return
        a = self.a
        a("s_waitcnt lgkmcnt(0)")
        a(f"s_cmp_lg_u32 s{wave_sgpr}, 0")
        a(f"s_cbranch_scc1 TS_DONE_{self.kern}")
        a(f"s_lshl_b32 s96, s2, 6")
        a(f"s_add_u32 s96, s96, {(200 << 20) + self.kern * 16384}")
        a(f"s_add_u32 s98, s{ws_lo}, s96")
        a(f"s_addc_u32 s99, s{ws_lo+1}, 0")
        a("v_mov_b32 v2, 0")
        for i in range(self.n):
            a(f"v_mov_b32 v4, s{80 + 2 * i}")
            a(f"v_mov_b32 v5, s{81 + 2 * i}")
            a(f"global_store_dwordx2 v2, v[4:5], s[98:99] offset:{8 * i}")
        a(f"TS_DONE_{self.kern}:")


def prefetch(a, rows, srd_, va, vd):
    per = -(-rows * 32 // 128 // 32)
    a(f"s_lshr_b32 s66, s2, 3")
    a(f"s_mul_i32 s66, s66, {per}")
    for i in range(-(-per // 1024)):
        a(f"v_add_u32 v{va}, {1024 * i}, v0")
        a(f"v_cmp_gt_u32 vcc, {per}, v{va}")
        a(f"v_add_u32 v{va}, s66, v{va}")
        a(f"v_lshlrev_b32 v{va}, 7, v{va}")
        a(f"v_cndmask_b32 v{va}, -1, v{va}, vcc")
        a(f"buffer_load_dword v{vd}, v{va}, s[{srd_}:{srd_+3}], 0 offen")


def scan_add(a, v):
    for sh in (1, 2, 4, 8):
        a(f"v_add_u32_dpp v{v}, v{v}, v{v} row_shr:{sh} row_mask:0xf bank_mask:0xf bound_ctrl:0")
    a(f"v_add_u32_dpp v{v}, v{v}, v{v} row_bcast:15 row_mask:0xa bank_mask:0xf")
    a(f"v_add_u32_dpp v{v}, v{v}, v{v} row_bcast:31 row_mask:0xc bank_mask:0xf")


def k1(a, p):
    STAGE = 2080
    ld = (" " + p["ld_pol"]) if p["ld_pol"] else ""
    st = (" " + p["st_pol"]) if p["st_pol"] else ""
    ts = Stamps(a, p, 0)
    a.raw(".globl bin_kernel\n.p2align 8\n.type bin_kernel,@function\nbin_kernel:")
    a(f"""
    s_cmp_ge_u32 s2, {NCH}
    s_cbranch_scc1 K1_END
    s_load_dwordx4 s[4:7], s[0:1], 8
    s_load_dwordx2 s[8:9], s[0:1], 32
    s_load_dwordx2 s[10:11], s[0:1], 48
    s_load_dwordx2 s[12:13], s[0:1], 104
    s_load_dwordx2 s[64:65], s[0:1], 0
    """)
    ts.mark()
    a(f"""
    v_lshlrev_b32 v1, 3, v0
    v_lshlrev_b32 v2, 2, v0
    v_lshrrev_b32 v70, 6, v0
    s_mul_i32 s40, s2, {CH * 4}
    s_mul_i32 s45, s2, {CH * 2}
    v_cmp_gt_u32 vcc, 1000, v0
    v_readfirstlane_b32 s3, v70
    """)
    for j in range(1, 5):
        a(f"s_add_u32 s{40+j}, s40, {8000*j}")
        a(f"s_add_u32 s{45+j}, s45, {4000*j}")
    a("s_mov_b64 s[50:51], vcc")
    a("s_waitcnt lgkmcnt(0)")
    srd(a, 16, 4, T * 4)
    srd(a, 20, 6, T * 4)
    srd(a, 24, 8, T * 2)
    if p["k1_pref"]:
        srd(a, 36, 64, p["k1_pref"] * 32)
    a("s_load_dword s14, s[10:11], 0")
    a("s_mov_b64 exec, s[50:51]")
    for j in range(5):
        a(f"buffer_load_dwordx2 v[{4+2*j}:{5+2*j}], v1, s[20:23], s{40+j} offen{ld}")
        a(f"buffer_load_dwordx2 v[{14+2*j}:{15+2*j}], v1, s[16:19], s{40+j} offen{ld}")
        a(f"buffer_load_dword v{24+j}, v2, s[24:27], s{45+j} offen{ld}")
    a("s_mov_b64 exec, -1")
    a(f"""
    v_mov_b32 v90, 0
    v_mov_b32 v91, 0
    v_mov_b32 v92, 0
    v_mov_b32 v93, 0
    v_lshlrev_b32 v94, 4, v0
    v_add_u32 v95, 0x10000, v94
    v_mov_b32 v3, 8
    v_cmp_gt_u32 vcc, 320, v0
    ds_write_b128 v94, v[90:93]
    ds_write_b128 v94, v[90:93] offset:16384
    ds_write_b128 v94, v[90:93] offset:32768
    ds_write_b128 v94, v[90:93] offset:49152
    ds_write_b128 v95, v[90:93]
    s_mov_b64 exec, vcc
    ds_write_b128 v95, v[90:93] offset:16384
    s_mov_b64 exec, -1
    s_mul_i32 s56, s2, {CH_STRIDE}
    s_mul_i32 s57, s2, {OFFROW}
    s_add_u32 s58, s56, {p['ws_rec']}
    s_mov_b32 s60, 6871948
    s_mov_b32 s61, {p['half']}
    s_mov_b32 s62, {-BS}
    s_mov_b32 s63, 0xffff0000
    """)
    srd(a, 28, 12, 0, add="s58")
    srd(a, 32, 12, NCH * OFFROW, add=str(p["ws_rec"] + NCH * CH_STRIDE))
    a("s_waitcnt lgkmcnt(0)")
    a("s_lshl_b32 s14, s14, 16")
    a("s_barrier")
    a("s_mov_b64 exec, s[50:51]")
    for j in range(5):
        o0, o1, i0, i1, an = 4 + 2 * j, 5 + 2 * j, 14 + 2 * j, 15 + 2 * j, 24 + j
        k0, k1_, r0, r1 = 30 + 2 * j, 31 + 2 * j, 40 + 2 * j, 41 + 2 * j
        ra, rb = 50 + 4 * j, 52 + 4 * j
        q0, q1, x0, x1, l0, l1 = 70, 71, 72, 73, 74, 75
        a(f"""
        s_waitcnt vmcnt({15 - 3 * j - 2})
        v_mul_hi_u32_u24 v{q0}, s60, v{o0}
        v_mul_hi_u32_u24 v{q1}, s60, v{o1}
        v_cmp_le_u32 vcc, s61, v{i0}
        v_cmp_le_u32 s[52:53], s61, v{i1}
        v_mad_i32_i24 v{l0}, v{q0}, s62, v{o0}
        v_mad_i32_i24 v{l1}, v{q1}, s62, v{o1}
        v_addc_co_u32 v{k0}, vcc, v{q0}, v{q0}, vcc
        v_addc_co_u32 v{k1_}, s[52:53], v{q1}, v{q1}, s[52:53]
        v_lshlrev_b32 v{k0}, 2, v{k0}
        v_lshlrev_b32 v{k1_}, 2, v{k1_}
        ds_add_rtn_u32 v{r0}, v{k0}, v3
        ds_add_rtn_u32 v{r1}, v{k1_}, v3
        v_lshl_add_u32 v{ra}, v{i0}, 5, 32
        v_lshl_add_u32 v{rb}, v{i1}, 5, 32
        s_waitcnt vmcnt({15 - 3 * j - 3})
        v_lshlrev_b32 v{x0}, 16, v{an}
        v_and_b32 v{x1}, s63, v{an}
        v_mul_f32 v{x0}, s14, v{x0}
        v_mul_f32 v{x1}, s14, v{x1}
        v_cvt_pk_bf16_f32 v{x0}, v{x0}, v{x1}
        v_and_b32 v{x1}, s63, v{x0}
        v_lshlrev_b32 v{x0}, 16, v{x0}
        v_mul_f32 v{x1}, 0.15915494, v{x1}
        v_mul_f32 v{x0}, 0.15915494, v{x0}
        v_fract_f32 v{x1}, v{x1}
        v_fract_f32 v{x0}, v{x0}
        v_cos_f32 v{x1}, v{x1}
        v_cos_f32 v{x0}, v{x0}
        v_cvt_pk_bf16_f32 v{x0}, v{x0}, v{x1}
        v_lshl_or_b32 v{ra+1}, v{x0}, 16, v{l0}
        v_and_or_b32 v{rb+1}, v{x0}, s63, v{l1}
        """)
    a("s_mov_b64 exec, -1")
    if p["k1_pref"]:
        prefetch(a, p["k1_pref"], 36, 98, 99)
    a("s_waitcnt lgkmcnt(0)")
    ts.mark()
    a("s_barrier")
    a("s_cmp_lg_u32 s3, 0")
    a("s_cbranch_scc1 K1_SCANNED")
    a("""
    v_lshlrev_b32 v70, 5, v0
    ds_read_b128 v[72:75], v70
    ds_read_b128 v[76:79], v70 offset:16
    s_waitcnt lgkmcnt(0)
    """)
    for i in range(8):
        a(f"v_add_u32 v{72+i}, 8, v{72+i}")
    for i in range(8):
        a(f"v_and_b32 v{72+i}, -16, v{72+i}")
    for i in range(1, 8):
        a(f"v_add_u32 v{72+i}, v{71+i}, v{72+i}")
    a("v_mov_b32 v71, v79")
    scan_add(a, 71)
    a(f"v_sub_u32 v80, v71, v79")
    a(f"v_readlane_b32 s54, v71, 63")
    a(f"v_add_u32 v80, {STAGE}, v80")
    for i in range(1, 8):
        a(f"v_add_u32 v{80+i}, v80, v{71+i}")
    a(f"""
    ds_write_b128 v70, v[80:83]
    ds_write_b128 v70, v[84:87] offset:16
    v_mov_b32 v71, s54
    v_mov_b32 v88, 2048
    s_sub_u32 s55, s56, {STAGE}
    ds_write_b32 v88, v71
    """)
    for i in range(8):
        a(f"v_add_u32 v{72+i}, s55, v{80+i}")
    a(f"""
    v_add_u32 v71, s56, v71
    buffer_store_dwordx4 v[72:75], v70, s[32:35], s57 offen{st}
    buffer_store_dwordx4 v[76:79], v70, s[32:35], s57 offen offset:16{st}
    s_mov_b64 exec, 1
    buffer_store_dword v71, v88, s[32:35], s57 offen{st}
    s_mov_b64 exec, -1
    s_waitcnt lgkmcnt(0)
    """)
    a("K1_SCANNED:")
    a("s_barrier")
    ts.mark()
    a("v_mov_b32 v88, 2048")
    a("ds_read_b32 v89, v88")
    a("s_mov_b64 exec, s[50:51]")
    for i in range(10):
        a(f"ds_read_b32 v{70+i}, v{30+i}")
    for i in range(10):
        a("s_waitcnt lgkmcnt(9)")
        a(f"v_add_u32 v{70+i}, v{70+i}, v{40+i}")
        a(f"ds_write_b64 v{70+i}, v[{50+2*i}:{51+2*i}]")
    a("s_mov_b64 exec, -1")
    a("v_readfirstlane_b32 s30, v89")
    a("s_waitcnt lgkmcnt(0)")
    a("s_barrier")
    ts.mark()
    a(f"v_add_u32 v96, {STAGE}, v94")
    a(f"v_add_u32 v97, {STAGE}, v95")
    for i in range(5):
        base, off = (96, 16384 * i) if i < 4 else (97, 16384 * (i - 4))
        a(f"ds_read_b128 v[{4+4*i}:{7+4*i}], v{base} offset:{off}")
    a("s_cmp_lt_u32 s3, 3")
    a("s_cbranch_scc0 K1_NO6")
    a(f"ds_read_b128 v[24:27], v97 offset:16384")
    a(f"v_add_u32 v75, {5*16384}, v94")
    a("s_waitcnt lgkmcnt(0)")
    a(f"buffer_store_dwordx4 v[24:27], v75, s[28:31], 0 offen{st}")
    a("K1_NO6:")
    for i in range(1, 5):
        a(f"v_add_u32 v{70+i}, {i*16384}, v94")
    for i in range(5):
        a(f"s_waitcnt lgkmcnt({4 - i})")
        a(f"buffer_store_dwordx4 v[{4+4*i}:{7+4*i}], v{94 if i == 0 else 70+i}, s[28:31], 0 offen{st}")
    if p["ts"]:
        a("s_waitcnt vmcnt(0)")
        ts.mark()
        ts.flush(12, 3)
    a("K1_END:")
    a("s_endpgm")


def k2(a, p):
    DEPTH = p["depth"]
    NBLK, NU = 6, 24
    MK = 81920
    rp = (" " + p["rec_pol"]) if p["rec_pol"] else ""
    ts = Stamps(a, p, 1)
    vCoff, vLoff, vSel, vMask = 2, 3, 4, 107
    REC = 8
    RING = 32
    NRING = DEPTH + 1
    vLa, vLb = 64, 65
    vGA = 67
    vC, vL, vX, vD = 66, 68, 76, 80
    vE = 72
    vM, vDist, vWd, vWu, vWs, vWr, vCen, vEo = 88, 94, 97, 99, 101, 102, 103, 104
    vG, vDD, vMkW, vMkR, vLane16, vPerm = 108, 109, 110, 111, 112, 113
    vHi = 114
    vId = 126
    vS, vR = 52, 120

    def rbf_block():
        a.comment("radial basis (same bf16 rounding steps as the reference), S = rbf@w_sbf, R = rbf@w_rbf")
        a(f"s_waitcnt vmcnt({p['jit']})")
        for i in range(6):
            a(f"v_lshl_or_b32 v{vWd+i}, v{vHi+i}, 16, v{vWd+i}")
        a(f"""
        v_lshlrev_b32 v32, 16, v{vCen}
        v_and_b32 v33, v{vMask}, v{vCen}
        v_mov_b32 v35, 0
        v_mov_b32 v37, 0
        v_mov_b32 v34, v{vWs}
        v_mov_b32 v36, v{vWr}
        s_mov_b32 s50, 0xc1200000
        s_mov_b32 s51, 0x3fb8aa3b
        """)
        for t in range(3):
            a(f"v_mov_b32 v{41+4*t}, 0")

        def each(fn):
            for t in range(3):
                fn(t, 42 + 4 * t, 43 + 4 * t)

        def rnd():
            each(lambda t, x0, x1: a(f"v_cvt_pk_bf16_f32 v{x0}, v{x0}, v{x1}"))
            each(lambda t, x0, x1: a(f"v_and_b32 v{x1}, v{vMask}, v{x0}"))
            each(lambda t, x0, x1: a(f"v_lshlrev_b32 v{x0}, 16, v{x0}"))

        each(lambda t, x0, x1: a(f"v_lshlrev_b32 v{vDist+t}, 16, v{vDist+t}"))
        each(lambda t, x0, x1: a(f"v_sub_f32 v{x0}, v{vDist+t}, v32\nv_sub_f32 v{x1}, v{vDist+t}, v33"))
        rnd()
        each(lambda t, x0, x1: a(f"v_mul_f32 v{x0}, v{x0}, v{x0}\nv_mul_f32 v{x1}, v{x1}, v{x1}"))
        rnd()
        each(lambda t, x0, x1: a(f"v_mul_f32 v{x0}, s50, v{x0}\nv_mul_f32 v{x1}, s50, v{x1}"))
        rnd()
        each(lambda t, x0, x1: a(f"v_mul_f32 v{x0}, s51, v{x0}\nv_mul_f32 v{x1}, s51, v{x1}"))
        each(lambda t, x0, x1: a(f"v_exp_f32 v{x0}, v{x0}\nv_exp_f32 v{x1}, v{x1}"))
        each(lambda t, x0, x1: a(f"v_cvt_pk_bf16_f32 v{40+4*t}, v{x0}, v{x1}"))
        for t in range(3):
            a(f"v_mfma_f32_16x16x16_bf16 v[{68+4*t}:{68+4*t+3}], v[36:37], v[{40+4*t}:{41+4*t}], 0")
        for t in range(3):
            a(f"v_mfma_f32_16x16x16_bf16 v[{vS+4*t}:{vS+4*t+3}], v[34:35], v[{40+4*t}:{41+4*t}], 0")
        for t in range(3):
            a(f"v_cvt_pk_bf16_f32 v{vR+2*t}, v{68+4*t}, v{69+4*t}")
            a(f"v_cvt_pk_bf16_f32 v{vR+2*t+1}, v{70+4*t}, v{71+4*t}")
        a("s_nop 7")

    a.raw(".globl acc_kernel\n.p2align 8\n.type acc_kernel,@function\nacc_kernel:")
    a(f"""
    s_cmp_ge_u32 s2, {NB}
    s_cbranch_scc1 K2_END
    s_load_dwordx2 s[22:23], s[0:1], 104
    s_load_dwordx2 s[4:5], s[0:1], 0
    s_load_dwordx2 s[6:7], s[0:1], 24
    s_load_dwordx2 s[8:9], s[0:1], 40
    s_load_dwordx4 s[12:15], s[0:1], 56
    s_load_dwordx4 s[16:19], s[0:1], 72
    s_load_dwordx2 s[20:21], s[0:1], 88
    """)
    ts.mark()
    a(f"""
    v_and_b32 v1, 63, v0
    v_lshrrev_b32 v32, 6, v0
    s_and_b32 s64, s2, 7
    s_lshl_b32 s64, s64, 5
    v_readfirstlane_b32 s3, v32
    s_lshr_b32 s65, s2, 3
    s_or_b32 s64, s64, s65
    v_and_b32 v36, 15, v1
    v_lshrrev_b32 v37, 4, v1
    v_mul_u32_u24 v33, {OFFROW}, v36
    s_mul_i32 s65, s3, {16 * OFFROW}
    s_lshl_b32 s66, s64, 3
    v_lshl_add_u32 v33, v37, 2, v33
    s_add_u32 s65, s65, s66
    v_mov_b32 v34, 0
    v_mov_b32 v35, 0
    s_waitcnt lgkmcnt(0)
    """)
    srd(a, 32, 22, NCH * OFFROW, add=str(p["ws_rec"] + NCH * CH_STRIDE))
    a(f"""
    s_mov_b32 exec_hi, 0
    buffer_load_dwordx2 v[34:35], v33, s[32:35], s65 offen{" " + p["off_pol"] if p["off_pol"] else ""}
    s_mov_b32 exec_hi, -1
    """)
    srd(a, 24, 4, E * 32)
    if p["k2_pref"]:
        srd(a, 48, 4, p["k2_pref"] * 32)
        prefetch(a, p["k2_pref"], 48, 60, 61)
    srd(a, 36, 6, E * 2)
    srd(a, 40, 20, E * 32)
    srd(a, 28, 22, NCH * CH_STRIDE, add=str(p["ws_rec"]))
    a(f"""
    s_mul_i32 s67, s64, {BS}
    s_lshl_b32 s68, s3, 4
    v_add_u32 v38, s68, v36
    v_lshlrev_b32 v39, 3, v37
    v_mov_b32 v42, 0x80000000
    """)
    for t in range(3):
        a(f"""
        v_add_u32 v40, {256 * t}, v38
        v_cmp_gt_u32 vcc, {BS}, v40
        v_add_u32 v40, s67, v40
        v_lshl_add_u32 v41, v40, 5, v39
        v_lshlrev_b32 v40, 1, v40
        v_cndmask_b32 v{vEo+t}, v42, v41, vcc
        v_cndmask_b32 v40, v42, v40, vcc
        buffer_load_dwordx2 v[{vM+2*t}:{vM+2*t+1}], v{vEo+t}, s[24:27], 0 offen
        buffer_load_ushort v{vDist+t}, v40, s[36:39], 0 offen
        """)
    a(f"""
    v_lshlrev_b32 v40, 1, v36
    v_lshl_add_u32 v41, v37, 7, v40
    v_lshl_add_u32 v40, v37, 6, v40
    v_lshlrev_b32 v42, 2, v37
    global_load_ushort v{vWd}, v41, s[16:17]
    global_load_ushort v{vHi}, v41, s[16:17] offset:32
    global_load_ushort v{vWd+1}, v41, s[16:17] offset:64
    global_load_ushort v{vHi+1}, v41, s[16:17] offset:96
    global_load_ushort v{vWu}, v41, s[18:19]
    global_load_ushort v{vHi+2}, v41, s[18:19] offset:32
    global_load_ushort v{vWu+1}, v41, s[18:19] offset:64
    global_load_ushort v{vHi+3}, v41, s[18:19] offset:96
    global_load_ushort v{vWs}, v40, s[14:15]
    global_load_ushort v{vHi+4}, v40, s[14:15] offset:32
    global_load_ushort v{vWr}, v40, s[12:13]
    global_load_ushort v{vHi+5}, v40, s[12:13] offset:32
    global_load_dword v{vCen}, v42, s[8:9]
    """)
    NPRE = 6 + 13 + (-(-(-(-p['k2_pref'] // 128)) // 1024) if p['k2_pref'] else 0)
    a(f"""
    v_mov_b32 v44, 0
    v_mov_b32 v45, 0
    v_mov_b32 v46, 0
    v_mov_b32 v47, 0
    v_lshlrev_b32 v40, 4, v0
    v_add_u32 v41, 0x10000, v40
    s_mul_i32 s69, s3, 1536
    s_add_u32 s69, s69, {MK}
    v_lshlrev_b32 v{vLane16}, 4, v1
    v_lshl_add_u32 v{vMkR}, v1, 2, s69
    v_add_u32 v{vMkW}, s69, v{vLane16}
    ds_write_b128 v40, v[44:47]
    ds_write_b128 v40, v[44:47] offset:16384
    ds_write_b128 v40, v[44:47] offset:32768
    ds_write_b128 v40, v[44:47] offset:49152
    ds_write_b128 v41, v[44:47]
    ds_write_b128 v{vMkW}, v[44:47]
    v_lshl_add_u32 v43, v1, 3, s69
    ds_write_b64 v43, v[44:45] offset:1024
    """)
    a(f"""
    v_and_b32 v40, 1, v1
    v_bfe_u32 v41, v1, 1, 3
    v_lshlrev_b32 v{vCoff}, 4, v40
    v_lshlrev_b32 v{vLoff}, 6, v40
    v_subrev_u32 v{vCoff}, 32, v{vCoff}
    v_lshl_add_u32 v{vLoff}, v41, 3, v{vLoff}
    v_mov_b32 v{vMask}, 0xffff0000
    s_mov_b32 s70, 0x02020000
    s_mov_b32 s71, 0x01000c0c
    s_mov_b32 s52, 0xff00ff00
    s_mov_b32 s53, 0xff00ff00
    v_lshrrev_b32 v42, 1, v1
    v_lshlrev_b32 v42, 2, v42
    v_lshl_add_u32 v{vPerm}, v40, 7, v42
    v_lshlrev_b32 v{vId}, 2, v1
    v_and_b32 v41, 3, v41
    """)
    for j in range(4):
        a(f"v_xor_b32 v42, {j}, v41")
        a(f"v_mul_lo_u32 v42, v42, s70")
        a(f"v_add_u32 v{vSel+j}, s71, v42")
    a("s_waitcnt lgkmcnt(0)")
    a("s_barrier")
    a(f"s_waitcnt vmcnt({NPRE})")
    ts.mark()
    a(f"""
    v_sub_u32 v35, v35, v34
    v_lshlrev_b32 v40, 26, v37
    v_mov_b32 v41, v35
    """)
    scan_add(a, 41)
    a(f"""
    s_mov_b32 s72, 0x80000000
    v_readlane_b32 s73, v41, 63
    v_sub_u32 v41, v41, v35
    v_sub_u32 v{vDD}, v34, v41
    v_lshrrev_b32 v{vG}, 4, v41
    v_add_u32 v{vDD}, v{vDD}, v40
    s_lshr_b32 s73, s73, 4
    v_writelane_b32 v{vDD}, s72, 32
    s_mov_b32 s74, 0
    s_mov_b32 s79, 0x83ffffff
    """)
    if p["prio"]:
        a("s_setprio %s" % p["prio"].split(",")[0].split(":")[1])
    a("K2_ROUND:")
    a(f"""
    s_sub_u32 s75, s73, s74
    s_max_i32 s75, s75, 0
    v_subrev_u32 v40, s74, v{vG}
    v_max_i32 v40, 0, v40
    s_lshl_b32 s76, s74, 4
    v_cmp_gt_u32 vcc, {64 * NBLK}, v40
    v_lshl_add_u32 v40, v40, 2, s69
    s_mov_b32 exec_lo, vcc_lo
    s_and_b32 exec_hi, vcc_hi, 1
    ds_max_u32 v40, v{vDD}
    s_mov_b64 exec, -1
    """)
    for k in range(NBLK):
        a(f"ds_read_b32 v{42+k}, v{vMkR} offset:{256*k}")
    a("s_waitcnt lgkmcnt(0)")
    for sh in (1, 2, 4, 8):
        for k in range(NBLK):
            a(f"v_max_u32_dpp v{42+k}, v{42+k}, v{42+k} row_shr:{sh} row_mask:0xf bank_mask:0xf bound_ctrl:0")
    for k in range(NBLK):
        a(f"v_max_u32_dpp v{42+k}, v{42+k}, v{42+k} row_bcast:15 row_mask:0xa bank_mask:0xf")
    for k in range(NBLK):
        a(f"v_max_u32_dpp v{42+k}, v{42+k}, v{42+k} row_bcast:31 row_mask:0xc bank_mask:0xf")
    for k in range(NBLK - 1):
        a(f"v_readlane_b32 s{44+k}, v{42+k}, 63")
    for k in range(1, NBLK - 1):
        a(f"s_max_u32 s{44+k}, s{44+k}, s{43+k}")
    for k in range(1, NBLK):
        a(f"v_max_u32 v{42+k}, s{43+k}, v{42+k}")
    for k in range(NBLK):
        if k:
            a(f"s_add_u32 s76, s76, 1024")
        a(f"v_add3_u32 v{42+k}, v{42+k}, v{vLane16}, s76")
        a(f"v_and_b32 v{42+k}, s79, v{42+k}")
        a(f"s_cmp_le_u32 s75, {64 * (k + 1)}")
        a(f"s_cselect_b64 vcc, -1, 0")
        a(f"v_cndmask_b32 v41, v{vId}, v{vPerm}, vcc")
        a(f"ds_bpermute_b32 v{REC+4*k}, v41, v{42+k}")
    JIT = p["jit"]
    def recload(k):
        a(f"buffer_load_dwordx4 v[{REC+4*k}:{REC+4*k+3}], v{REC+4*k}, s[28:31], 0 offen{rp}")
    for k in range(JIT):
        a(f"s_waitcnt lgkmcnt({NBLK-1-k})")
        recload(k)
    a("s_waitcnt lgkmcnt(0)")
    if p["no_gather"]:
        a("s_mov_b32 s26, 0")
    a(f"s_add_u32 s75, s75, 31")
    a(f"s_lshr_b32 s75, s75, 5")

    seq = [("R", k) for k in range(JIT)]

    def wait_for(op):
        if op in done:
            return
        i = seq.index(op)
        a(f"s_waitcnt vmcnt({len(seq) - 1 - i})")
        done.update(seq[: i + 1])

    done = set()

    def qperm(kk):
        return f"quad_perm:[{kk},{kk},{kk+2},{kk+2}] row_mask:0xf bank_mask:0xf"

    def issue(u):
        kb, kk, h = u // 4, (u // 2) % 2, u % 2
        slot = RING + 4 * (u % NRING)
        guard = u >= p["guard"]
        if guard:
            a(f"s_cmp_gt_u32 s75, {u // 2}")
            a(f"s_cselect_b64 exec, -1, 1")
        wait_for(("R", kb))
        ga = (vGA, 127)[u % 2]
        a(f"v_add_u32_dpp v{ga}, v{REC+4*kb+2*h}, v{vCoff} {qperm(kk)}")
        if not p["no_load"]:
            a(f"buffer_load_dwordx4 v[{slot}:{slot+3}], v{ga}, s[24:27], 0 offen")
            seq.append(("G", u))
        if guard:
            a("s_mov_b64 exec, -1")
        if u % 4 == 0 and kb + JIT < NBLK:
            recload(kb + JIT)
            seq.append(("R", kb + JIT))

    def process(u):
        kb, kk, h = u // 4, (u // 2) % 2, u % 2
        slot = RING + 4 * (u % NRING)
        if u % 4 == 0:
            for hh in range(2):
                a(f"v_lshlrev_b32_sdwa v{vLa+hh}, 7, v{REC+4*kb+2*hh+1} dst_sel:DWORD dst_unused:UNUSED_PAD src0_sel:DWORD src1_sel:WORD_0")
        a(f"v_and_b32_dpp v{vC}, v{REC+4*kb+2*h+1}, v{vMask} {qperm(kk)}")
        a(f"v_xor_b32_dpp v{vL}, v{vLa+h}, v{vLoff} {qperm(kk)}")
        if not p["no_load"]:
            wait_for(("G", u))
        if p["no_valu"]:
            return
        for i in range(4):
            a(f"v_cndmask_b32 v{vE+i}, v{slot+i}, v{slot+(i^2)}, s[52:53]")
        for j in range(1, 4):
            a(f"v_xor_b32 v{vL+j}, {8*j}, v{vL}")
        for half in range(2):
            for j in range(4):
                a(f"v_perm_b32 v{vX+j}, v{vE+2*half+1}, v{vE+2*half}, v{vSel+j}")
            if half:
                for j in range(4):
                    a(f"v_xor_b32 v{vL+j}, 32, v{vL+j}")
            for j in range(4):
                a(f"v_mul_f32 v{vX+j}, v{vC}, v{vX+j}")
            for j in range(4):
                a(f"v_cvt_f64_f32 v[{vD+2*j}:{vD+2*j+1}], v{vX+j}")
            for j in range(4):
                if not p["no_ds"]:
                    a(f"ds_add_f64 v{vL+j}, v[{vD+2*j}:{vD+2*j+1}]")

    a("s_cmp_lg_u32 s74, 0")
    a("s_cbranch_scc1 K2_HAVE_RBF")
    rbf_block()
    a("K2_HAVE_RBF:")
    wait_for(("R", 0))
    ts.mark()
    for u in range(DEPTH):
        issue(u)
    prio = {int(x.split(":")[0]): int(x.split(":")[1]) for x in p["prio"].split(",") if x}
    for u in range(NU):
        if u in prio and u > 0:
            a(f"s_setprio {prio[u]}")
        if u + DEPTH < NU:
            issue(u + DEPTH)
        process(u)
        if u < NU - 1 and u % 2 == 1:
            a(f"s_cmp_le_u32 s75, {(u+1)//2}")
            a(f"s_cbranch_scc1 K2_DONE")
    a(f"""
    v_mov_b32 v44, 0
    v_mov_b32 v45, 0
    v_mov_b32 v46, 0
    v_mov_b32 v47, 0
    v_lshl_add_u32 v43, v1, 3, s69
    s_add_u32 s74, s74, {64 * NBLK}
    s_cmp_ge_u32 s74, s73
    s_cbranch_scc1 K2_DONE
    ds_write_b128 v{vMkW}, v[44:47]
    ds_write_b64 v43, v[44:45] offset:1024
    s_branch K2_ROUND
    """)
    a("K2_DONE:")
    a("s_waitcnt vmcnt(0)")
    ts.mark()
    a(f"""
    v_mov_b32 v32, v{vWd}
    v_mov_b32 v33, v{vWd+1}
    v_mov_b32 v34, v{vWd}
    v_mov_b32 v35, v{vWd+1}
    v_mov_b32 v36, v{vWu}
    v_mov_b32 v37, v{vWu+1}
    v_mov_b32 v38, v{vWu}
    v_mov_b32 v39, v{vWu+1}
    v_and_b32 v64, 15, v1
    v_lshrrev_b32 v65, 4, v1
    v_lshlrev_b32 v64, 7, v64
    s_lshl_b32 s46, s3, 11
    v_lshl_add_u32 v64, v65, 5, v64
    v_add_u32 v64, s46, v64
    v_add_u32 v65, 0x10000, v64
    """)
    a("s_waitcnt lgkmcnt(0)")
    a("s_barrier")
    ts.mark()
    vA = 8
    for t in range(3):
        base, off = (64, 32768 * t) if t < 2 else (65, 0)
        a(f"ds_read_b128 v[{vA+8*t}:{vA+8*t+3}], v{base} offset:{off}")
        a(f"ds_read_b128 v[{vA+8*t+4}:{vA+8*t+7}], v{base} offset:{off+16}")

    def split(t, f, b):
        a(f"v_cvt_pk_bf16_f32 v{b}, v{f}, v{f+1}")
        a(f"v_cvt_pk_bf16_f32 v{b+1}, v{f+2}, v{f+3}")
        a(f"v_lshlrev_b32 v{b+2}, 16, v{b}")
        a(f"v_and_b32 v{b+3}, v{vMask}, v{b}")
        a(f"v_sub_f32 v{f}, v{f}, v{b+2}")
        a(f"v_sub_f32 v{f+1}, v{f+1}, v{b+3}")
        a(f"v_lshlrev_b32 v{b+2}, 16, v{b+1}")
        a(f"v_and_b32 v{b+3}, v{vMask}, v{b+1}")
        a(f"v_sub_f32 v{f+2}, v{f+2}, v{b+2}")
        a(f"v_sub_f32 v{f+3}, v{f+3}, v{b+3}")
        a(f"v_cvt_pk_bf16_f32 v{b+2}, v{f}, v{f+1}")
        a(f"v_cvt_pk_bf16_f32 v{b+3}, v{f+2}, v{f+3}")

    vF, vB = 68, 80
    def fb(t):
        return (68 + 4 * t, [80, 84, 108][t])
    for t in range(3):
        f, b = fb(t)
        a(f"s_waitcnt lgkmcnt({4 - 2 * t})")
        for i in range(4):
            a(f"v_cvt_f32_f64 v{f+i}, v[{vA+8*t+2*i}:{vA+8*t+2*i+1}]")
        split(t, f, b)
        a(f"v_mfma_f32_16x16x32_bf16 v[{vA+8*t}:{vA+8*t+3}], v[32:35], v[{b}:{b+3}], 0")
    for t in range(3):
        f, b = fb(t)
        for i in range(4):
            a(f"v_mul_f32 v{f+i}, v{vA+8*t+i}, v{vS+4*t+i}")
        split(t, f, b)
        a(f"v_mfma_f32_16x16x32_bf16 v[{vA+8*t+4}:{vA+8*t+7}], v[36:39], v[{b}:{b+3}], 0")
    for t in range(3):
        f, b = fb(t)
        a(f"v_lshlrev_b32 v{f}, 16, v{vM+2*t}")
        a(f"v_and_b32 v{f+1}, v{vMask}, v{vM+2*t}")
        a(f"v_lshlrev_b32 v{f+2}, 16, v{vM+2*t+1}")
        a(f"v_and_b32 v{f+3}, v{vMask}, v{vM+2*t+1}")
        a(f"v_lshlrev_b32 v{b}, 16, v{vR+2*t}")
        a(f"v_and_b32 v{b+1}, v{vMask}, v{vR+2*t}")
        a(f"v_lshlrev_b32 v{b+2}, 16, v{vR+2*t+1}")
        a(f"v_and_b32 v{b+3}, v{vMask}, v{vR+2*t+1}")
        for i in range(4):
            a(f"v_fmac_f32 v{f+i}, v{vA+8*t+4+i}, v{b+i}")
        a(f"v_cvt_pk_bf16_f32 v{b}, v{f}, v{f+1}")
        a(f"v_cvt_pk_bf16_f32 v{b+1}, v{f+2}, v{f+3}")
        a(f"buffer_store_dwordx2 v[{b}:{b+1}], v{vEo+t}, s[40:43], 0 offen")
    if p["ts"]:
        a("s_waitcnt vmcnt(0)")
        ts.mark()
        ts.flush(22, 3)
    a("K2_END:")
    a("s_endpgm")


def build(p):
    a = Asm()
    k1(a, p)
    a.hist = []
    k2(a, p)
    sg = 100 if p["ts"] else 80
    extra = ""
    if p["dummy"]:
        a.raw(".globl nop_kernel\n.p2align 8\n.type nop_kernel,@function\nnop_kernel:\n    s_endpgm")
        extra = ".p2align 6\n" + kd("nop_kernel", 8, 16)
    if p["diag"]:
        from diag import diag_kernel
        f = p["diag"].split(",")
        a.raw(diag_kernel((int(f[0]), int(f[1]), f[2], int(f[3]), int(f[4]), f[5]), p["mult"]))
        extra += ".p2align 6\n" + kd("diag_kernel", 32, 32)
    return header(p) + a.text() + '.section .rodata,"a"\n.p2align 6\n' + kd("bin_kernel", 104, sg) + ".p2align 6\n" + kd("acc_kernel", 128, sg) + extra


if __name__ == "__main__":
    ap = argparse.ArgumentParser()
    ap.add_argument("-o", default="standalone__molecular_angular_gemnet__graph.s")
    ap.add_argument("kv", nargs="*")
    args = ap.parse_args()
    p = dict(P)
    for kv in args.kv:
        k, v = kv.split("=")
        p[k] = type(P[k])(v.replace("+", " ")) if not isinstance(P[k], int) else int(v, 0)
    open(args.o, "w").write(build(p))
```

```python
import re

TRANS = ("v_exp_f32", "v_log_f32", "v_rcp_f32", "v_rsq_f32", "v_sqrt_f32", "v_sin_f32", "v_cos_f32")


def regs_of(tok):
    tok = tok.strip()
    tok = re.sub(r"^-|^abs\(|\)$|^\|||\|$", "", tok)
    m = re.fullmatch(r"([vsa])(\d+)", tok)
    if m:
        return {(m.group(1), int(m.group(2)))}
    m = re.fullmatch(r"([vsa])\[(\d+):(\d+)\]", tok)
    if m:
        return {(m.group(1), i) for i in range(int(m.group(2)), int(m.group(3)) + 1)}
    if tok == "vcc":
        return {("s", "vcc")}
    if tok == "exec":
        return {("s", "exec")}
    if tok == "m0":
        return {("s", "m0")}
    return set()


def split_ops(s):
    out, depth, cur = [], 0, ""
    for ch in s:
        if ch in "[(":
            depth += 1
        if ch in "])":
            depth -= 1
        if ch == "," and depth == 0:
            out.append(cur.strip())
            cur = ""
        else:
            cur += ch
    if cur.strip():
        out.append(cur.strip())
    return out


class Ins:
    def __init__(self, text):
        self.text = text
        t = text.split(";")[0].strip()
        parts = t.split(None, 1)
        self.mn = parts[0]
        rest = parts[1] if len(parts) > 1 else ""
        ops = split_ops(rest)
        if ops:
            last = ops[-1].split()
            self.mods = " ".join(last[1:])
            ops[-1] = last[0]
        else:
            self.mods = ""
        self.ops = ops
        mn = self.mn
        self.mfma = mn.startswith("v_mfma")
        self.valu = mn.startswith("v_") and not self.mfma
        self.ds = mn.startswith("ds_")
        self.vmem = mn.startswith(("buffer_", "global_", "flat_"))
        self.salu = mn.startswith("s_")
        self.dpp = "_dpp" in mn or "quad_perm" in text or "row_" in self.mods
        self.trans = mn.replace("_e32", "").replace("_e64", "") in TRANS
        R = [regs_of(o) for o in ops]
        self.w, self.r = set(), set()
        self.store_data = set()
        self.srcc = set()
        self.ab = set()
        if self.mfma:
            self.w = R[0]
            self.ab = R[1] | R[2]
            self.srcc = R[3] if len(R) > 3 else set()
            self.r = self.ab | self.srcc
            self.passes = 8 if "32x32" in mn else 4
        elif self.valu:
            nd = 1
            if re.match(r"v_(add|sub|subrev|addc|subb|subbrev)_co_", mn) or mn.startswith("v_mad_u64"):
                nd = 2
            for x in R[:nd]:
                self.w |= x
            for x in R[nd:]:
                self.r |= x
            if mn.startswith(("v_fmac", "v_dot2c", "v_writelane")) or self.dpp:
                self.r |= R[0]
            if mn.startswith("v_cmpx"):
                self.w |= {("s", "exec")}
            if mn.startswith("v_permlane") or mn.startswith("v_swap"):
                self.w |= R[1]
                self.r |= R[0]
        elif self.ds:
            if mn.startswith("ds_read") or "_rtn" in mn or "permute" in mn or "swizzle" in mn:
                self.w = R[0]
                for x in R[1:]:
                    self.r |= x
            else:
                for x in R:
                    self.r |= x
        elif self.vmem:
            if "_load" in mn and "lds" not in self.mods.split() and "_lds" not in mn:
                self.w = R[0]
                for x in R[1:]:
                    self.r |= x
                if "d16" in mn:
                    self.r |= R[0]
            else:
                for x in R:
                    self.r |= x
                if re.search(r"store_dwordx[34]", mn):
                    self.store_data = R[0] if mn.startswith("buffer_") else R[1]
        elif self.salu:
            if mn.startswith(("s_cmp", "s_waitcnt", "s_nop", "s_barrier", "s_branch", "s_cbranch", "s_endpgm", "s_sleep", "s_setprio")):
                for x in R:
                    self.r |= x
            elif R:
                self.w = set(R[0])
                for x in R[1:]:
                    self.r |= x
                if "saveexec" in mn:
                    self.w |= {("s", "exec")}
        self.states = 1
        if mn == "s_nop":
            self.states = int(ops[0], 0) + 1

    def dpp_src(self):
        return regs_of(self.ops[1]) if self.dpp else set()


def need(p, c):
    n = 0
    pv = {x for x in p.w if x[0] in "va"}
    ps = {x for x in p.w if x[0] == "s"}
    if p.valu:
        if ("s", "exec") in p.w:
            if c.dpp:
                n = max(n, 5)
            if c.mfma or c.mn.startswith(("v_readlane", "v_readfirstlane", "v_writelane", "v_permlane")):
                n = max(n, 4)
        if c.dpp and pv & c.r:
            n = max(n, 2)
        if c.mn.startswith(("v_readlane", "v_readfirstlane")) and pv & c.r:
            n = max(n, 1)
        if c.mn.startswith("v_permlane") and pv & c.r:
            n = max(n, 2)
        if (c.valu or c.mfma) and ps & c.r:
            n = max(n, 2)
            if c.mn.startswith(("v_readlane", "v_writelane")) and ps & regs_of(c.ops[2]):
                n = max(n, 4)
        if c.vmem and ps & c.r:
            n = max(n, 5)
        if c.salu and ps & c.r:
            n = max(n, 1)
        if p.trans and c.valu and not c.trans and pv & c.r:
            n = max(n, 1)
        if p.trans and (c.ds or c.vmem or c.mfma) and pv & c.r:
            n = max(n, 1)
        if c.mfma and pv & c.r:
            n = max(n, 2)
        if "sdwa" in p.mn and "dst_sel:DWORD" not in p.text and c.valu and pv & (c.r | c.w):
            n = max(n, 1)
    if p.mfma:
        d = {4: 8, 8: 12}[p.passes]
        if c.mfma:
            if p.w & c.ab:
                n = max(n, d)
            elif p.w & c.srcc and p.w != c.srcc:
                n = max(n, d - 2)
            elif p.w & c.w and p.w != c.srcc:
                n = max(n, d)
        elif (c.valu or c.ds or c.vmem) and p.w & (c.r | c.w):
            n = max(n, d)
        if c.valu and p.srcc & c.w:
            n = max(n, {4: 3, 8: 7}[p.passes])
    if p.store_data and (c.valu or c.ds or c.vmem) and p.store_data & c.w:
        n = max(n, 2)
    if p.salu and ("s", "m0") in p.w and (c.vmem or c.ds):
        n = max(n, 1)
    return n


class Asm:
    def __init__(self):
        self.lines = []
        self.hist = []
        self.nops = 0

    def raw(self, text):
        self.lines.append(text)

    def label(self, name):
        self.lines.append(name + ":")

    def comment(self, text):
        self.lines.append("    ; " + text)

    def __call__(self, text):
        for ln in text.strip().split("\n"):
            ln = ln.strip()
            if not ln:
                continue
            if ln.startswith(";"):
                self.lines.append("    " + ln)
                continue
            if ln.endswith(":"):
                self.label(ln[:-1])
                continue
            c = Ins(ln)
            dist, pad = 0, 0
            for p in reversed(self.hist[-24:]):
                pad = max(pad, need(p, c) - dist)
                dist += p.states
                if dist >= 24:
                    break
            while pad > 0:
                k = min(pad, 16)
                nop = Ins("s_nop %d" % (k - 1))
                self.lines.append("    " + nop.text)
                self.hist.append(nop)
                self.nops += 1
                pad -= k
            self.lines.append("    " + ln)
            self.hist.append(c)

    def text(self):
        return "\n".join(self.lines) + "\n"
```

```python
import sys, argparse
from emit import Asm

E, T = 160000, 2560000
NB, BS = 256, 625
NCH, CH = 256, 10000
HALF = 80000
CH_STRIDE = 84096
OFFROW = 2176
BIG = 1 << 26

P = dict(ws_rec=0, ld_pol="nt", st_pol="", rec_pol="", depth=4, ts=0, k1_pref=0, no_ds=0, no_gather=0, no_valu=0, half=80000, prio='', no_load=0, gl=0, dummy=0, diag='', mult=10, order=0, pk=0, alt=0, k2_pref=0, off_pol='', jit=2)


def header(p):
    ref = open("standalone__molecular_angular_gemnet__graph.s.ref").read().split("\n")
    out = [l for l in ref if l.startswith(";") and "@launch" not in l and "Override launch" not in l and "grid=ceil" not in l]
    out.append("; @launch kernel=bin_kernel grid=(256,1,1) block=(1024,1,1) lds=87296")
    out.append("; @launch kernel=acc_kernel grid=(256,1,1) block=(1024,1,1) lds=%d" % (81920 + 16 * 1536))
    for i in range(p["dummy"]):
        out.append("; @launch kernel=nop_kernel grid=(1,1,1) block=(64,1,1) lds=0")
    if p["diag"]:
        out.append("; @launch kernel=diag_kernel grid=(1,1,1) block=(256,1,1) lds=1024")
    out.append('.amdgcn_target "amdgcn-amd-amdhsa--gfx950"')
    out.append(".text")
    return "\n".join(out) + "\n"


def kd(name, vgpr, sgpr):
    return f""".amdhsa_kernel {name}
  .amdhsa_next_free_vgpr {vgpr}
  .amdhsa_next_free_sgpr {sgpr}
  .amdhsa_accum_offset {(vgpr + 3) // 4 * 4}
  .amdhsa_group_segment_fixed_size 0
  .amdhsa_kernarg_size 112
  .amdhsa_user_sgpr_count 2
  .amdhsa_user_sgpr_kernarg_segment_ptr 1
  .amdhsa_system_sgpr_workgroup_id_x 1
  .amdhsa_float_denorm_mode_32 3
.end_amdhsa_kernel
"""


def srd(a, d, lo, nbytes, add=None):
    if add is None:
        a(f"s_mov_b32 s{d}, s{lo}")
        a(f"s_and_b32 s{d+1}, s{lo+1}, 0xffff")
    else:
        a(f"s_add_u32 s{d}, s{lo}, {add}")
        a(f"s_addc_u32 s{d+1}, s{lo+1}, 0")
        a(f"s_and_b32 s{d+1}, s{d+1}, 0xffff")
    a(f"s_mov_b32 s{d+2}, {nbytes}")
    a(f"s_mov_b32 s{d+3}, 0x20000")


class Stamps:
    def __init__(self, a, p, kern):
        self.a, self.on, self.n, self.kern = a, p["ts"], 0, kern

    def mark(self):
        if self.on:
            op = "s_memtime" if self.on == 2 else "s_memrealtime"
            self.a(f"{op} s[{80 + 2 * self.n}:{81 + 2 * self.n}]")
            self.n += 1

    def flush(self, ws_lo, wave_sgpr):
        if not self.on:
            return
        a = self.a
        a("s_waitcnt lgkmcnt(0)")
        a(f"s_cmp_lg_u32 s{wave_sgpr}, 0")
        a(f"s_cbranch_scc1 TS_DONE_{self.kern}")
        a(f"s_lshl_b32 s96, s2, 6")
        a(f"s_add_u32 s96, s96, {(200 << 20) + self.kern * 16384}")
        a(f"s_add_u32 s98, s{ws_lo}, s96")
        a(f"s_addc_u32 s99, s{ws_lo+1}, 0")
        a("v_mov_b32 v2, 0")
        for i in range(self.n):
            a(f"v_mov_b32 v4, s{80 + 2 * i}")
            a(f"v_mov_b32 v5, s{81 + 2 * i}")
            a(f"global_store_dwordx2 v2, v[4:5], s[98:99] offset:{8 * i}")
        a(f"TS_DONE_{self.kern}:")


def prefetch(a, rows, srd_, va, vd):
    per = -(-rows * 32 // 128 // 32)
    a(f"s_lshr_b32 s66, s2, 3")
    a(f"s_mul_i32 s66, s66, {per}")
    for i in range(-(-per // 1024)):
        a(f"v_add_u32 v{va}, {1024 * i}, v0")
        a(f"v_cmp_gt_u32 vcc, {per}, v{va}")
        a(f"v_add_u32 v{va}, s66, v{va}")
        a(f"v_lshlrev_b32 v{va}, 7, v{va}")
        a(f"v_cndmask_b32 v{va}, -1, v{va}, vcc")
        a(f"buffer_load_dword v{vd}, v{va}, s[{srd_}:{srd_+3}], 0 offen")


def scan_add(a, v):
    for sh in (1, 2, 4, 8):
        a(f"v_add_u32_dpp v{v}, v{v}, v{v} row_shr:{sh} row_mask:0xf bank_mask:0xf bound_ctrl:0")
    a(f"v_add_u32_dpp v{v}, v{v}, v{v} row_bcast:15 row_mask:0xa bank_mask:0xf")
    a(f"v_add_u32_dpp v{v}, v{v}, v{v} row_bcast:31 row_mask:0xc bank_mask:0xf")


def k1(a, p):
    STAGE = 2080
    ld = (" " + p["ld_pol"]) if p["ld_pol"] else ""
    st = (" " + p["st_pol"]) if p["st_pol"] else ""
    ts = Stamps(a, p, 0)
    a.raw(".globl bin_kernel\n.p2align 8\n.type bin_kernel,@function\nbin_kernel:")
    a(f"""
    s_cmp_ge_u32 s2, {NCH}
    s_cbranch_scc1 K1_END
    s_load_dwordx4 s[4:7], s[0:1], 8
    s_load_dwordx2 s[8:9], s[0:1], 32
    s_load_dwordx2 s[10:11], s[0:1], 48
    s_load_dwordx2 s[12:13], s[0:1], 104
    s_load_dwordx2 s[64:65], s[0:1], 0
    """)
    ts.mark()
    a(f"""
    v_lshlrev_b32 v1, 3, v0
    v_lshlrev_b32 v2, 2, v0
    v_lshrrev_b32 v70, 6, v0
    s_mul_i32 s40, s2, {CH * 4}
    s_mul_i32 s45, s2, {CH * 2}
    v_cmp_gt_u32 vcc, 1000, v0
    v_readfirstlane_b32 s3, v70
    """)
    for j in range(1, 5):
        a(f"s_add_u32 s{40+j}, s40, {8000*j}")
        a(f"s_add_u32 s{45+j}, s45, {4000*j}")
    a("s_mov_b64 s[50:51], vcc")
    a("s_waitcnt lgkmcnt(0)")
    srd(a, 16, 4, T * 4)
    srd(a, 20, 6, T * 4)
    srd(a, 24, 8, T * 2)
    if p["k1_pref"]:
        srd(a, 36, 64, p["k1_pref"] * 32)
    a("s_load_dword s14, s[10:11], 0")
    a("s_mov_b64 exec, s[50:51]")
    for j in range(5):
        a(f"buffer_load_dwordx2 v[{4+2*j}:{5+2*j}], v1, s[20:23], s{40+j} offen{ld}")
        a(f"buffer_load_dwordx2 v[{14+2*j}:{15+2*j}], v1, s[16:19], s{40+j} offen{ld}")
        a(f"buffer_load_dword v{24+j}, v2, s[24:27], s{45+j} offen{ld}")
    a("s_mov_b64 exec, -1")
    a(f"""
    v_mov_b32 v90, 0
    v_mov_b32 v91, 0
    v_mov_b32 v92, 0
    v_mov_b32 v93, 0
    v_lshlrev_b32 v94, 4, v0
    v_add_u32 v95, 0x10000, v94
    v_mov_b32 v3, 8
    v_cmp_gt_u32 vcc, 320, v0
    ds_write_b128 v94, v[90:93]
    ds_write_b128 v94, v[90:93] offset:16384
    ds_write_b128 v94, v[90:93] offset:32768
    ds_write_b128 v94, v[90:93] offset:49152
    ds_write_b128 v95, v[90:93]
    s_mov_b64 exec, vcc
    ds_write_b128 v95, v[90:93] offset:16384
    s_mov_b64 exec, -1
    s_mul_i32 s56, s2, {CH_STRIDE}
    s_mul_i32 s57, s2, {OFFROW}
    s_add_u32 s58, s56, {p['ws_rec']}
    s_mov_b32 s60, 6871948
    s_mov_b32 s61, {p['half']}
    s_mov_b32 s62, {-BS}
    s_mov_b32 s63, 0xffff0000
    """)
    srd(a, 28, 12, 0, add="s58")
    srd(a, 32, 12, NCH * OFFROW, add=str(p["ws_rec"] + NCH * CH_STRIDE))
    a("s_waitcnt lgkmcnt(0)")
    a("s_lshl_b32 s14, s14, 16")
    a("s_barrier")
    a("s_mov_b64 exec, s[50:51]")
    for j in range(5):
        o0, o1, i0, i1, an = 4 + 2 * j, 5 + 2 * j, 14 + 2 * j, 15 + 2 * j, 24 + j
        k0, k1_, r0, r1 = 30 + 2 * j, 31 + 2 * j, 40 + 2 * j, 41 + 2 * j
        ra, rb = 50 + 4 * j, 52 + 4 * j
        q0, q1, x0, x1, l0, l1 = 70, 71, 72, 73, 74, 75
        a(f"""
        s_waitcnt vmcnt({15 - 3 * j - 2})
        v_mul_hi_u32_u24 v{q0}, s60, v{o0}
        v_mul_hi_u32_u24 v{q1}, s60, v{o1}
        v_cmp_le_u32 vcc, s61, v{i0}
        v_cmp_le_u32 s[52:53], s61, v{i1}
        v_mad_i32_i24 v{l0}, v{q0}, s62, v{o0}
        v_mad_i32_i24 v{l1}, v{q1}, s62, v{o1}
        v_addc_co_u32 v{k0}, vcc, v{q0}, v{q0}, vcc
        v_addc_co_u32 v{k1_}, s[52:53], v{q1}, v{q1}, s[52:53]
        v_lshlrev_b32 v{k0}, 2, v{k0}
        v_lshlrev_b32 v{k1_}, 2, v{k1_}
        ds_add_rtn_u32 v{r0}, v{k0}, v3
        ds_add_rtn_u32 v{r1}, v{k1_}, v3
        v_lshl_add_u32 v{ra}, v{i0}, 5, 32
        v_lshl_add_u32 v{rb}, v{i1}, 5, 32
        s_waitcnt vmcnt({15 - 3 * j - 3})
        v_lshlrev_b32 v{x0}, 16, v{an}
        v_and_b32 v{x1}, s63, v{an}
        v_mul_f32 v{x0}, s14, v{x0}
        v_mul_f32 v{x1}, s14, v{x1}
        v_cvt_pk_bf16_f32 v{x0}, v{x0}, v{x1}
        v_and_b32 v{x1}, s63, v{x0}
        v_lshlrev_b32 v{x0}, 16, v{x0}
        v_mul_f32 v{x1}, 0.15915494, v{x1}
        v_mul_f32 v{x0}, 0.15915494, v{x0}
        v_fract_f32 v{x1}, v{x1}
        v_fract_f32 v{x0}, v{x0}
        v_cos_f32 v{x1}, v{x1}
        v_cos_f32 v{x0}, v{x0}
        v_cvt_pk_bf16_f32 v{x0}, v{x0}, v{x1}
        v_lshl_or_b32 v{ra+1}, v{x0}, 16, v{l0}
        v_and_or_b32 v{rb+1}, v{x0}, s63, v{l1}
        """)
    a("s_mov_b64 exec, -1")
    if p["k1_pref"]:
        prefetch(a, p["k1_pref"], 36, 98, 99)
    a("s_waitcnt lgkmcnt(0)")
    ts.mark()
    a("s_barrier")
    a("s_cmp_lg_u32 s3, 0")
    a("s_cbranch_scc1 K1_SCANNED")
    a("""
    v_lshlrev_b32 v70, 5, v0
    ds_read_b128 v[72:75], v70
    ds_read_b128 v[76:79], v70 offset:16
    s_waitcnt lgkmcnt(0)
    """)
    for i in range(8):
        a(f"v_add_u32 v{72+i}, 8, v{72+i}")
    for i in range(8):
        a(f"v_and_b32 v{72+i}, -16, v{72+i}")
    for i in range(1, 8):
        a(f"v_add_u32 v{72+i}, v{71+i}, v{72+i}")
    a("v_mov_b32 v71, v79")
    scan_add(a, 71)
    a(f"v_sub_u32 v80, v71, v79")
    a(f"v_readlane_b32 s54, v71, 63")
    a(f"v_add_u32 v80, {STAGE}, v80")
    for i in range(1, 8):
        a(f"v_add_u32 v{80+i}, v80, v{71+i}")
    a(f"""
    ds_write_b128 v70, v[80:83]
    ds_write_b128 v70, v[84:87] offset:16
    v_mov_b32 v71, s54
    v_mov_b32 v88, 2048
    s_sub_u32 s55, s56, {STAGE}
    ds_write_b32 v88, v71
    """)
    for i in range(8):
        a(f"v_add_u32 v{72+i}, s55, v{80+i}")
    a(f"""
    v_add_u32 v71, s56, v71
    buffer_store_dwordx4 v[72:75], v70, s[32:35], s57 offen{st}
    buffer_store_dwordx4 v[76:79], v70, s[32:35], s57 offen offset:16{st}
    s_mov_b64 exec, 1
    buffer_store_dword v71, v88, s[32:35], s57 offen{st}
    s_mov_b64 exec, -1
    s_waitcnt lgkmcnt(0)
    """)
    a("K1_SCANNED:")
    a("s_barrier")
    ts.mark()
    a("v_mov_b32 v88, 2048")
    a("ds_read_b32 v89, v88")
    a("s_mov_b64 exec, s[50:51]")
    for i in range(10):
        a(f"ds_read_b32 v{70+i}, v{30+i}")
    for i in range(10):
        a("s_waitcnt lgkmcnt(9)")
        a(f"v_add_u32 v{70+i}, v{70+i}, v{40+i}")
        a(f"ds_write_b64 v{70+i}, v[{50+2*i}:{51+2*i}]")
    a("s_mov_b64 exec, -1")
    a("v_readfirstlane_b32 s30, v89")
    a("s_waitcnt lgkmcnt(0)")
    a("s_barrier")
    ts.mark()
    a(f"v_add_u32 v96, {STAGE}, v94")
    a(f"v_add_u32 v97, {STAGE}, v95")
    for i in range(5):
        base, off = (96, 16384 * i) if i < 4 else (97, 16384 * (i - 4))
        a(f"ds_read_b128 v[{4+4*i}:{7+4*i}], v{base} offset:{off}")
    a("s_cmp_lt_u32 s3, 3")
    a("s_cbranch_scc0 K1_NO6")
    a(f"ds_read_b128 v[24:27], v97 offset:16384")
    a(f"v_add_u32 v75, {5*16384}, v94")
    a("s_waitcnt lgkmcnt(0)")
    a(f"buffer_store_dwordx4 v[24:27], v75, s[28:31], 0 offen{st}")
    a("K1_NO6:")
    for i in range(1, 5):
        a(f"v_add_u32 v{70+i}, {i*16384}, v94")
    for i in range(5):
        a(f"s_waitcnt lgkmcnt({4 - i})")
        a(f"buffer_store_dwordx4 v[{4+4*i}:{7+4*i}], v{94 if i == 0 else 70+i}, s[28:31], 0 offen{st}")
    if p["ts"]:
        a("s_waitcnt vmcnt(0)")
        ts.mark()
        ts.flush(12, 3)
    a("K1_END:")
    a("s_endpgm")


def k2(a, p):
    DEPTH = p["depth"]
    NBLK, NU = 6, 24
    MK = 81920
    rp = (" " + p["rec_pol"]) if p["rec_pol"] else ""
    ts = Stamps(a, p, 1)
    vCoff, vLoff, vSel, vMask = 2, 3, 4, 107
    REC = 8
    RING = 32
    NRING = DEPTH + 1
    vLa, vLb = 64, 65
    vGA = 68
    vC, vL, vX, vD = 70, 71, 75, 80
    vM, vDist, vWd, vWu, vWs, vWr, vCen, vEo = 88, 94, 97, 99, 101, 102, 103, 104
    vG, vDD, vMkW, vMkR, vLane16, vPerm = 108, 109, 110, 111, 112, 113
    vHi = 114
    vS, vR = 52, 120

    def rbf_block():
        a.comment("radial basis (same bf16 rounding steps as the reference), S = rbf@w_sbf, R = rbf@w_rbf")
        a(f"s_waitcnt vmcnt({p['jit']})")
        for i in range(6):
            a(f"v_lshl_or_b32 v{vWd+i}, v{vHi+i}, 16, v{vWd+i}")
        a(f"""
        v_lshlrev_b32 v32, 16, v{vCen}
        v_and_b32 v33, v{vMask}, v{vCen}
        v_mov_b32 v35, 0
        v_mov_b32 v37, 0
        v_mov_b32 v34, v{vWs}
        v_mov_b32 v36, v{vWr}
        s_mov_b32 s50, 0xc1200000
        s_mov_b32 s51, 0x3fb8aa3b
        """)
        for t in range(3):
            a(f"v_mov_b32 v{41+4*t}, 0")

        def each(fn):
            for t in range(3):
                fn(t, 42 + 4 * t, 43 + 4 * t)

        def rnd():
            each(lambda t, x0, x1: a(f"v_cvt_pk_bf16_f32 v{x0}, v{x0}, v{x1}"))
            each(lambda t, x0, x1: a(f"v_and_b32 v{x1}, v{vMask}, v{x0}"))
            each(lambda t, x0, x1: a(f"v_lshlrev_b32 v{x0}, 16, v{x0}"))

        each(lambda t, x0, x1: a(f"v_lshlrev_b32 v{vDist+t}, 16, v{vDist+t}"))
        each(lambda t, x0, x1: a(f"v_sub_f32 v{x0}, v{vDist+t}, v32\nv_sub_f32 v{x1}, v{vDist+t}, v33"))
        rnd()
        each(lambda t, x0, x1: a(f"v_mul_f32 v{x0}, v{x0}, v{x0}\nv_mul_f32 v{x1}, v{x1}, v{x1}"))
        rnd()
        each(lambda t, x0, x1: a(f"v_mul_f32 v{x0}, s50, v{x0}\nv_mul_f32 v{x1}, s50, v{x1}"))
        rnd()
        each(lambda t, x0, x1: a(f"v_mul_f32 v{x0}, s51, v{x0}\nv_mul_f32 v{x1}, s51, v{x1}"))
        each(lambda t, x0, x1: a(f"v_exp_f32 v{x0}, v{x0}\nv_exp_f32 v{x1}, v{x1}"))
        each(lambda t, x0, x1: a(f"v_cvt_pk_bf16_f32 v{40+4*t}, v{x0}, v{x1}"))
        for t in range(3):
            a(f"v_mfma_f32_16x16x16_bf16 v[{68+4*t}:{68+4*t+3}], v[36:37], v[{40+4*t}:{41+4*t}], 0")
        for t in range(3):
            a(f"v_mfma_f32_16x16x16_bf16 v[{vS+4*t}:{vS+4*t+3}], v[34:35], v[{40+4*t}:{41+4*t}], 0")
        for t in range(3):
            a(f"v_cvt_pk_bf16_f32 v{vR+2*t}, v{68+4*t}, v{69+4*t}")
            a(f"v_cvt_pk_bf16_f32 v{vR+2*t+1}, v{70+4*t}, v{71+4*t}")
        a("s_nop 7")

    a.raw(".globl acc_kernel\n.p2align 8\n.type acc_kernel,@function\nacc_kernel:")
    a(f"""
    s_cmp_ge_u32 s2, {NB}
    s_cbranch_scc1 K2_END
    s_load_dwordx2 s[22:23], s[0:1], 104
    s_load_dwordx2 s[4:5], s[0:1], 0
    s_load_dwordx2 s[6:7], s[0:1], 24
    s_load_dwordx2 s[8:9], s[0:1], 40
    s_load_dwordx4 s[12:15], s[0:1], 56
    s_load_dwordx4 s[16:19], s[0:1], 72
    s_load_dwordx2 s[20:21], s[0:1], 88
    """)
    ts.mark()
    a(f"""
    v_and_b32 v1, 63, v0
    v_lshrrev_b32 v32, 6, v0
    s_and_b32 s64, s2, 7
    s_lshl_b32 s64, s64, 5
    v_readfirstlane_b32 s3, v32
    s_lshr_b32 s65, s2, 3
    s_or_b32 s64, s64, s65
    v_and_b32 v36, 15, v1
    v_lshrrev_b32 v37, 4, v1
    v_mul_u32_u24 v33, {OFFROW}, v36
    s_mul_i32 s65, s3, {16 * OFFROW}
    s_lshl_b32 s66, s64, 3
    v_lshl_add_u32 v33, v37, 2, v33
    s_add_u32 s65, s65, s66
    v_mov_b32 v34, 0
    v_mov_b32 v35, 0
    s_waitcnt lgkmcnt(0)
    """)
    srd(a, 32, 22, NCH * OFFROW, add=str(p["ws_rec"] + NCH * CH_STRIDE))
    a(f"""
    s_mov_b32 exec_hi, 0
    buffer_load_dwordx2 v[34:35], v33, s[32:35], s65 offen{" " + p["off_pol"] if p["off_pol"] else ""}
    s_mov_b32 exec_hi, -1
    """)
    srd(a, 24, 4, E * 32)
    if p["k2_pref"]:
        srd(a, 48, 4, p["k2_pref"] * 32)
        prefetch(a, p["k2_pref"], 48, 60, 61)
    srd(a, 36, 6, E * 2)
    srd(a, 40, 20, E * 32)
    srd(a, 28, 22, NCH * CH_STRIDE, add=str(p["ws_rec"]))
    a(f"""
    s_mul_i32 s67, s64, {BS}
    s_lshl_b32 s68, s3, 4
    v_add_u32 v38, s68, v36
    v_lshlrev_b32 v39, 3, v37
    v_mov_b32 v42, 0x80000000
    """)
    for t in range(3):
        a(f"""
        v_add_u32 v40, {256 * t}, v38
        v_cmp_gt_u32 vcc, {BS}, v40
        v_add_u32 v40, s67, v40
        v_lshl_add_u32 v41, v40, 5, v39
        v_lshlrev_b32 v40, 1, v40
        v_cndmask_b32 v{vEo+t}, v42, v41, vcc
        v_cndmask_b32 v40, v42, v40, vcc
        buffer_load_dwordx2 v[{vM+2*t}:{vM+2*t+1}], v{vEo+t}, s[24:27], 0 offen
        buffer_load_ushort v{vDist+t}, v40, s[36:39], 0 offen
        """)
    a(f"""
    v_lshlrev_b32 v40, 1, v36
    v_lshl_add_u32 v41, v37, 7, v40
    v_lshl_add_u32 v40, v37, 6, v40
    v_lshlrev_b32 v42, 2, v37
    global_load_ushort v{vWd}, v41, s[16:17]
    global_load_ushort v{vHi}, v41, s[16:17] offset:32
    global_load_ushort v{vWd+1}, v41, s[16:17] offset:64
    global_load_ushort v{vHi+1}, v41, s[16:17] offset:96
    global_load_ushort v{vWu}, v41, s[18:19]
    global_load_ushort v{vHi+2}, v41, s[18:19] offset:32
    global_load_ushort v{vWu+1}, v41, s[18:19] offset:64
    global_load_ushort v{vHi+3}, v41, s[18:19] offset:96
    global_load_ushort v{vWs}, v40, s[14:15]
    global_load_ushort v{vHi+4}, v40, s[14:15] offset:32
    global_load_ushort v{vWr}, v40, s[12:13]
    global_load_ushort v{vHi+5}, v40, s[12:13] offset:32
    global_load_dword v{vCen}, v42, s[8:9]
    """)
    NPRE = 6 + 13 + (-(-(-(-p['k2_pref'] // 128)) // 1024) if p['k2_pref'] else 0)
    a(f"""
    v_mov_b32 v44, 0
    v_mov_b32 v45, 0
    v_mov_b32 v46, 0
    v_mov_b32 v47, 0
    v_lshlrev_b32 v40, 4, v0
    v_add_u32 v41, 0x10000, v40
    s_mul_i32 s69, s3, 1536
    s_add_u32 s69, s69, {MK}
    v_lshlrev_b32 v{vLane16}, 4, v1
    v_lshl_add_u32 v{vMkR}, v1, 2, s69
    v_add_u32 v{vMkW}, s69, v{vLane16}
    ds_write_b128 v40, v[44:47]
    ds_write_b128 v40, v[44:47] offset:16384
    ds_write_b128 v40, v[44:47] offset:32768
    ds_write_b128 v40, v[44:47] offset:49152
    ds_write_b128 v41, v[44:47]
    ds_write_b128 v{vMkW}, v[44:47]
    v_lshl_add_u32 v43, v1, 3, s69
    ds_write_b64 v43, v[44:45] offset:1024
    """)
    a(f"""
    v_and_b32 v40, 3, v1
    v_bfe_u32 v41, v1, 2, 2
    v_lshlrev_b32 v{vCoff}, 3, v40
    v_lshlrev_b32 v{vLoff}, 5, v40
    v_subrev_u32 v{vCoff}, {0 if p['gl'] else 32}, v{vCoff}
    v_lshl_add_u32 v{vLoff}, v41, 3, v{vLoff}
    v_mov_b32 v{vMask}, 0xffff0000
    s_mov_b32 s70, 0x02020000
    s_mov_b32 s71, 0x01000c0c
    v_lshrrev_b32 v42, 2, v1
    v_lshlrev_b32 v42, 2, v42
    v_lshl_add_u32 v{vPerm}, v40, 6, v42
    """)
    for j in range(4):
        a(f"v_xor_b32 v42, {j}, v41")
        a(f"v_mul_lo_u32 v42, v42, s70")
        a(f"v_add_u32 v{vSel+j}, s71, v42")
    a("s_waitcnt lgkmcnt(0)")
    a("s_barrier")
    a(f"s_waitcnt vmcnt({NPRE})")
    ts.mark()
    a(f"""
    v_sub_u32 v35, v35, v34
    v_lshlrev_b32 v40, 26, v37
    v_mov_b32 v41, v35
    """)
    scan_add(a, 41)
    a(f"""
    s_mov_b32 s72, 0x80000000
    v_readlane_b32 s73, v41, 63
    v_sub_u32 v41, v41, v35
    v_sub_u32 v{vDD}, v34, v41
    v_lshrrev_b32 v{vG}, 4, v41
    v_add_u32 v{vDD}, v{vDD}, v40
    s_lshr_b32 s73, s73, 4
    v_writelane_b32 v{vDD}, s72, 32
    s_mov_b32 s74, 0
    s_mov_b32 s79, 0x83ffffff
    """)
    if p["prio"]:
        a("s_setprio %s" % p["prio"].split(",")[0].split(":")[1])
    a("K2_ROUND:")
    a(f"""
    s_sub_u32 s75, s73, s74
    s_max_i32 s75, s75, 0
    v_subrev_u32 v40, s74, v{vG}
    v_max_i32 v40, 0, v40
    s_lshl_b32 s76, s74, 4
    v_cmp_gt_u32 vcc, {64 * NBLK}, v40
    v_lshl_add_u32 v40, v40, 2, s69
    s_mov_b32 exec_lo, vcc_lo
    s_and_b32 exec_hi, vcc_hi, 1
    ds_max_u32 v40, v{vDD}
    s_mov_b64 exec, -1
    """)
    for k in range(NBLK):
        a(f"ds_read_b32 v{42+k}, v{vMkR} offset:{256*k}")
    a("s_waitcnt lgkmcnt(0)")
    for sh in (1, 2, 4, 8):
        for k in range(NBLK):
            a(f"v_max_u32_dpp v{42+k}, v{42+k}, v{42+k} row_shr:{sh} row_mask:0xf bank_mask:0xf bound_ctrl:0")
    for k in range(NBLK):
        a(f"v_max_u32_dpp v{42+k}, v{42+k}, v{42+k} row_bcast:15 row_mask:0xa bank_mask:0xf")
    for k in range(NBLK):
        a(f"v_max_u32_dpp v{42+k}, v{42+k}, v{42+k} row_bcast:31 row_mask:0xc bank_mask:0xf")
    for k in range(NBLK - 1):
        a(f"v_readlane_b32 s{44+k}, v{42+k}, 63")
    for k in range(1, NBLK - 1):
        a(f"s_max_u32 s{44+k}, s{44+k}, s{43+k}")
    for k in range(1, NBLK):
        a(f"v_max_u32 v{42+k}, s{43+k}, v{42+k}")
    for k in range(NBLK):
        if k:
            a(f"s_add_u32 s76, s76, 1024")
        a(f"v_add3_u32 v{42+k}, v{42+k}, v{vLane16}, s76")
        a(f"v_and_b32 v{42+k}, s79, v{42+k}")
        a(f"ds_bpermute_b32 v{REC+4*k}, v{vPerm}, v{42+k}")
    JIT = p["jit"]
    def recload(k):
        a(f"buffer_load_dwordx4 v[{REC+4*k}:{REC+4*k+3}], v{REC+4*k}, s[28:31], 0 offen{rp}")
    for k in range(JIT):
        a(f"s_waitcnt lgkmcnt({NBLK-1-k})")
        recload(k)
    a("s_waitcnt lgkmcnt(0)")
    if p["no_gather"]:
        a("s_mov_b32 s26, 0")
    a(f"s_add_u32 s75, s75, 15")
    a(f"s_lshr_b32 s75, s75, 4")

    seq = [("R", k) for k in range(JIT)]

    def wait_for(op):
        if op in done:
            return
        i = seq.index(op)
        a(f"s_waitcnt vmcnt({len(seq) - 1 - i})")
        done.update(seq[: i + 1])

    done = set()

    def issue(u):
        kb, kk = divmod(u, 4)
        slot = RING + 4 * (u % NRING)
        wait_for(("R", kb))
        for h in range(2):
            a(f"v_add_u32_dpp v{vGA+h}, v{REC+4*kb+2*h}, v{vCoff} quad_perm:[{kk},{kk},{kk},{kk}] row_mask:0xf bank_mask:0xf")
            if p["no_load"]:
                continue
            if p["gl"]:
                a(f"global_load_dwordx2 v[{slot+2*h}:{slot+2*h+1}], v{vGA+h}, s[4:5]")
            else:
                a(f"buffer_load_dwordx2 v[{slot+2*h}:{slot+2*h+1}], v{vGA+h}, s[24:27], 0 offen")
            seq.append(("G", u, h))
        if kk == 0 and kb + JIT < NBLK:
            recload(kb + JIT)
            seq.append(("R", kb + JIT))

    def process(u):
        kb, kk = divmod(u, 4)
        slot = RING + 4 * (u % NRING)
        qp = f"quad_perm:[{kk},{kk},{kk},{kk}] row_mask:0xf bank_mask:0xf"
        if kk == 0:
            for h in range(2):
                a(f"v_lshlrev_b32_sdwa v{vLa+h}, 7, v{REC+4*kb+2*h+1} dst_sel:DWORD dst_unused:UNUSED_PAD src0_sel:DWORD src1_sel:WORD_0")
        for h in range(2):
            d0, d1 = slot + 2 * h, slot + 2 * h + 1
            a(f"v_and_b32_dpp v{vC}, v{REC+4*kb+2*h+1}, v{vMask} {qp}")
            a(f"v_xor_b32_dpp v{vL}, v{vLa+h}, v{vLoff} {qp}")
            if not p["no_load"]:
                wait_for(("G", u, h))
            if p["no_valu"]:
                continue
            for j in range(4):
                a(f"v_perm_b32 v{vX+j}, v{d1}, v{d0}, v{vSel+j}")
            for j in range(1, 4):
                a(f"v_xor_b32 v{vL+j}, {8*j}, v{vL}")
            for j in range(4):
                a(f"v_mul_f32 v{vX+j}, v{vC}, v{vX+j}")
            for j in range(4):
                a(f"v_cvt_f64_f32 v[{vD+2*j}:{vD+2*j+1}], v{vX+j}")
            for j in range(4):
                if not p["no_ds"]:
                    a(f"ds_add_f64 v{vL+j}, v[{vD+2*j}:{vD+2*j+1}]")

    a("s_cmp_lg_u32 s74, 0")
    a("s_cbranch_scc1 K2_HAVE_RBF")
    rbf_block()
    a("K2_HAVE_RBF:")
    wait_for(("R", 0))
    ts.mark()
    for u in range(DEPTH):
        issue(u)
    prio = {int(x.split(":")[0]): int(x.split(":")[1]) for x in p["prio"].split(",") if x}
    for u in range(NU):
        if u in prio and u > 0:
            a(f"s_setprio {prio[u]}")
        if u + DEPTH < NU:
            issue(u + DEPTH)
        process(u)
        if u < NU - 1:
            a(f"s_cmp_le_u32 s75, {u+1}")
            a(f"s_cbranch_scc1 K2_DONE")
    a(f"""
    v_mov_b32 v44, 0
    v_mov_b32 v45, 0
    v_mov_b32 v46, 0
    v_mov_b32 v47, 0
    v_lshl_add_u32 v43, v1, 3, s69
    s_add_u32 s74, s74, {64 * NBLK}
    s_cmp_ge_u32 s74, s73
    s_cbranch_scc1 K2_DONE
    ds_write_b128 v{vMkW}, v[44:47]
    ds_write_b64 v43, v[44:45] offset:1024
    s_branch K2_ROUND
    """)
    a("K2_DONE:")
    a("s_waitcnt vmcnt(0)")
    ts.mark()
    a(f"""
    v_mov_b32 v32, v{vWd}
    v_mov_b32 v33, v{vWd+1}
    v_mov_b32 v34, v{vWd}
    v_mov_b32 v35, v{vWd+1}
    v_mov_b32 v36, v{vWu}
    v_mov_b32 v37, v{vWu+1}
    v_mov_b32 v38, v{vWu}
    v_mov_b32 v39, v{vWu+1}
    v_and_b32 v64, 15, v1
    v_lshrrev_b32 v65, 4, v1
    v_lshlrev_b32 v64, 7, v64
    s_lshl_b32 s46, s3, 11
    v_lshl_add_u32 v64, v65, 5, v64
    v_add_u32 v64, s46, v64
    v_add_u32 v65, 0x10000, v64
    """)
    a("s_waitcnt lgkmcnt(0)")
    a("s_barrier")
    ts.mark()
    vA = 8
    for t in range(3):
        base, off = (64, 32768 * t) if t < 2 else (65, 0)
        a(f"ds_read_b128 v[{vA+8*t}:{vA+8*t+3}], v{base} offset:{off}")
        a(f"ds_read_b128 v[{vA+8*t+4}:{vA+8*t+7}], v{base} offset:{off+16}")

    def split(t, f, b):
        a(f"v_cvt_pk_bf16_f32 v{b}, v{f}, v{f+1}")
        a(f"v_cvt_pk_bf16_f32 v{b+1}, v{f+2}, v{f+3}")
        a(f"v_lshlrev_b32 v{b+2}, 16, v{b}")
        a(f"v_and_b32 v{b+3}, v{vMask}, v{b}")
        a(f"v_sub_f32 v{f}, v{f}, v{b+2}")
        a(f"v_sub_f32 v{f+1}, v{f+1}, v{b+3}")
        a(f"v_lshlrev_b32 v{b+2}, 16, v{b+1}")
        a(f"v_and_b32 v{b+3}, v{vMask}, v{b+1}")
        a(f"v_sub_f32 v{f+2}, v{f+2}, v{b+2}")
        a(f"v_sub_f32 v{f+3}, v{f+3}, v{b+3}")
        a(f"v_cvt_pk_bf16_f32 v{b+2}, v{f}, v{f+1}")
        a(f"v_cvt_pk_bf16_f32 v{b+3}, v{f+2}, v{f+3}")

    vF, vB = 68, 80
    def fb(t):
        return (68 + 4 * t, [80, 84, 108][t])
    for t in range(3):
        f, b = fb(t)
        a(f"s_waitcnt lgkmcnt({4 - 2 * t})")
        for i in range(4):
            a(f"v_cvt_f32_f64 v{f+i}, v[{vA+8*t+2*i}:{vA+8*t+2*i+1}]")
        split(t, f, b)
        a(f"v_mfma_f32_16x16x32_bf16 v[{vA+8*t}:{vA+8*t+3}], v[32:35], v[{b}:{b+3}], 0")
    for t in range(3):
        f, b = fb(t)
        for i in range(4):
            a(f"v_mul_f32 v{f+i}, v{vA+8*t+i}, v{vS+4*t+i}")
        split(t, f, b)
        a(f"v_mfma_f32_16x16x32_bf16 v[{vA+8*t+4}:{vA+8*t+7}], v[36:39], v[{b}:{b+3}], 0")
    for t in range(3):
        f, b = fb(t)
        a(f"v_lshlrev_b32 v{f}, 16, v{vM+2*t}")
        a(f"v_and_b32 v{f+1}, v{vMask}, v{vM+2*t}")
        a(f"v_lshlrev_b32 v{f+2}, 16, v{vM+2*t+1}")
        a(f"v_and_b32 v{f+3}, v{vMask}, v{vM+2*t+1}")
        a(f"v_lshlrev_b32 v{b}, 16, v{vR+2*t}")
        a(f"v_and_b32 v{b+1}, v{vMask}, v{vR+2*t}")
        a(f"v_lshlrev_b32 v{b+2}, 16, v{vR+2*t+1}")
        a(f"v_and_b32 v{b+3}, v{vMask}, v{vR+2*t+1}")
        for i in range(4):
            a(f"v_fmac_f32 v{f+i}, v{vA+8*t+4+i}, v{b+i}")
        a(f"v_cvt_pk_bf16_f32 v{b}, v{f}, v{f+1}")
        a(f"v_cvt_pk_bf16_f32 v{b+1}, v{f+2}, v{f+3}")
        a(f"buffer_store_dwordx2 v[{b}:{b+1}], v{vEo+t}, s[40:43], 0 offen")
    if p["ts"]:
        a("s_waitcnt vmcnt(0)")
        ts.mark()
        ts.flush(22, 3)
    a("K2_END:")
    a("s_endpgm")


def build(p):
    a = Asm()
    k1(a, p)
    a.hist = []
    k2(a, p)
    sg = 100 if p["ts"] else 80
    extra = ""
    if p["dummy"]:
        a.raw(".globl nop_kernel\n.p2align 8\n.type nop_kernel,@function\nnop_kernel:\n    s_endpgm")
        extra = ".p2align 6\n" + kd("nop_kernel", 8, 16)
    if p["diag"]:
        from diag import diag_kernel
        f = p["diag"].split(",")
        a.raw(diag_kernel((int(f[0]), int(f[1]), f[2], int(f[3]), int(f[4]), f[5]), p["mult"]))
        extra += ".p2align 6\n" + kd("diag_kernel", 32, 32)
    return header(p) + a.text() + '.section .rodata,"a"\n.p2align 6\n' + kd("bin_kernel", 104, sg) + ".p2align 6\n" + kd("acc_kernel", 128, sg) + extra


if __name__ == "__main__":
    ap = argparse.ArgumentParser()
    ap.add_argument("-o", default="standalone__molecular_angular_gemnet__graph.s")
    ap.add_argument("kv", nargs="*")
    args = ap.parse_args()
    p = dict(P)
    for kv in args.kv:
        k, v = kv.split("=")
        p[k] = type(P[k])(v.replace("+", " ")) if not isinstance(P[k], int) else int(v, 0)
    open(args.o, "w").write(build(p))
```

```python
import argparse
from emit import Asm
from gen1 import kd, srd, Stamps, scan_add

E, T = 160000, 2560000
NB, BS = 256, 625
NCH, CH = 256, 10000
CHG = 5280
CH_STRIDE = CHG * 12
OFFROW = 2176
HALF = 626 * 128 - 1

P = dict(ws_rec=0, ld_pol="nt", st_pol="sc1", depth=3, ts=0, no_ds=0, no_valu=0, prio="0:3,5:2,10:1,15:0",
         diag="", mult=10, guard=16, force_fb=0, gpos="", late1=0)

CNT1 = 3072 - 626 * 4
MISC = 6144
ACC = 6400
SORT = ACC + 81920
SORTCAP = 6144
K2_LDS = SORT + SORTCAP * 8 + 256
K1_LDS = 2080 + 65536


def header(p):
    ref = open("standalone__molecular_angular_gemnet__graph.s.ref").read().split("\n")
    out = [l for l in ref if l.startswith(";") and "@launch" not in l and "Override launch" not in l and "grid=ceil" not in l]
    out.append("; @launch kernel=bin_kernel grid=(256,1,1) block=(1024,1,1) lds=%d" % K1_LDS)
    out.append("; @launch kernel=acc_kernel grid=(256,1,1) block=(1024,1,1) lds=%d" % K2_LDS)
    if p["diag"]:
        out.append("; @launch kernel=diag_kernel grid=(1,1,1) block=(256,1,1) lds=1024")
    out.append('.amdgcn_target "amdgcn-amd-amdhsa--gfx950"')
    out.append(".text")
    return "\n".join(out) + "\n"


def k1(a, p):
    STAGE = 2080
    ld = (" " + p["ld_pol"]) if p["ld_pol"] else ""
    st = (" " + p["st_pol"]) if p["st_pol"] else ""
    ts = Stamps(a, p, 0)
    vW, vCos, vKey, vRank = 50, 60, 30, 40
    a.raw(".globl bin_kernel\n.p2align 8\n.type bin_kernel,@function\nbin_kernel:")
    a(f"""
    s_cmp_ge_u32 s2, {NCH}
    s_cbranch_scc1 K1_END
    s_load_dwordx4 s[4:7], s[0:1], 8
    s_load_dwordx2 s[8:9], s[0:1], 32
    s_load_dwordx2 s[10:11], s[0:1], 48
    s_load_dwordx2 s[12:13], s[0:1], 104
    """)
    ts.mark()
    a(f"""
    v_lshlrev_b32 v1, 3, v0
    v_lshlrev_b32 v2, 2, v0
    v_lshrrev_b32 v70, 6, v0
    s_mul_i32 s40, s2, {CH * 4}
    s_mul_i32 s45, s2, {CH * 2}
    v_cmp_gt_u32 vcc, 1000, v0
    v_readfirstlane_b32 s3, v70
    """)
    for j in range(1, 5):
        a(f"s_add_u32 s{40+j}, s40, {8000*j}")
        a(f"s_add_u32 s{45+j}, s45, {4000*j}")
    a("s_mov_b64 s[50:51], vcc")
    a("s_waitcnt lgkmcnt(0)")
    srd(a, 16, 4, T * 4)
    srd(a, 20, 6, T * 4)
    srd(a, 24, 8, T * 2)
    a("s_load_dword s14, s[10:11], 0")
    a("s_mov_b64 exec, s[50:51]")
    for j in range(5):
        a(f"buffer_load_dwordx2 v[{4+2*j}:{5+2*j}], v1, s[20:23], s{40+j} offen{ld}")
        a(f"buffer_load_dwordx2 v[{14+2*j}:{15+2*j}], v1, s[16:19], s{40+j} offen{ld}")
        a(f"buffer_load_dword v{24+j}, v2, s[24:27], s{45+j} offen{ld}")
    a("s_mov_b64 exec, -1")
    a(f"""
    v_mov_b32 v90, 0
    v_mov_b32 v91, 0
    v_mov_b32 v92, 0
    v_mov_b32 v93, 0
    v_lshlrev_b32 v94, 4, v0
    v_add_u32 v95, 0x10000, v94
    v_mov_b32 v3, 6
    v_cmp_gt_u32 vcc, {(K1_LDS - 65536) // 16}, v0
    ds_write_b128 v94, v[90:93]
    ds_write_b128 v94, v[90:93] offset:16384
    ds_write_b128 v94, v[90:93] offset:32768
    ds_write_b128 v94, v[90:93] offset:49152
    s_mov_b64 exec, vcc
    ds_write_b128 v95, v[90:93]
    s_mov_b64 exec, -1
    s_mul_i32 s56, s2, {CH_STRIDE}
    s_mul_i32 s57, s2, {OFFROW}
    s_mul_i32 s59, s2, {CHG}
    s_add_u32 s58, s56, {p['ws_rec']}
    s_mov_b32 s60, 6871948
    s_mov_b32 s61, {HALF}
    s_mov_b32 s62, {-BS}
    s_mov_b32 s63, 0xffff0000
    s_mov_b32 s66, 1024
    """)
    srd(a, 28, 12, 0, add="s58")
    srd(a, 32, 12, NCH * OFFROW, add=str(p["ws_rec"] + NCH * CH_STRIDE))
    a("s_waitcnt lgkmcnt(0)")
    a("s_lshl_b32 s14, s14, 16")
    a("s_barrier")
    a("s_mov_b64 exec, s[50:51]")
    for j in range(5):
        o0, o1, i0, i1, an = 4 + 2 * j, 5 + 2 * j, 14 + 2 * j, 15 + 2 * j, 24 + j
        k0, k1_, r0, r1 = vKey + 2 * j, vKey + 1 + 2 * j, vRank + 2 * j, vRank + 1 + 2 * j
        q0, q1, x0, x1, l0, l1 = 70, 71, 72, 73, 74, 75
        a(f"""
        s_waitcnt vmcnt({15 - 3 * j - 2})
        v_mul_hi_u32_u24 v{q0}, s60, v{o0}
        v_mul_hi_u32_u24 v{q1}, s60, v{o1}
        v_cmp_le_u32 vcc, s61, v{i0}
        v_cmp_le_u32 s[52:53], s61, v{i1}
        v_mad_i32_i24 v{l0}, v{q0}, s62, v{o0}
        v_mad_i32_i24 v{l1}, v{q1}, s62, v{o1}
        v_addc_co_u32 v{k0}, vcc, v{q0}, v{q0}, vcc
        v_addc_co_u32 v{k1_}, s[52:53], v{q1}, v{q1}, s[52:53]
        v_lshlrev_b32 v{k0}, 2, v{k0}
        v_lshlrev_b32 v{k1_}, 2, v{k1_}
        ds_add_rtn_u32 v{r0}, v{k0}, v3
        ds_add_rtn_u32 v{r1}, v{k1_}, v3
        v_lshlrev_b32 v{i0}, 10, v{i0}
        v_lshlrev_b32 v{i1}, 10, v{i1}
        v_add3_u32 v{vW+2*j}, v{i0}, v{l0}, s66
        v_add3_u32 v{vW+2*j+1}, v{i1}, v{l1}, s66
        s_waitcnt vmcnt({15 - 3 * j - 3})
        v_lshlrev_b32 v{x0}, 16, v{an}
        v_and_b32 v{x1}, s63, v{an}
        v_mul_f32 v{x0}, s14, v{x0}
        v_mul_f32 v{x1}, s14, v{x1}
        v_cvt_pk_bf16_f32 v{x0}, v{x0}, v{x1}
        v_and_b32 v{x1}, s63, v{x0}
        v_lshlrev_b32 v{x0}, 16, v{x0}
        v_mul_f32 v{x1}, 0.15915494, v{x1}
        v_mul_f32 v{x0}, 0.15915494, v{x0}
        v_fract_f32 v{x1}, v{x1}
        v_fract_f32 v{x0}, v{x0}
        v_cos_f32 v{x1}, v{x1}
        v_cos_f32 v{x0}, v{x0}
        v_cvt_pk_bf16_f32 v{vCos+j}, v{x0}, v{x1}
        """)
    a("s_mov_b64 exec, -1")
    a("s_waitcnt lgkmcnt(0)")
    ts.mark()
    a("s_barrier")
    a("s_cmp_lg_u32 s3, 0")
    a("s_cbranch_scc1 K1_SCANNED")
    a("""
    v_lshlrev_b32 v70, 5, v0
    ds_read_b128 v[72:75], v70
    ds_read_b128 v[76:79], v70 offset:16
    s_mov_b32 s67, 43691
    s_waitcnt lgkmcnt(0)
    """)
    for i in range(8):
        a(f"v_and_b32 v{80+i}, 2, v{72+i}")
    for i in range(8):
        a(f"v_mad_u32_u24 v{72+i}, v{80+i}, 3, v{72+i}")
    for i in range(1, 8):
        a(f"v_add_u32 v{72+i}, v{71+i}, v{72+i}")
    a("v_mov_b32 v71, v79")
    scan_add(a, 71)
    a(f"v_sub_u32 v80, v71, v79")
    a(f"v_readlane_b32 s54, v71, 63")
    for i in range(1, 8):
        a(f"v_add_u32 v{80+i}, v80, v{71+i}")
    for i in range(8):
        a(f"v_add_u32 v{72+i}, {STAGE}, v{80+i}")
    a(f"""
    v_mov_b32 v88, s54
    v_mov_b32 v89, 2048
    ds_write_b128 v70, v[72:75]
    ds_write_b128 v70, v[76:79] offset:16
    ds_write_b32 v89, v88
    """)
    for i in range(9):
        a(f"v_mul_u32_u24 v{80+i}, s67, v{80+i}")
    for i in range(9):
        a(f"v_lshrrev_b32 v{80+i}, 19, v{80+i}")
    for i in range(9):
        a(f"v_add_u32 v{80+i}, s59, v{80+i}")
    a(f"""
    buffer_store_dwordx4 v[80:83], v70, s[32:35], s57 offen{st}
    buffer_store_dwordx4 v[84:87], v70, s[32:35], s57 offen offset:16{st}
    s_mov_b64 exec, 1
    buffer_store_dword v88, v89, s[32:35], s57 offen{st}
    s_mov_b64 exec, -1
    s_waitcnt lgkmcnt(0)
    """)
    a("K1_SCANNED:")
    a("s_barrier")
    ts.mark()
    a("v_mov_b32 v96, 2048")
    a("ds_read_b32 v97, v96")
    a("s_mov_b64 exec, s[50:51]")
    for i in range(10):
        a(f"ds_read_b32 v{70+i}, v{vKey+i}")
    for i in range(10):
        a(f"v_and_b32 v{vKey+i}, 2, v{vRank+i}")
        a(f"v_sub_u32 v{vRank+i}, v{vRank+i}, v{vKey+i}")
    a("s_waitcnt lgkmcnt(0)")
    for i in range(10):
        a(f"v_add_u32 v{70+i}, v{70+i}, v{vRank+i}")
        a(f"v_sub_u32 v{vKey+i}, v{70+i}, v{vKey+i}")
        a(f"ds_write_b32 v{70+i}, v{vW+i}")
        a(f"ds_write_b16{'_d16_hi' if i % 2 else ''} v{vKey+i}, v{vCos+i//2} offset:8")
    a("s_mov_b64 exec, -1")
    a("v_readfirstlane_b32 s30, v97")
    a(f"v_add_u32 v96, {STAGE}, v94")
    for i in range(1, 4):
        a(f"v_add_u32 v{70+i}, {i*16384}, v94")
    a("s_add_u32 s30, s30, 15")
    a("s_and_b32 s30, s30, -16")
    a("s_waitcnt lgkmcnt(0)")
    a("s_barrier")
    ts.mark()
    for i in range(4):
        a(f"ds_read_b128 v[{4+4*i}:{7+4*i}], v96 offset:{16384 * i}")
    for i in range(4):
        a(f"s_waitcnt lgkmcnt({3 - i})")
        a(f"buffer_store_dwordx4 v[{4+4*i}:{7+4*i}], v{94 if i == 0 else 70+i}, s[28:31], 0 offen{st}")
    if p["ts"]:
        a("s_waitcnt vmcnt(0)")
        ts.mark()
        ts.flush(12, 3)
    a("K1_END:")
    a("s_endpgm")


def k2(a, p):
    DEPTH = p["depth"]
    NU = 24
    NRB = 4
    ts = Stamps(a, p, 1)
    vCoff, vLoff, vSel, vMask = 2, 3, 4, 107
    REC, RING, NRING = 8, 32, DEPTH + 1
    RAW = (REC, 48)
    vLa, vC, vGA, vL, vE, vX, vD = 64, 66, 67, 68, 72, 76, 80
    vBin, vRank = 64, 72
    vM, vS, vWd, vWu, vEo, vR = 88, 108, 97, 99, 104, 120
    vDist, vWs, vWr, vCen, vHi = 32, 35, 36, 37, 38
    vG, vDD, vMkW, vMkR, vRb, vPar = 94, 95, 96, 101, 102, 103

    def zero_quad(r):
        for i in range(4):
            a(f"v_mov_b32 v{r+i}, 0")

    def rbf_block():
        a.comment("radial basis (same bf16 rounding steps as the reference), S = rbf@w_sbf, R = rbf@w_rbf")
        c0, c1, aS, aR = 64, 65, 66, 68
        T0 = 72
        dist, ws_, wr_, cen = vDist, vWs, vWr, vCen
        for i in range(4):
            a(f"v_lshl_or_b32 v{vWd+i}, v{vHi+i}, 16, v{vWd+i}")
        a(f"""
        v_lshl_or_b32 v{aS}, v{vHi+4}, 16, v{ws_}
        v_lshl_or_b32 v{aR}, v{vHi+5}, 16, v{wr_}
        v_lshlrev_b32 v{c0}, 16, v{cen}
        v_and_b32 v{c1}, v{vMask}, v{cen}
        v_mov_b32 v{aS+1}, 0
        v_mov_b32 v{aR+1}, 0
        s_mov_b32 s50, 0xc1200000
        s_mov_b32 s51, 0x3fb8aa3b
        """)
        for t in range(3):
            a(f"v_mov_b32 v{T0+1+4*t}, 0")

        def each(fn):
            for t in range(3):
                fn(t, T0 + 2 + 4 * t, T0 + 3 + 4 * t)

        def rnd():
            each(lambda t, x0, x1: a(f"v_cvt_pk_bf16_f32 v{x0}, v{x0}, v{x1}"))
            each(lambda t, x0, x1: a(f"v_and_b32 v{x1}, v{vMask}, v{x0}"))
            each(lambda t, x0, x1: a(f"v_lshlrev_b32 v{x0}, 16, v{x0}"))

        each(lambda t, x0, x1: a(f"v_lshlrev_b32 v{dist+t}, 16, v{dist+t}"))
        each(lambda t, x0, x1: a(f"v_sub_f32 v{x0}, v{dist+t}, v{c0}\nv_sub_f32 v{x1}, v{dist+t}, v{c1}"))
        rnd()
        each(lambda t, x0, x1: a(f"v_mul_f32 v{x0}, v{x0}, v{x0}\nv_mul_f32 v{x1}, v{x1}, v{x1}"))
        rnd()
        each(lambda t, x0, x1: a(f"v_mul_f32 v{x0}, s50, v{x0}\nv_mul_f32 v{x1}, s50, v{x1}"))
        rnd()
        each(lambda t, x0, x1: a(f"v_mul_f32 v{x0}, s51, v{x0}\nv_mul_f32 v{x1}, s51, v{x1}"))
        each(lambda t, x0, x1: a(f"v_exp_f32 v{x0}, v{x0}\nv_exp_f32 v{x1}, v{x1}"))
        each(lambda t, x0, x1: a(f"v_cvt_pk_bf16_f32 v{T0+4*t}, v{x0}, v{x1}"))
        rd = [32, 84, 44]
        for t in range(3):
            a(f"v_mfma_f32_16x16x16_bf16 v[{rd[t]}:{rd[t]+3}], v[{aR}:{aR+1}], v[{T0+4*t}:{T0+1+4*t}], 0")
        for t in range(3):
            a(f"v_mfma_f32_16x16x16_bf16 v[{vS+4*t}:{vS+4*t+3}], v[{aS}:{aS+1}], v[{T0+4*t}:{T0+1+4*t}], 0")
        for t in range(3):
            a(f"v_cvt_pk_bf16_f32 v{vR+2*t}, v{rd[t]}, v{rd[t]+1}")
            a(f"v_cvt_pk_bf16_f32 v{vR+2*t+1}, v{rd[t]+2}, v{rd[t]+3}")

    def convert(beta, k):
        r = RAW[beta] + 4 * k
        a(f"""
        v_and_b32 v{r+3}, 0x3ff, v{r+1}
        v_lshrrev_b32 v80, 5, v{r+1}
        v_and_b32 v{r+1}, 0x3ff, v{r}
        v_lshrrev_b32 v{r}, 5, v{r}
        v_and_or_b32 v{r+3}, v{r+2}, v{vMask}, v{r+3}
        v_lshl_or_b32 v{r+1}, v{r+2}, 16, v{r+1}
        v_and_b32 v{r+2}, -32, v80
        v_and_b32 v{r}, -32, v{r}
        """)

    def dst(beta, k):
        return (RAW[beta] + 4 * k, RAW[beta] + 4 * k + 2)

    def hist(beta, vm_after):
        off = f" offset:{CNT1}" if beta else ""
        for k in range(NRB):
            if k >= 2:
                a(f"s_cmp_le_u32 s{77+beta}, {64 * k}")
                a(f"s_cbranch_scc1 K2_HISTED{beta}")
            a(f"s_waitcnt vmcnt({NRB - 1 - k + vm_after})")
            if k == 0 and beta == 0:
                ts.mark()
            r = RAW[beta] + 4 * k
            for h in range(2):
                a(f"v_lshrrev_b32 v{vBin+2*k+h}, 15, v{r+h}")
            for h in range(2):
                a(f"v_and_b32 v{vBin+2*k+h}, -4, v{vBin+2*k+h}")
            for h in range(2):
                a(f"v_cmpx_ne_u32 vcc, 0, v{r+h}")
                a(f"ds_add_rtn_u32 v{vRank+2*k+h}, v{vBin+2*k+h}, v126{off}")
                a(f"s_mov_b64 exec, -1")
            convert(beta, k)
        a(f"K2_HISTED{beta}:")
        if beta == 0:
            a(f"s_waitcnt vmcnt({vm_after})")

    def scan(beta):
        a.comment("wave 0: exclusive scan of the bin counters (bytes); null records behind the last real one")
        B = 32 if beta == 0 else 20
        a(f"""
        v_mul_u32_u24 v80, 48, v1
        ds_read_b128 v[{B}:{B+3}], v80 offset:{3072 * beta}
        ds_read_b128 v[{B+4}:{B+7}], v80 offset:{3072 * beta + 16}
        ds_read_b128 v[{B+8}:{B+11}], v80 offset:{3072 * beta + 32}
        v_mov_b32 v82, 0
        v_mov_b32 v83, 0
        s_waitcnt lgkmcnt(0)
        """)
        for i in range(1, 12):
            a(f"v_add_u32 v{B+i}, v{B+i-1}, v{B+i}")
        a(f"v_mov_b32 v81, v{B+11}")
        scan_add(a, 81)
        a(f"v_readlane_b32 s55, v81, 63")
        a(f"v_sub_u32 v81, v81, v{B+11}")
        a(f"v_add_u32 v81, {SORT}, v81")
        for i in range(11, 0, -1):
            a(f"v_add_u32 v{B+i}, v81, v{B+i-1}")
        a(f"v_mov_b32 v{B}, v81")
        a(f"""
        s_add_u32 s56, s55, {SORT}
        v_mov_b32 v84, s55
        v_lshl_add_u32 v81, v1, 2, s56
        ds_write_b128 v80, v[{B}:{B+3}] offset:{3072 * beta}
        ds_write_b128 v80, v[{B+4}:{B+7}] offset:{3072 * beta + 16}
        ds_write_b128 v80, v[{B+8}:{B+11}] offset:{3072 * beta + 32}
        ds_write_b32 v81, v82
        ds_write_b32 v82, v84 offset:{MISC + 16 + 4 * beta}
        """)

    def scatter(beta):
        off = f" offset:{CNT1}" if beta else ""
        a(f"v_mov_b32 v80, 0")
        a(f"ds_read_b32 v81, v80 offset:{MISC + 16 + 4 * beta}")
        for k in range(NRB):
            if k >= 2:
                a(f"s_cmp_le_u32 s{77+beta}, {64 * k}")
                a(f"s_cbranch_scc1 K2_BASES{beta}")
            for h in range(2):
                a(f"ds_read_b32 v{vBin+2*k+h}, v{vBin+2*k+h}{off}")
        a(f"K2_BASES{beta}:")
        a("s_waitcnt lgkmcnt(0)")
        a(f"v_readfirstlane_b32 s{57+beta}, v81")
        for k in range(NRB):
            if k >= 2:
                a(f"s_cmp_le_u32 s{77+beta}, {64 * k}")
                a(f"s_cbranch_scc1 K2_SCATTERED{beta}")
            for h in range(2):
                d = dst(beta, k)[h]
                a(f"v_add_u32 v{vBin+2*k+h}, v{vBin+2*k+h}, v{vRank+2*k+h}")
                a(f"v_cmpx_ne_u32 vcc, 0, v{d}")
                a(f"ds_write_b64 v{vBin+2*k+h}, v[{d}:{d+1}]")
                a(f"s_mov_b64 exec, -1")
        a(f"K2_SCATTERED{beta}:")
        a(f"""
        s_add_u32 s{57+beta}, s{57+beta}, 255
        s_lshr_b32 s{57+beta}, s{57+beta}, 8
        s_sub_u32 s{57+beta}, s{57+beta}, s3
        s_add_u32 s{57+beta}, s{57+beta}, 15
        s_lshr_b32 s{57+beta}, s{57+beta}, 4
        """)

    seq, done = [], set()

    def wait_for(op):
        if op in done:
            return
        i = seq.index(op)
        a(f"s_waitcnt vmcnt({len(seq) - 1 - i})")
        done.update(seq[: i + 1])

    def qperm(kk):
        return f"quad_perm:[{kk},{kk},{kk+2},{kk+2}] row_mask:0xf bank_mask:0xf"

    def issue(u, track=True, ga=None):
        kb, kk, h = u // 4, (u // 2) % 2, u % 2
        slot = RING + 4 * (u % NRING)
        guard = u >= p["guard"]
        if guard:
            a(f"s_cmp_gt_u32 s75, {u}")
            a(f"s_cselect_b64 exec, -1, 1")
        ga = ga or (vGA, 127)[u % 2]
        a(f"v_add_u32_dpp v{ga}, v{REC+4*kb+2*h}, v{vCoff} {qperm(kk)}")
        a(f"buffer_load_dwordx4 v[{slot}:{slot+3}], v{ga}, s[24:27], 0 offen")
        if track:
            seq.append(("G", u))
        if guard:
            a("s_mov_b64 exec, -1")

    def process(u):
        kb, kk, h = u // 4, (u // 2) % 2, u % 2
        slot = RING + 4 * (u % NRING)
        if u % 4 == 0:
            for hh in range(2):
                a(f"v_lshlrev_b32_sdwa v{vLa+hh}, 7, v{REC+4*kb+2*hh+1} dst_sel:DWORD dst_unused:UNUSED_PAD src0_sel:DWORD src1_sel:WORD_0")
        a(f"v_and_b32_dpp v{vC}, v{REC+4*kb+2*h+1}, v{vMask} {qperm(kk)}")
        a(f"v_xor_b32_dpp v{vL}, v{vLa+h}, v{vLoff} {qperm(kk)}")
        wait_for(("G", u))
        if p["no_valu"]:
            return
        for i in range(4):
            a(f"v_cndmask_b32 v{vE+i}, v{slot+i}, v{slot+(i^2)}, s[52:53]")
        for j in range(1, 4):
            a(f"v_xor_b32 v{vL+j}, {8*j}, v{vL}")
        for half in range(2):
            for j in range(4):
                a(f"v_perm_b32 v{vX+j}, v{vE+2*half+1}, v{vE+2*half}, v{vSel+j}")
            if half:
                for j in range(4):
                    a(f"v_xor_b32 v{vL+j}, 32, v{vL+j}")
            for j in range(4):
                a(f"v_mul_f32 v{vX+j}, v{vC}, v{vX+j}")
            for j in range(4):
                a(f"v_cvt_f64_f32 v[{vD+2*j}:{vD+2*j+1}], v{vX+j}")
            for j in range(4):
                if not p["no_ds"]:
                    a(f"ds_add_f64 v{vL+j}, v[{vD+2*j}:{vD+2*j+1}] offset:{ACC}")

    a.raw(".globl acc_kernel\n.p2align 8\n.type acc_kernel,@function\nacc_kernel:")
    a(f"""
    s_cmp_ge_u32 s2, {NB}
    s_cbranch_scc1 K2_END
    s_load_dwordx2 s[22:23], s[0:1], 104
    s_load_dwordx2 s[4:5], s[0:1], 0
    s_load_dwordx2 s[6:7], s[0:1], 24
    s_load_dwordx2 s[8:9], s[0:1], 40
    s_load_dwordx4 s[12:15], s[0:1], 56
    s_load_dwordx4 s[16:19], s[0:1], 72
    s_load_dwordx2 s[20:21], s[0:1], 88
    """)
    ts.mark()
    a(f"""
    v_and_b32 v1, 63, v0
    v_lshrrev_b32 v64, 6, v0
    s_and_b32 s64, s2, 7
    s_lshl_b32 s64, s64, 5
    v_readfirstlane_b32 s3, v64
    s_lshr_b32 s65, s2, 3
    s_or_b32 s64, s64, s65
    v_and_b32 v68, 15, v1
    v_lshrrev_b32 v69, 4, v1
    v_mul_u32_u24 v65, {OFFROW}, v68
    s_mul_i32 s65, s3, {16 * OFFROW}
    s_lshl_b32 s66, s64, 3
    v_lshl_add_u32 v65, v69, 2, v65
    s_add_u32 s65, s65, s66
    v_mov_b32 v66, 0
    v_mov_b32 v67, 0
    s_waitcnt lgkmcnt(0)
    """)
    srd(a, 32, 22, NCH * OFFROW, add=str(p["ws_rec"] + NCH * CH_STRIDE))
    a(f"""
    s_mov_b32 exec_hi, 0
    buffer_load_dwordx2 v[66:67], v65, s[32:35], s65 offen
    s_mov_b32 exec_hi, -1
    """)
    srd(a, 24, 4, E * 32)
    srd(a, 36, 6, E * 2)
    srd(a, 40, 20, E * 32)
    srd(a, 28, 22, NCH * CHG, add=str(p["ws_rec"]))
    a(f"s_or_b32 s29, s29, {12 << 16}")
    a(f"""
    s_mul_i32 s67, s64, {BS}
    s_lshl_b32 s68, s3, 4
    v_add_u32 v70, s68, v68
    v_lshlrev_b32 v71, 3, v69
    v_mov_b32 v74, 0x80000000
    """)
    for t in range(3):
        a(f"""
        v_add_u32 v72, {256 * t}, v70
        v_cmp_gt_u32 vcc, {BS}, v72
        v_add_u32 v72, s67, v72
        v_lshl_add_u32 v73, v72, 5, v71
        v_lshlrev_b32 v72, 1, v72
        v_cndmask_b32 v{vEo+t}, v74, v73, vcc
        v_cndmask_b32 v72, v74, v72, vcc
        buffer_load_dwordx2 v[{vM+2*t}:{vM+2*t+1}], v{vEo+t}, s[24:27], 0 offen
        buffer_load_ushort v{vDist+t}, v72, s[36:39], 0 offen
        """)
    a(f"""
    v_lshlrev_b32 v72, 1, v68
    v_lshl_add_u32 v73, v69, 7, v72
    v_lshl_add_u32 v72, v69, 6, v72
    v_lshlrev_b32 v74, 2, v69
    global_load_ushort v{vWd}, v73, s[16:17]
    global_load_ushort v{vHi}, v73, s[16:17] offset:32
    global_load_ushort v{vWd+1}, v73, s[16:17] offset:64
    global_load_ushort v{vHi+1}, v73, s[16:17] offset:96
    global_load_ushort v{vWu}, v73, s[18:19]
    global_load_ushort v{vHi+2}, v73, s[18:19] offset:32
    global_load_ushort v{vWu+1}, v73, s[18:19] offset:64
    global_load_ushort v{vHi+3}, v73, s[18:19] offset:96
    global_load_ushort v{vWs}, v72, s[14:15]
    global_load_ushort v{vHi+4}, v72, s[14:15] offset:32
    global_load_ushort v{vWr}, v72, s[12:13]
    global_load_ushort v{vHi+5}, v72, s[12:13] offset:32
    global_load_dword v{vCen}, v74, s[8:9]
    """)
    NPRE = 6 + 13
    zero_quad(76)
    a(f"""
    v_lshlrev_b32 v72, 4, v0
    v_add_u32 v73, 0x10000, v72
    s_lshl_b32 s69, s3, 11
    s_add_u32 s69, s69, {SORT}
    v_lshl_add_u32 v{vMkR}, v1, 2, s69
    v_lshl_add_u32 v{vMkW}, v1, 4, s69
    v_cmp_gt_u32 vcc, {(SORT - 81920) // 16}, v0
    ds_write_b128 v72, v[76:79]
    ds_write_b128 v72, v[76:79] offset:16384
    ds_write_b128 v72, v[76:79] offset:32768
    ds_write_b128 v72, v[76:79] offset:49152
    ds_write_b128 v73, v[76:79]
    ds_write_b128 v{vMkW}, v[76:79]
    ds_write_b128 v{vMkW}, v[76:79] offset:1024
    s_mov_b64 exec, vcc
    ds_write_b128 v73, v[76:79] offset:16384
    s_mov_b64 exec, -1
    """)
    a(f"""
    v_and_b32 v72, 1, v1
    v_bfe_u32 v73, v1, 1, 3
    v_lshlrev_b32 v{vCoff}, 4, v72
    v_lshlrev_b32 v{vLoff}, 6, v72
    v_subrev_u32 v{vCoff}, 32, v{vCoff}
    v_lshl_add_u32 v{vLoff}, v73, 3, v{vLoff}
    v_mov_b32 v{vMask}, 0xffff0000
    v_mov_b32 v126, 8
    s_mov_b32 s70, 0x02020000
    s_mov_b32 s71, 0x01000c0c
    s_mov_b32 s52, 0xff00ff00
    s_mov_b32 s53, 0xff00ff00
    v_lshrrev_b32 v74, 1, v1
    v_lshlrev_b32 v74, 3, v74
    v_lshl_add_u32 v{vRb}, v72, 13, v74
    s_lshl_b32 s54, s3, 8
    s_add_u32 s54, s54, {SORT}
    v_lshlrev_b32 v{vPar}, 1, v72
    v_and_b32 v73, 3, v73
    v_add_u32 v{vRb}, s54, v{vRb}
    """)
    for j in range(4):
        a(f"v_xor_b32 v74, {j}, v73")
        a(f"v_mul_lo_u32 v74, v74, s70")
        a(f"v_add_u32 v{vSel+j}, s71, v74")
    a("s_waitcnt lgkmcnt(0)")
    a("s_barrier")
    a(f"s_waitcnt vmcnt({NPRE})")
    ts.mark()
    a(f"""
    v_sub_u32 v67, v67, v66
    v_mov_b32 v73, v67
    """)
    for sh in (1, 2, 4, 8):
        a(f"v_add_u32_dpp v73, v73, v73 row_shr:{sh} row_mask:0xf bank_mask:0xf bound_ctrl:0")
    a(f"""
    s_mov_b32 s72, 0x80000000
    v_readlane_b32 s73, v73, 15
    v_readlane_b32 s79, v73, 31
    v_sub_u32 v{vG}, v73, v67
    v_sub_u32 v{vDD}, v66, v{vG}
    v_writelane_b32 v{vG}, s73, 32
    v_writelane_b32 v{vG}, s79, 48
    v_writelane_b32 v{vDD}, s72, 32
    v_writelane_b32 v{vDD}, s72, 48
    s_mov_b32 s74, 0
    """)
    a("K2_ROUND:")
    a(f"""
    s_sub_u32 s77, s73, s74
    s_sub_u32 s78, s79, s74
    s_max_i32 s77, s77, 0
    s_max_i32 s78, s78, 0
    v_subrev_u32 v72, s74, v{vG}
    v_and_b32 v73, 16, v1
    v_max_i32 v72, 0, v72
    v_lshlrev_b32 v73, 6, v73
    v_cmp_gt_u32 vcc, {64 * NRB}, v72
    v_lshl_add_u32 v72, v72, 2, s69
    v_add_u32 v72, v72, v73
    s_mov_b32 exec_lo, vcc_lo
    s_and_b32 exec_hi, vcc_hi, 0x10001
    ds_max_u32 v72, v{vDD}
    s_mov_b64 exec, -1
    v_add_u32 v72, s74, v1
    """)
    MKT = 64
    NM = 2 * NRB
    for k in range(NM):
        a(f"ds_read_b32 v{MKT+k}, v{vMkR} offset:{256*k}")
    a("s_waitcnt lgkmcnt(0)")
    for sh in (1, 2, 4, 8):
        for k in range(NM):
            a(f"v_max_u32_dpp v{MKT+k}, v{MKT+k}, v{MKT+k} row_shr:{sh} row_mask:0xf bank_mask:0xf bound_ctrl:0")
    for k in range(NM):
        a(f"v_max_u32_dpp v{MKT+k}, v{MKT+k}, v{MKT+k} row_bcast:15 row_mask:0xa bank_mask:0xf")
    for k in range(NM):
        a(f"v_max_u32_dpp v{MKT+k}, v{MKT+k}, v{MKT+k} row_bcast:31 row_mask:0xc bank_mask:0xf")
    for beta in range(2):
        for k in range(NRB - 1):
            a(f"v_readlane_b32 s{44+3*beta+k}, v{MKT+NRB*beta+k}, 63")
    for beta in range(2):
        for k in range(1, NRB - 1):
            a(f"s_max_u32 s{44+3*beta+k}, s{44+3*beta+k}, s{43+3*beta+k}")
    for beta in range(2):
        for k in range(NRB):
            m = MKT + NRB * beta + k
            if k:
                a(f"v_max_u32 v{m}, s{43+3*beta+k}, v{m}")
                if k == 1:
                    a(f"v_add3_u32 v{m}, v{m}, v72, 64")
                else:
                    a(f"v_add_u32 v{m}, {64 * k}, v{m}")
                    a(f"v_add_u32 v{m}, v{m}, v72")
            else:
                a(f"v_add_u32 v{m}, v{m}, v72")
            r = RAW[beta] + 4 * k
            if beta == 0:
                a(f"buffer_load_dwordx3 v[{r}:{r+2}], v{m}, s[28:31], 0 idxen")
            else:
                a(f"v_mov_b32 v{r}, v{m}")

    def load_raw1():
        for k in range(NRB):
            r = RAW[1] + 4 * k
            a(f"buffer_load_dwordx3 v[{r}:{r+2}], v{r}, s[28:31], 0 idxen")

    a(f"""
    s_cmp_lg_u32 s74, 0
    s_cbranch_scc0 K2_FIRST
    """)
    load_raw1()
    a(f"""
    s_branch K2_UNSORTED
    K2_FIRST:
    s_waitcnt vmcnt({NRB})
    """)
    rbf_block()
    if p["late1"] == 0:
        load_raw1()
    a(f"""
    s_max_u32 s55, s73, s79
    s_cmp_gt_u32 s55, {64 * NRB}
    s_cselect_b32 s55, 0x100000, 0
    s_add_u32 s55, s55, s73
    v_mov_b32 v80, 0
    v_mov_b32 v82, s55
    v_mov_b32 v83, s79
    s_mov_b64 exec, 1
    ds_add_u32 v80, v82 offset:{MISC}
    ds_add_u32 v80, v83 offset:{MISC + 4}
    s_mov_b64 exec, -1
    """)
    hist(0, NRB if p["late1"] == 0 else 0)
    if p["late1"]:
        load_raw1()
    a("s_waitcnt lgkmcnt(0)")
    a("s_barrier")
    ts.mark()
    a(f"""
    v_mov_b32 v84, 0
    ds_read_b64 v[86:87], v84 offset:{MISC}
    s_cmp_lg_u32 s3, 0
    s_cbranch_scc1 K2_SCANNED0
    """)
    scan(0)
    a("K2_SCANNED0:")
    a(f"""
    s_waitcnt lgkmcnt(0)
    v_readfirstlane_b32 s55, v86
    v_readfirstlane_b32 s56, v87
    s_barrier
    s_sub_u32 s55, s55, {16 * 16 * DEPTH + 128}
    s_cmp_gt_u32 s55, {SORTCAP // 2 - 16 * 16 * DEPTH - 128 if not p['force_fb'] else 0}
    s_cbranch_scc1 K2_UNSORTED0
    s_cmp_gt_u32 s56, {SORTCAP // 2}
    s_cbranch_scc1 K2_UNSORTED0
    """)
    scatter(0)
    a("s_waitcnt lgkmcnt(0)")
    a("s_barrier")
    ts.mark()
    for k in range(3):
        for h in range(2):
            a(f"ds_read_b64 v[{REC+4*k+2*h}:{REC+4*k+2*h+1}], v{vRb} offset:{16384 * k + 4096 * h}")
    a("s_waitcnt lgkmcnt(4)")
    issue(0, track=False, ga=127)
    hist(1, 1)
    a("s_waitcnt lgkmcnt(0)")
    a("s_barrier")
    a(f"""
    s_cmp_lg_u32 s3, 0
    s_cbranch_scc1 K2_SCANNED1
    """)
    scan(1)
    a("K2_SCANNED1:")
    issue(1, track=False, ga=127)
    a("s_waitcnt lgkmcnt(0)")
    a("s_barrier")
    scatter(1)
    issue(2, track=False, ga=127)
    a(f"""
    s_lshl_b32 s55, s57, 12
    s_add_u32 s75, s57, s58
    v_subrev_u32 v80, s55, v{vRb}
    v_subrev_u32 v82, s57, v{vPar}
    v_add_u32 v81, 0x10000, v80
    s_waitcnt lgkmcnt(0)
    s_barrier
    """)
    for k in range(6):
        for h in range(2):
            u0 = 4 * k + h
            if u0 + 2 < DEPTH:
                continue
            base, off = (80, 16384 * k + 4096 * h) if k < 4 else (81, 16384 * (k - 4) + 4096 * h)
            a(f"v_cmpx_le_i32 vcc, {-u0}, v82")
            a(f"ds_read_b64 v[{REC+4*k+2*h}:{REC+4*k+2*h+1}], v{base} offset:{off}")
            a(f"s_mov_b64 exec, -1")
    a("s_mov_b32 s76, 2")
    a("s_waitcnt lgkmcnt(0)")
    a("s_branch K2_LOOP")
    a("K2_UNSORTED:")
    a("s_waitcnt vmcnt(0)")
    for k in range(NRB):
        convert(0, k)
    a("K2_UNSORTED0:")
    a("s_waitcnt vmcnt(0)")
    a("s_mov_b32 s76, 0")
    a("s_mov_b32 s75, s77")
    a("K2_UNSORTED_GO:")
    a(f"""
    s_add_u32 s75, s75, 63
    s_lshr_b32 s75, s75, 6
    s_min_u32 s75, s75, {NRB}
    s_lshl_b32 s75, s75, 2
    """)
    for u in range(DEPTH):
        issue(u)
    a("K2_LOOP:")
    ts.mark()
    prio = {int(x.split(":")[0]): int(x.split(":")[1]) for x in p["prio"].split(",") if x}
    for u in range(NU):
        if u in prio:
            a(f"s_setprio {prio[u]}")
        if u + DEPTH < NU:
            issue(u + DEPTH)
        process(u)
        if u < NU - 1:
            a(f"s_cmp_le_u32 s75, {u+1}")
            a(f"s_cbranch_scc1 K2_LOOPED")
    a("K2_LOOPED:")
    a(f"""
    s_waitcnt vmcnt(0)
    s_cmp_eq_u32 s76, 2
    s_cbranch_scc1 K2_DONE
    s_cmp_eq_u32 s76, 1
    s_cbranch_scc1 K2_NEXT_ROUND
    """)
    for k in range(NRB):
        convert(1, k)
    for i in range(4 * NRB):
        a(f"v_mov_b32 v{REC+i}, v{RAW[1]+i}")
    a(f"""
    s_mov_b32 s76, 1
    s_mov_b32 s75, s78
    s_branch K2_UNSORTED_GO
    K2_NEXT_ROUND:
    s_add_u32 s74, s74, {64 * NRB}
    s_max_u32 s55, s73, s79
    s_cmp_ge_u32 s74, s55
    s_cbranch_scc1 K2_DONE
    """)
    zero_quad(76)
    a(f"""
    ds_write_b128 v{vMkW}, v[76:79]
    ds_write_b128 v{vMkW}, v[76:79] offset:1024
    s_branch K2_ROUND
    """)
    a("K2_DONE:")
    a(f"""
    v_mov_b32 v32, v{vWd}
    v_mov_b32 v33, v{vWd+1}
    v_mov_b32 v34, v{vWd}
    v_mov_b32 v35, v{vWd+1}
    v_mov_b32 v36, v{vWu}
    v_mov_b32 v37, v{vWu+1}
    v_mov_b32 v38, v{vWu}
    v_mov_b32 v39, v{vWu+1}
    v_and_b32 v64, 15, v1
    v_lshrrev_b32 v65, 4, v1
    v_lshlrev_b32 v64, 7, v64
    s_lshl_b32 s46, s3, 11
    v_lshl_add_u32 v64, v65, 5, v64
    v_add_u32 v64, s46, v64
    v_add_u32 v65, 0x10000, v64
    """)
    a("s_waitcnt lgkmcnt(0)")
    a("s_barrier")
    ts.mark()
    vA = 8
    for t in range(3):
        base, off = (64, 32768 * t + ACC) if t < 2 else (65, ACC)
        a(f"ds_read_b128 v[{vA+8*t}:{vA+8*t+3}], v{base} offset:{off}")
        a(f"ds_read_b128 v[{vA+8*t+4}:{vA+8*t+7}], v{base} offset:{off+16}")

    def split(f, b):
        a(f"v_cvt_pk_bf16_f32 v{b}, v{f}, v{f+1}")
        a(f"v_cvt_pk_bf16_f32 v{b+1}, v{f+2}, v{f+3}")
        a(f"v_lshlrev_b32 v{b+2}, 16, v{b}")
        a(f"v_and_b32 v{b+3}, v{vMask}, v{b}")
        a(f"v_sub_f32 v{f}, v{f}, v{b+2}")
        a(f"v_sub_f32 v{f+1}, v{f+1}, v{b+3}")
        a(f"v_lshlrev_b32 v{b+2}, 16, v{b+1}")
        a(f"v_and_b32 v{b+3}, v{vMask}, v{b+1}")
        a(f"v_sub_f32 v{f+2}, v{f+2}, v{b+2}")
        a(f"v_sub_f32 v{f+3}, v{f+3}, v{b+3}")
        a(f"v_cvt_pk_bf16_f32 v{b+2}, v{f}, v{f+1}")
        a(f"v_cvt_pk_bf16_f32 v{b+3}, v{f+2}, v{f+3}")

    def fb(t):
        return (68 + 4 * t, [80, 84, 40][t])
    for t in range(3):
        f, b = fb(t)
        a(f"s_waitcnt lgkmcnt({4 - 2 * t})")
        for i in range(4):
            a(f"v_cvt_f32_f64 v{f+i}, v[{vA+8*t+2*i}:{vA+8*t+2*i+1}]")
        split(f, b)
        a(f"v_mfma_f32_16x16x32_bf16 v[{vA+8*t}:{vA+8*t+3}], v[32:35], v[{b}:{b+3}], 0")
    for t in range(3):
        f, b = fb(t)
        for i in range(4):
            a(f"v_mul_f32 v{f+i}, v{vA+8*t+i}, v{vS+4*t+i}")
        split(f, b)
        a(f"v_mfma_f32_16x16x32_bf16 v[{vA+8*t+4}:{vA+8*t+7}], v[36:39], v[{b}:{b+3}], 0")
    for t in range(3):
        f, b = fb(t)
        a(f"v_lshlrev_b32 v{f}, 16, v{vM+2*t}")
        a(f"v_and_b32 v{f+1}, v{vMask}, v{vM+2*t}")
        a(f"v_lshlrev_b32 v{f+2}, 16, v{vM+2*t+1}")
        a(f"v_and_b32 v{f+3}, v{vMask}, v{vM+2*t+1}")
        a(f"v_lshlrev_b32 v{b}, 16, v{vR+2*t}")
        a(f"v_and_b32 v{b+1}, v{vMask}, v{vR+2*t}")
        a(f"v_lshlrev_b32 v{b+2}, 16, v{vR+2*t+1}")
        a(f"v_and_b32 v{b+3}, v{vMask}, v{vR+2*t+1}")
        for i in range(4):
            a(f"v_fmac_f32 v{f+i}, v{vA+8*t+4+i}, v{b+i}")
        a(f"v_cvt_pk_bf16_f32 v{b}, v{f}, v{f+1}")
        a(f"v_cvt_pk_bf16_f32 v{b+1}, v{f+2}, v{f+3}")
        a(f"buffer_store_dwordx2 v[{b}:{b+1}], v{vEo+t}, s[40:43], 0 offen")
    if p["ts"]:
        a("s_waitcnt vmcnt(0)")
        ts.mark()
        ts.flush(22, 3)
    a("K2_END:")
    a("s_endpgm")


def build(p):
    a = Asm()
    k1(a, p)
    a.hist = []
    k2(a, p)
    sg = 100 if p["ts"] else 80
    extra = ""
    if p["diag"]:
        from diag import diag_kernel
        f = p["diag"].split(",")
        a.raw(diag_kernel((int(f[0]), int(f[1]), f[2], int(f[3]), int(f[4]), f[5]), p["mult"]))
        extra += ".p2align 6\n" + kd("diag_kernel", 32, 32)
    return header(p) + a.text() + '.section .rodata,"a"\n.p2align 6\n' + kd("bin_kernel", 104, sg) + ".p2align 6\n" + kd("acc_kernel", 128, sg) + extra


if __name__ == "__main__":
    ap = argparse.ArgumentParser()
    ap.add_argument("-o", default="standalone__molecular_angular_gemnet__graph.s")
    ap.add_argument("kv", nargs="*")
    args = ap.parse_args()
    p = dict(P)
    for kv in args.kv:
        k, v = kv.split("=")
        p[k] = v.replace("+", " ") if not isinstance(P[k], int) else int(v, 0)
    open(args.o, "w").write(build(p))
```

```python
import argparse
from emit import Asm
from gen1 import kd, scan_add

NAME = "standalone__molecular_angular_gemnet__graph_kernel"
E, T = 160000, 2560000
NB, BS = 256, 625
NCH, CH = 256, 10000
CHG = 5280
CH_STRIDE = CHG * 12
OFFROW = 2048
HALF = 626 * 128 - 1

P = dict(ws_rec=0, ld_pol="nt", depth=3, ts=0, no_ds=0, no_valu=0, prio="0:3,5:2,10:1,15:0",
         diag="", mult=10, guard=16, force_fb=0, sleep=2, out_pol="", tsel="start,histA,scanA,scatA,pub,ready,end", tswave=0)

CNT1 = 3072 - 626 * 4
MISC = 6144
ACC = 6400
SORT = ACC + 81920
SORTCAP = 6144
STAGE = SORT
ACNT = STAGE + 65536
WL = ACNT + 2080
LDS = WL + 1552

sM, sIn, sOutI, sDist, sAng, sCen, sFreq, sWr = 4, 6, 8, 10, 12, 14, 16, 18
sWs, sWd, sWu, sOut, sDbg, sWsp = 20, 22, 24, 26, 28, 30
rIn, rOutI, rAng, rRecW, rOff, rM, rDist, rOut, rRecR = 32, 36, 40, 44, 48, 52, 56, 60, 64
sAct, sSwap = 68, 70
sWave, sBkt, sF, sT0, sT1, sT2, sT3 = 3, 72, 73, 74, 75, 76, 77
sTot0, sTot1, sBase, sRem0, sRem1, sN0, sN1, sSteps, sPhase, sMk = 78, 79, 80, 81, 82, 83, 84, 85, 86, 87
sTS = 88

vMask, vM, vWd, vWu, vS, vR = 96, 98, 104, 106, 108, 120
vEnt = 72
vEo = (97, 126, 127)
vDist = 108


def srd(a, d, lo, nbytes, add=None, stride=0):
    if add is None:
        a(f"s_mov_b32 s{d}, s{lo}")
        a(f"s_and_b32 s{d+1}, s{lo+1}, 0xffff")
    else:
        a(f"s_add_u32 s{d}, s{lo}, {add}")
        a(f"s_addc_u32 s{d+1}, s{lo+1}, 0")
        a(f"s_and_b32 s{d+1}, s{d+1}, 0xffff")
    if stride:
        a(f"s_or_b32 s{d+1}, s{d+1}, {stride << 16}")
    a(f"s_mov_b32 s{d+2}, {nbytes}")
    a(f"s_mov_b32 s{d+3}, 0x20000")


class Stamps:
    def __init__(self, a, p):
        self.a, self.on, self.n = a, p["ts"], 0
        self.sel = p["tsel"].split(",")
        self.wave = p["tswave"]

    def mark(self, name):
        if self.on and name in self.sel:
            op = "s_memtime" if self.on == 2 else "s_memrealtime"
            k = self.sel.index(name)
            self.a(f"{op} s[{sTS+2*k}:{sTS+2*k+1}]")

    def flush(self):
        if not self.on:
            return
        a = self.a
        a(f"""
        s_waitcnt lgkmcnt(0)
        s_cmp_lg_u32 s{sWave}, {self.wave}
        s_cbranch_scc1 TS_DONE
        s_lshl_b32 s4, s2, 6
        s_add_u32 s4, s4, {200 << 20}
        s_add_u32 s6, s{sWsp}, s4
        s_addc_u32 s7, s{sWsp+1}, 0
        v_lshlrev_b32 v2, 3, v1
        v_mov_b32 v4, 0
        v_mov_b32 v5, 0
        """)
        for k in range(len(self.sel)):
            a(f"v_writelane_b32 v4, s{sTS+2*k}, {k}")
        a("""
        s_mov_b64 exec, 0xff
        global_store_dwordx2 v2, v[4:5], s[6:7]
        TS_DONE:
        """)


def zero_quad(a, r):
    for i in range(4):
        a(f"v_mov_b32 v{r+i}, 0")


def rbf_block(a, b):
    a.comment("radial basis (same bf16 rounding steps as the reference), S = rbf@w_sbf, R = rbf@w_rbf")
    c0, c1, aS, aR, T0 = b, b + 1, b + 2, b + 4, b + 8
    a(f"""
    v_lshlrev_b32 v{T0}, 3, v95
    v_lshrrev_b32 v{T0+1}, 4, v95
    v_and_b32 v{T0+2}, 63, v{T0}
    v_add_u32 v{T0}, {WL}, v{T0}
    v_lshl_add_u32 v{T0+2}, v{T0+1}, 6, v{T0+2}
    v_lshlrev_b32 v{T0+1}, 2, v{T0+1}
    v_add_u32 v{T0+2}, {WL + 1024}, v{T0+2}
    v_add_u32 v{T0+1}, {WL + 1536}, v{T0+1}
    ds_read_b64_tr_b16 v[{vWd}:{vWd+1}], v{T0}
    ds_read_b64_tr_b16 v[{vWu}:{vWu+1}], v{T0} offset:512
    ds_read_b64_tr_b16 v[{aS}:{aS+1}], v{T0+2}
    ds_read_b64_tr_b16 v[{aR}:{aR+1}], v{T0+2} offset:256
    ds_read_b32 v{c1}, v{T0+1}
    s_mov_b32 s{sT0}, 0xc1200000
    s_mov_b32 s{sT1}, 0x3fb8aa3b
    s_waitcnt lgkmcnt(0)
    v_lshlrev_b32 v{c0}, 16, v{c1}
    v_and_b32 v{c1}, v{vMask}, v{c1}
    """)
    for t in range(3):
        a(f"v_mov_b32 v{T0+1+4*t}, 0")

    def each(fn):
        for t in range(3):
            fn(t, T0 + 2 + 4 * t, T0 + 3 + 4 * t)

    def rnd():
        each(lambda t, x0, x1: a(f"v_cvt_pk_bf16_f32 v{x0}, v{x0}, v{x1}"))
        each(lambda t, x0, x1: a(f"v_and_b32 v{x1}, v{vMask}, v{x0}"))
        each(lambda t, x0, x1: a(f"v_lshlrev_b32 v{x0}, 16, v{x0}"))

    each(lambda t, x0, x1: a(f"v_lshlrev_b32 v{vDist+t}, 16, v{vDist+t}"))
    each(lambda t, x0, x1: a(f"v_sub_f32 v{x0}, v{vDist+t}, v{c0}\nv_sub_f32 v{x1}, v{vDist+t}, v{c1}"))
    rnd()
    each(lambda t, x0, x1: a(f"v_mul_f32 v{x0}, v{x0}, v{x0}\nv_mul_f32 v{x1}, v{x1}, v{x1}"))
    rnd()
    each(lambda t, x0, x1: a(f"v_mul_f32 v{x0}, s{sT0}, v{x0}\nv_mul_f32 v{x1}, s{sT0}, v{x1}"))
    rnd()
    each(lambda t, x0, x1: a(f"v_mul_f32 v{x0}, s{sT1}, v{x0}\nv_mul_f32 v{x1}, s{sT1}, v{x1}"))
    each(lambda t, x0, x1: a(f"v_exp_f32 v{x0}, v{x0}\nv_exp_f32 v{x1}, v{x1}"))
    each(lambda t, x0, x1: a(f"v_cvt_pk_bf16_f32 v{T0+4*t}, v{x0}, v{x1}"))
    for t in range(3):
        a(f"v_mfma_f32_16x16x16_bf16 v[{vS+4*t}:{vS+4*t+3}], v[{aS}:{aS+1}], v[{T0+4*t}:{T0+1+4*t}], 0")
    a(f"v_mfma_f32_16x16x16_bf16 v[{T0+12}:{T0+15}], v[{aR}:{aR+1}], v[{T0+8}:{T0+9}], 0")
    a(f"s_nop 3")
    a(f"v_mfma_f32_16x16x16_bf16 v[{T0+8}:{T0+11}], v[{aR}:{aR+1}], v[{T0+4}:{T0+5}], 0")
    a(f"s_nop 3")
    a(f"v_mfma_f32_16x16x16_bf16 v[{T0+4}:{T0+7}], v[{aR}:{aR+1}], v[{T0}:{T0+1}], 0")
    for t in (2, 1, 0):
        a(f"v_cvt_pk_bf16_f32 v{vR+2*t}, v{T0+4+4*t}, v{T0+5+4*t}")
        a(f"v_cvt_pk_bf16_f32 v{vR+2*t+1}, v{T0+6+4*t}, v{T0+7+4*t}")


def phase_a(a, p, ts):
    ld = (" " + p["ld_pol"]) if p["ld_pol"] else ""
    vO, vI, vAn, vKey, vRank, vW, vCos = 4, 14, 24, 30, 40, 50, 60
    vZ, vT16 = 84, 94
    a(f"""
    s_cmp_ge_u32 s2, {NCH}
    s_cbranch_scc1 K_END
    s_load_dwordx16 s[4:19], s[0:1], 0
    s_load_dwordx8 s[20:27], s[0:1], 64
    s_load_dwordx4 s[28:31], s[0:1], 96
    v_lshlrev_b32 v1, 3, v0
    v_lshlrev_b32 v2, 2, v0
    v_lshlrev_b32 v{vT16}, 4, v0
    v_lshrrev_b32 v70, 6, v0
    v_and_b32 v95, 63, v0
    s_mul_i32 s{rM}, s2, {CH * 4}
    s_mul_i32 s{rOut}, s2, {CH * 2}
    v_cmp_gt_u32 vcc, 1000, v0
    v_readfirstlane_b32 s{sWave}, v70
    """)
    so4 = [rM, rM + 1, rM + 2, rM + 3, rDist]
    so2 = [rOut, rOut + 1, rOut + 2, rOut + 3, rDist + 1]
    for j in range(1, 5):
        a(f"s_add_u32 s{so4[j]}, s{rM}, {8000*j}")
        a(f"s_add_u32 s{so2[j]}, s{rOut}, {4000*j}")
    a(f"s_mov_b64 s[{sAct}:{sAct+1}], vcc")
    zero_quad(a, vZ)
    a(f"""
    v_add_u32 v71, {ACNT}, v{vT16}
    v_cmp_gt_u32 vcc, {(WL - ACNT) // 16}, v0
    v_mov_b32 v3, 6
    v_mov_b32 v29, {ACNT}
    s_mov_b64 exec, vcc
    ds_write_b128 v71, v[{vZ}:{vZ+3}]
    s_mov_b64 exec, -1
    s_waitcnt lgkmcnt(0)
    s_barrier
    """)
    srd(a, rOutI, sOutI, T * 4)
    srd(a, rIn, sIn, T * 4)
    srd(a, rAng, sAng, T * 2)
    a(f"s_load_dword s{sF}, s[{sFreq}:{sFreq+1}], 0")
    srd(a, rOff, sWsp, NCH * OFFROW, add=str(p["ws_rec"] + NCH * CH_STRIDE))
    a(f"""
    s_mul_i32 s{sTot1}, s2, {OFFROW}
    s_cmp_lg_u32 s{sWave}, 0
    s_cbranch_scc1 KA_CLEARED
    buffer_store_dwordx4 v[{vZ}:{vZ+3}], v{vT16}, s[{rOff}:{rOff+3}], s{sTot1} offen sc1
    buffer_store_dwordx4 v[{vZ}:{vZ+3}], v{vT16}, s[{rOff}:{rOff+3}], s{sTot1} offen offset:1024 sc1
    KA_CLEARED:
    """)
    a(f"""
    s_cmp_lg_u32 s{sWave}, 1
    s_cbranch_scc1 KA_NO_WEIGHTS
    v_lshlrev_b32 v70, 4, v95
    v_and_b32 v71, 0x1ff, v70
    s_mov_b32 exec_hi, 0
    global_load_dwordx4 v[76:79], v71, s[{sWd}:{sWd+1}]
    s_mov_b32 exec_lo, 0
    s_mov_b32 exec_hi, -1
    global_load_dwordx4 v[76:79], v71, s[{sWu}:{sWu+1}]
    v_and_b32 v71, 0xff, v70
    s_mov_b32 exec_hi, 1
    global_load_dwordx4 v[80:83], v71, s[{sCen}:{sCen+1}]
    s_mov_b64 exec, -1
    v_and_b32 v71, 0xff, v70
    s_mov_b64 exec, 0xffff
    global_load_dwordx4 v[80:83], v71, s[{sWs}:{sWs+1}]
    s_mov_b32 exec_lo, 0xffff0000
    global_load_dwordx4 v[80:83], v71, s[{sWr}:{sWr+1}]
    s_mov_b64 exec, -1
    KA_NO_WEIGHTS:
    """)
    a(f"s_mov_b64 exec, s[{sAct}:{sAct+1}]")
    for j in range(5):
        a(f"buffer_load_dwordx2 v[{vO+2*j}:{vO+2*j+1}], v1, s[{rOutI}:{rOutI+3}], s{so4[j]} offen{ld}")
        a(f"buffer_load_dwordx2 v[{vI+2*j}:{vI+2*j+1}], v1, s[{rIn}:{rIn+3}], s{so4[j]} offen{ld}")
    for j in range(5):
        a(f"buffer_load_dword v{vAn+j}, v2, s[{rAng}:{rAng+3}], s{so2[j]} offen{ld}")
    a("s_mov_b64 exec, -1")
    ts.mark("start")
    a(f"""
    v_add_u32 v70, {STAGE}, v{vT16}
    v_add_u32 v71, 0x10000, v{vT16}
    v_cmp_gt_u32 vcc, {(SORT - 81920) // 16}, v0
    ds_write_b128 v70, v[{vZ}:{vZ+3}]
    ds_write_b128 v70, v[{vZ}:{vZ+3}] offset:16384
    ds_write_b128 v70, v[{vZ}:{vZ+3}] offset:32768
    ds_write_b128 v70, v[{vZ}:{vZ+3}] offset:49152
    ds_write_b128 v{vT16}, v[{vZ}:{vZ+3}]
    ds_write_b128 v{vT16}, v[{vZ}:{vZ+3}] offset:16384
    ds_write_b128 v{vT16}, v[{vZ}:{vZ+3}] offset:32768
    ds_write_b128 v{vT16}, v[{vZ}:{vZ+3}] offset:49152
    ds_write_b128 v71, v[{vZ}:{vZ+3}]
    s_mov_b64 exec, vcc
    ds_write_b128 v71, v[{vZ}:{vZ+3}] offset:16384
    s_mov_b64 exec, -1
    """)

    def epilogue_operands():
        a.comment("epilogue operands of this workgroup's bucket: lane = (n = lane&15 edge in tile, g = lane>>4 feature group)")
        a(f"""
        s_and_b32 s{sBkt}, s2, 7
        s_lshl_b32 s{sBkt}, s{sBkt}, 5
        s_lshr_b32 s{sT0}, s2, 3
        s_or_b32 s{sBkt}, s{sBkt}, s{sT0}
        s_mul_i32 s{sT0}, s{sBkt}, {BS}
        s_lshl_b32 s{sT1}, s{sWave}, 4
        v_and_b32 v4, 15, v95
        v_lshrrev_b32 v5, 4, v95
        v_add_u32 v6, s{sT1}, v4
        v_lshlrev_b32 v7, 3, v5
        v_mov_b32 v10, 0x80000000
        v_mov_b32 v{vMask}, 0xffff0000
        """)
        srd(a, rM, sM, E * 32)
        srd(a, rDist, sDist, E * 2)
        srd(a, rOut, sOut, E * 32)
        for t in range(3):
            a(f"""
            v_add_u32 v8, {256 * t}, v6
            v_cmp_gt_u32 vcc, {BS}, v8
            v_add_u32 v8, s{sT0}, v8
            v_lshl_add_u32 v9, v8, 5, v7
            v_lshlrev_b32 v8, 1, v8
            v_cndmask_b32 v{vEo[t]}, v10, v9, vcc
            v_cndmask_b32 v8, v10, v8, vcc
            buffer_load_dwordx2 v[{vM+2*t}:{vM+2*t+1}], v{vEo[t]}, s[{rM}:{rM+3}], 0 offen
            buffer_load_ushort v{vDist+t}, v8, s[{rDist}:{rDist+3}], 0 offen
            """)

    NPRE = 19
    sChO, sRow, sChG, sMag, sHalf, sNeg, sHi, sK = sTot0, sTot1, sBase, sRem0, sRem1, sN0, sN1, sSteps
    a(f"""
    s_mul_i32 s{sChO}, s2, {CH_STRIDE}
    s_mul_i32 s{sChG}, s2, {CHG}
    s_add_u32 s{sChO}, s{sChO}, {p['ws_rec']}
    s_mov_b32 s{sMag}, 6871948
    s_mov_b32 s{sHalf}, {HALF}
    s_mov_b32 s{sNeg}, {-BS}
    s_mov_b32 s{sHi}, 0xffff0000
    s_mov_b32 s{sK}, 1024
    """)
    srd(a, rRecW, sWsp, 0, add=f"s{sChO}")
    srd(a, rRecR, sWsp, NCH * CHG, add=str(p["ws_rec"]), stride=12)
    a(f"s_mov_b64 exec, s[{sAct}:{sAct+1}]")
    for j in range(5):
        o0, o1, i0, i1 = vO + 2 * j, vO + 2 * j + 1, vI + 2 * j, vI + 2 * j + 1
        k0, k1_, r0, r1 = vKey + 2 * j, vKey + 1 + 2 * j, vRank + 2 * j, vRank + 1 + 2 * j
        q0, q1, l0, l1 = 72, 73, 74, 75
        a(f"""
        s_waitcnt vmcnt({5 + 8 - 2 * j})
        v_mul_hi_u32_u24 v{q0}, s{sMag}, v{o0}
        v_mul_hi_u32_u24 v{q1}, s{sMag}, v{o1}
        v_cmp_le_u32 vcc, s{sHalf}, v{i0}
        v_cmp_le_u32 s[{sSwap}:{sSwap+1}], s{sHalf}, v{i1}
        v_mad_i32_i24 v{l0}, v{q0}, s{sNeg}, v{o0}
        v_mad_i32_i24 v{l1}, v{q1}, s{sNeg}, v{o1}
        v_addc_co_u32 v{k0}, vcc, v{q0}, v{q0}, vcc
        v_addc_co_u32 v{k1_}, s[{sSwap}:{sSwap+1}], v{q1}, v{q1}, s[{sSwap}:{sSwap+1}]
        v_lshl_add_u32 v{k0}, v{k0}, 2, v29
        v_lshl_add_u32 v{k1_}, v{k1_}, 2, v29
        ds_add_rtn_u32 v{r0}, v{k0}, v3
        ds_add_rtn_u32 v{r1}, v{k1_}, v3
        v_lshlrev_b32 v{i0}, 10, v{i0}
        v_lshlrev_b32 v{i1}, 10, v{i1}
        v_add3_u32 v{vW+2*j}, v{i0}, v{l0}, s{sK}
        v_add3_u32 v{vW+2*j+1}, v{i1}, v{l1}, s{sK}
        """)
    a("s_mov_b64 exec, -1")
    a("s_waitcnt lgkmcnt(0)")
    a(f"s_lshl_b32 s{sF}, s{sF}, 16")
    ts.mark("histA")
    a("s_barrier")

    def cos_block(tag):
        a.comment("cos(bf16(freq * angle)) rounded to bf16, two angles per register")
        a(f"s_cmp_eq_u32 s{sWave}, 0")
        a("s_cbranch_scc1 KA_ANGLES0")
        a("s_waitcnt vmcnt(0)")
        a("KA_ANGLES0:")
        a("s_waitcnt vmcnt(1)")
        xs = [(4 + 2 * j, 5 + 2 * j) for j in range(5)]
        for j, (x0, x1) in enumerate(xs):
            a(f"v_lshlrev_b32 v{x0}, 16, v{vAn+j}")
            a(f"v_and_b32 v{x1}, s{sHi}, v{vAn+j}")
        a(f"s_cmp_eq_u32 s{sF}, 0x3f800000")
        a(f"s_cbranch_scc1 K_UNIT_FREQ{tag}")
        for x0, x1 in xs:
            a(f"v_mul_f32 v{x0}, s{sF}, v{x0}")
            a(f"v_mul_f32 v{x1}, s{sF}, v{x1}")
        for x0, x1 in xs:
            a(f"v_cvt_pk_bf16_f32 v{x0}, v{x0}, v{x1}")
        for x0, x1 in xs:
            a(f"v_and_b32 v{x1}, s{sHi}, v{x0}")
            a(f"v_lshlrev_b32 v{x0}, 16, v{x0}")
        a(f"K_UNIT_FREQ{tag}:")
        for op in ("v_mul_f32 v{0}, 0.15915494, v{0}", "v_fract_f32 v{0}, v{0}", "v_cos_f32 v{0}, v{0}"):
            for x0, x1 in xs:
                a(op.format(x0))
                a(op.format(x1))
        for j, (x0, x1) in enumerate(xs):
            a(f"v_cvt_pk_bf16_f32 v{vCos+j}, v{x0}, v{x1}")

    a(f"""
    s_cmp_eq_u32 s{sWave}, 0
    s_cbranch_scc1 KA_SCAN
    s_cmp_lg_u32 s{sWave}, 1
    s_cbranch_scc1 KA_SCANNED
    v_lshlrev_b32 v70, 4, v95
    v_add_u32 v70, {WL}, v70
    ds_write_b128 v70, v[76:79]
    s_mov_b32 exec_hi, 1
    ds_write_b128 v70, v[80:83] offset:1024
    s_mov_b64 exec, -1
    s_waitcnt lgkmcnt(0)
    s_branch KA_SCANNED
    """)
    a("KA_SCAN:")
    a(f"""
    v_mov_b32 v70, 0
    v_mov_b32 v71, 1
    s_mov_b64 exec, 1
    global_atomic_add v70, v71, s[{sDbg}:{sDbg+1}]
    s_mov_b64 exec, -1
    v_lshlrev_b32 v70, 5, v95
    v_add_u32 v69, {ACNT}, v70
    ds_read_b128 v[72:75], v69
    ds_read_b128 v[76:79], v69 offset:16
    s_mov_b32 s{sT1}, 43691
    s_waitcnt lgkmcnt(0)
    """)
    for i in range(8):
        a(f"v_and_b32 v{80+i}, 2, v{72+i}")
    for i in range(8):
        a(f"v_mad_u32_u24 v{72+i}, v{80+i}, 3, v{72+i}")
    for i in range(1, 8):
        a(f"v_add_u32 v{72+i}, v{71+i}, v{72+i}")
    a("v_mov_b32 v71, v79")
    scan_add(a, 71)
    a(f"v_sub_u32 v80, v71, v79")
    a(f"v_readlane_b32 s{sT0}, v71, 63")
    for i in range(1, 8):
        a(f"v_add_u32 v{80+i}, v80, v{71+i}")
    for i in range(8):
        a(f"v_add_u32 v{72+i}, {STAGE}, v{80+i}")
    a(f"""
    v_mov_b32 v88, s{sT0}
    ds_write_b128 v69, v[72:75]
    ds_write_b128 v69, v[76:79] offset:16
    ds_write_b32 v29, v88 offset:2048
    s_waitcnt lgkmcnt(0)
    """)
    a("KA_SCANNED:")
    a("s_barrier")
    ts.mark("scanA")
    a("ds_read_b32 v68, v29 offset:2048")
    a(f"s_mov_b64 exec, s[{sAct}:{sAct+1}]")
    vB = 14
    for i in range(10):
        a(f"ds_read_b32 v{vB+i}, v{vKey+i}")
    a("s_mov_b64 exec, -1")
    a(f"s_cmp_lg_u32 s{sWave}, 0")
    a("s_cbranch_scc1 KA_HAVE_ENTRIES")
    a(f"v_mov_b32 v88, v71")
    for i in range(9):
        a(f"v_mul_u32_u24 v{80+i}, s{sT1}, v{80+i}")
    for i in range(9):
        a(f"v_lshrrev_b32 v{80+i}, 19, v{80+i}")
    a(f"s_or_b32 s{sChG}, s{sChG}, 0x80000000")
    for b in range(4):
        a(f"v_sub_u32 v{72+2*b}, v{81+2*b}, v{80+2*b}")
        a(f"v_sub_u32 v{73+2*b}, v{82+2*b}, v{81+2*b}")
    for b in range(4):
        a(f"v_lshl_or_b32 v{vEnt+2*b+1}, v{73+2*b}, 16, v{72+2*b}")
        a(f"v_add_u32 v{vEnt+2*b}, s{sChG}, v{80+2*b}")
    a("KA_HAVE_ENTRIES:")
    a(f"s_mov_b64 exec, s[{sAct}:{sAct+1}]")
    for i in range(10):
        a(f"v_and_b32 v{vKey+i}, 2, v{vRank+i}")
        a(f"v_sub_u32 v{vRank+i}, v{vRank+i}, v{vKey+i}")
    a("s_waitcnt lgkmcnt(0)")
    for i in range(10):
        a(f"v_add_u32 v{vB+i}, v{vB+i}, v{vRank+i}")
        a(f"ds_write_b32 v{vB+i}, v{vW+i}")
        a(f"v_sub_u32 v{vKey+i}, v{vB+i}, v{vKey+i}")
    cos_block("A")
    for i in range(10):
        a(f"ds_write_b16{'_d16_hi' if i % 2 else ''} v{vKey+i}, v{vCos+i//2} offset:8")
    a("s_mov_b64 exec, -1")
    epilogue_operands()
    a(f"v_readfirstlane_b32 s{rRecW+2}, v68")
    a(f"v_add_u32 v69, {STAGE}, v{vT16}")
    for i in range(1, 4):
        a(f"v_add_u32 v{65+i}, {i*16384}, v{vT16}")
    a(f"s_add_u32 s{rRecW+2}, s{rRecW+2}, 15")
    a(f"s_and_b32 s{rRecW+2}, s{rRecW+2}, -16")
    a("s_waitcnt lgkmcnt(0)")
    a("s_barrier")
    ts.mark("scatA")
    for i in range(4):
        a(f"ds_read_b128 v[{4+4*i}:{7+4*i}], v69 offset:{16384 * i}")
    for i in range(4):
        a(f"s_waitcnt lgkmcnt({3 - i})")
        a(f"buffer_store_dwordx4 v[{4+4*i}:{7+4*i}], v{vT16 if i == 0 else 65+i}, s[{rRecW}:{rRecW+3}], 0 offen sc1")
    a("s_waitcnt vmcnt(4)")
    rbf_block(a, 32)
    a("v_mov_b32 v1, v95")


def phase_b(a, p, ts):
    DEPTH = p["depth"]
    NU = 24
    NRB = 4
    vCoff, vLoff, vSel = 2, 3, 4
    REC, RING, NRING = 8, 32, DEPTH + 1
    RAW = (REC, 48)
    vLa, vC, vGA, vL, vE, vX, vD = 64, 66, 67, 68, 72, 76, 80
    vBin, vRank = 64, 72
    vG, vDD, vMkW, vRb, vPar, vEight, vGA2 = 88, 89, 90, 92, 93, 94, 95
    sRem, sN, sTot = (sRem0, sRem1), (sN0, sN1), (sTot0, sTot1)

    def convert(beta, k):
        r = RAW[beta] + 4 * k
        a(f"""
        v_and_b32 v{r+3}, 0x3ff, v{r+1}
        v_lshrrev_b32 v80, 5, v{r+1}
        v_and_b32 v{r+1}, 0x3ff, v{r}
        v_lshrrev_b32 v{r}, 5, v{r}
        v_and_or_b32 v{r+3}, v{r+2}, v{vMask}, v{r+3}
        v_lshl_or_b32 v{r+1}, v{r+2}, 16, v{r+1}
        v_and_b32 v{r+2}, -32, v80
        v_and_b32 v{r}, -32, v{r}
        """)

    def skip(beta, k, label):
        if k >= 2:
            a(f"s_cmp_le_u32 s{sRem[beta]}, {64 * k}")
            a(f"s_cbranch_scc1 {label}")

    def hist(beta, vm_after):
        off = f" offset:{CNT1}" if beta else ""
        for k in range(NRB):
            skip(beta, k, f"KB_HISTED{beta}")
            a(f"s_waitcnt vmcnt({NRB - 1 - k + vm_after})")
            r = RAW[beta] + 4 * k
            for h in range(2):
                a(f"v_lshrrev_b32 v{vBin+2*k+h}, 15, v{r+h}")
            for h in range(2):
                a(f"v_and_b32 v{vBin+2*k+h}, -4, v{vBin+2*k+h}")
            for h in range(2):
                a(f"v_cmpx_ne_u32 vcc, 0, v{r+h}")
                a(f"ds_add_rtn_u32 v{vRank+2*k+h}, v{vBin+2*k+h}, v{vEight}{off}")
                a(f"s_mov_b64 exec, -1")
        a(f"KB_HISTED{beta}:")
        a(f"s_waitcnt vmcnt({vm_after})")

    def scan(beta):
        a.comment("wave 0: exclusive scan of the bin counters (bytes); null records behind the last real one")
        B = 32 if beta == 0 else 20
        a(f"""
        v_mul_u32_u24 v80, 48, v1
        ds_read_b128 v[{B}:{B+3}], v80 offset:{3072 * beta}
        ds_read_b128 v[{B+4}:{B+7}], v80 offset:{3072 * beta + 16}
        ds_read_b128 v[{B+8}:{B+11}], v80 offset:{3072 * beta + 32}
        v_mov_b32 v82, 0
        s_waitcnt lgkmcnt(0)
        """)
        for i in range(1, 12):
            a(f"v_add_u32 v{B+i}, v{B+i-1}, v{B+i}")
        a(f"v_mov_b32 v81, v{B+11}")
        scan_add(a, 81)
        a(f"v_readlane_b32 s{sT0}, v81, 63")
        a(f"v_sub_u32 v81, v81, v{B+11}")
        a(f"v_add_u32 v81, {SORT}, v81")
        for i in range(11, 0, -1):
            a(f"v_add_u32 v{B+i}, v81, v{B+i-1}")
        a(f"v_mov_b32 v{B}, v81")
        a(f"""
        s_add_u32 s{sT1}, s{sT0}, {SORT}
        v_mov_b32 v84, s{sT0}
        v_lshl_add_u32 v81, v1, 2, s{sT1}
        ds_write_b128 v80, v[{B}:{B+3}] offset:{3072 * beta}
        ds_write_b128 v80, v[{B+4}:{B+7}] offset:{3072 * beta + 16}
        ds_write_b128 v80, v[{B+8}:{B+11}] offset:{3072 * beta + 32}
        ds_write_b32 v81, v82
        ds_write_b32 v82, v84 offset:{MISC + 16 + 4 * beta}
        """)

    def convert_all(beta):
        for k in range(NRB):
            skip(beta, k, f"KB_CONV{beta}")
            convert(beta, k)
        a(f"KB_CONV{beta}:")

    def scatter(beta):
        off = f" offset:{CNT1}" if beta else ""
        a(f"v_mov_b32 v80, 0")
        a(f"ds_read_b32 v81, v80 offset:{MISC + 16 + 4 * beta}")
        for k in range(NRB):
            skip(beta, k, f"KB_BASES{beta}")
            for h in range(2):
                a(f"ds_read_b32 v{vBin+2*k+h}, v{vBin+2*k+h}{off}")
        a(f"KB_BASES{beta}:")
        a("s_waitcnt lgkmcnt(0)")
        a(f"v_readfirstlane_b32 s{sN[beta]}, v81")
        for k in range(NRB):
            skip(beta, k, f"KB_SCATTERED{beta}")
            for h in range(2):
                d = RAW[beta] + 4 * k + 2 * h
                a(f"v_add_u32 v{vBin+2*k+h}, v{vBin+2*k+h}, v{vRank+2*k+h}")
                a(f"v_cmpx_ne_u32 vcc, 0, v{d}")
                a(f"ds_write_b64 v{vBin+2*k+h}, v[{d}:{d+1}]")
                a(f"s_mov_b64 exec, -1")
        a(f"KB_SCATTERED{beta}:")
        n = sN[beta]
        a(f"""
        s_add_u32 s{n}, s{n}, 255
        s_lshr_b32 s{n}, s{n}, 8
        s_sub_u32 s{n}, s{n}, s{sWave}
        s_add_u32 s{n}, s{n}, 15
        s_lshr_b32 s{n}, s{n}, 4
        """)

    seq, done = [], set()

    def wait_for(op):
        if op in done:
            return
        i = seq.index(op)
        a(f"s_waitcnt vmcnt({len(seq) - 1 - i})")
        done.update(seq[: i + 1])

    def qperm(kk):
        return f"quad_perm:[{kk},{kk},{kk+2},{kk+2}] row_mask:0xf bank_mask:0xf"

    def issue(u, track=True, ga=None):
        kb, kk, h = u // 4, (u // 2) % 2, u % 2
        slot = RING + 4 * (u % NRING)
        guard = u >= p["guard"]
        if guard:
            a(f"s_cmp_gt_u32 s{sSteps}, {u}")
            a(f"s_cselect_b64 exec, -1, 1")
        ga = ga or (vGA, vGA2)[u % 2]
        a(f"v_add_u32_dpp v{ga}, v{REC+4*kb+2*h}, v{vCoff} {qperm(kk)}")
        a(f"buffer_load_dwordx4 v[{slot}:{slot+3}], v{ga}, s[{rM}:{rM+3}], 0 offen")
        if track:
            seq.append(("G", u))
        if guard:
            a("s_mov_b64 exec, -1")

    def process(u):
        kb, kk, h = u // 4, (u // 2) % 2, u % 2
        slot = RING + 4 * (u % NRING)
        if u % 4 == 0:
            for hh in range(2):
                a(f"v_lshlrev_b32_sdwa v{vLa+hh}, 7, v{REC+4*kb+2*hh+1} dst_sel:DWORD dst_unused:UNUSED_PAD src0_sel:DWORD src1_sel:WORD_0")
        a(f"v_and_b32_dpp v{vC}, v{REC+4*kb+2*h+1}, v{vMask} {qperm(kk)}")
        a(f"v_xor_b32_dpp v{vL}, v{vLa+h}, v{vLoff} {qperm(kk)}")
        wait_for(("G", u))
        if p["no_valu"]:
            return
        for i in range(4):
            a(f"v_cndmask_b32 v{vE+i}, v{slot+i}, v{slot+(i^2)}, s[{sSwap}:{sSwap+1}]")
        for j in range(1, 4):
            a(f"v_xor_b32 v{vL+j}, {8*j}, v{vL}")
        for half in range(2):
            for j in range(4):
                a(f"v_perm_b32 v{vX+j}, v{vE+2*half+1}, v{vE+2*half}, v{vSel+j}")
            if half:
                for j in range(4):
                    a(f"v_xor_b32 v{vL+j}, 32, v{vL+j}")
            for j in range(4):
                a(f"v_mul_f32 v{vX+j}, v{vC}, v{vX+j}")
            for j in range(4):
                a(f"v_cvt_f64_f32 v[{vD+2*j}:{vD+2*j+1}], v{vX+j}")
            for j in range(4):
                if not p["no_ds"]:
                    a(f"ds_add_f64 v{vL+j}, v[{vD+2*j}:{vD+2*j+1}] offset:{ACC}")

    a(f"""
    v_and_b32 v32, 1, v1
    v_bfe_u32 v33, v1, 1, 3
    v_lshlrev_b32 v{vCoff}, 4, v32
    v_lshlrev_b32 v{vLoff}, 6, v32
    v_subrev_u32 v{vCoff}, 32, v{vCoff}
    v_lshl_add_u32 v{vLoff}, v33, 3, v{vLoff}
    v_mov_b32 v{vEight}, 8
    s_mov_b32 s{sT0}, 0x02020000
    s_mov_b32 s{sT1}, 0x01000c0c
    s_mov_b32 s{sSwap}, 0xff00ff00
    s_mov_b32 s{sSwap+1}, 0xff00ff00
    v_lshrrev_b32 v34, 1, v1
    v_lshlrev_b32 v34, 3, v34
    v_lshl_add_u32 v{vRb}, v32, 13, v34
    s_lshl_b32 s{sT2}, s{sWave}, 8
    s_add_u32 s{sT2}, s{sT2}, {SORT}
    v_lshlrev_b32 v{vPar}, 1, v32
    v_and_b32 v33, 3, v33
    v_add_u32 v{vRb}, s{sT2}, v{vRb}
    s_lshl_b32 s{sMk}, s{sWave}, 11
    s_add_u32 s{sMk}, s{sMk}, {SORT}
    v_lshl_add_u32 v{vMkW}, v1, 4, s{sMk}
    v_lshlrev_b32 v65, 11, v1
    v_lshlrev_b32 v41, 5, v1
    s_lshl_b32 s{sT2}, s{sWave}, 15
    s_lshl_b32 s{sT3}, s{sBkt}, 3
    s_add_u32 s{sT2}, s{sT2}, s{sT3}
    v_mov_b32 v66, 0
    v_mov_b32 v67, 0
    """)
    for j in range(4):
        a(f"v_xor_b32 v34, {j}, v33")
        a(f"v_mul_lo_u32 v34, v34, s{sT0}")
        a(f"v_add_u32 v{vSel+j}, s{sT1}, v34")
    zero_quad(a, 36)
    a(f"""
    s_mov_b32 s{sT3}, 0x40000
    s_cmp_lg_u32 s{sWave}, 0
    s_cbranch_scc1 KB_ROWS_CLEAR
    """)
    a(f"""
    KB_POLL_CLEAR:
    global_load_dword v40, v36, s[{sDbg}:{sDbg+1}] sc1
    s_waitcnt vmcnt(0)
    v_readfirstlane_b32 s{sT0}, v40
    s_cmp_ge_u32 s{sT0}, {NCH}
    s_cbranch_scc1 KB_ROWS_CLEAR
    s_sub_u32 s{sT3}, s{sT3}, 1
    s_cmp_eq_u32 s{sT3}, 0
    s_cbranch_scc1 K_END
    s_sleep 16
    s_branch KB_POLL_CLEAR
    KB_ROWS_CLEAR:
    """)
    a(f"""
    s_waitcnt vmcnt(0)
    s_barrier
    """)
    ts.mark("pub")
    a(f"""
    s_cmp_lg_u32 s{sWave}, 0
    s_cbranch_scc1 KB_PUBLISHED
    buffer_store_dwordx4 v[{vEnt}:{vEnt+3}], v41, s[{rOff}:{rOff+3}], s{sTot1} offen sc1
    buffer_store_dwordx4 v[{vEnt+4}:{vEnt+7}], v41, s[{rOff}:{rOff+3}], s{sTot1} offen offset:16 sc1
    KB_PUBLISHED:
    ds_write_b128 v{vMkW}, v[36:39]
    ds_write_b128 v{vMkW}, v[36:39] offset:1024
    s_mov_b64 exec, 0xffff
    """)
    a(f"""
    s_mov_b32 s{sT0}, 0xffff
    KB_POLL_ALL:
    s_mov_b32 exec_lo, s{sT0}
    buffer_load_dwordx2 v[66:67], v65, s[{rOff}:{rOff+3}], s{sT2} offen sc1
    s_waitcnt vmcnt(0)
    v_cmp_le_i32 vcc, 0, v66
    s_nop 0
    s_and_b32 s{sT0}, s{sT0}, vcc_lo
    s_cbranch_scc0 KB_READY
    s_sub_u32 s{sT1}, 0, s{sT0}
    s_and_b32 s{sT1}, s{sT1}, s{sT0}
    s_mov_b32 exec_lo, s{sT1}
    KB_POLL_ONE:
    s_sub_u32 s{sT3}, s{sT3}, 1
    s_cbranch_scc1 K_END
    s_sleep {p['sleep']}
    buffer_load_dwordx2 v[66:67], v65, s[{rOff}:{rOff+3}], s{sT2} offen sc1
    s_waitcnt vmcnt(0)
    v_cmp_le_i32 vcc, 0, v66
    s_nop 0
    s_and_b32 s{sN0}, s{sT1}, vcc_lo
    s_cbranch_scc1 KB_POLL_ONE
    s_andn2_b32 s{sT0}, s{sT0}, s{sT1}
    s_cbranch_scc1 KB_POLL_ALL
    KB_READY:
    s_mov_b64 exec, -1
    """)
    ts.mark("ready")
    a(f"""
    v_and_b32 v66, 0x7fffffff, v66
    v_lshrrev_b32 v69, 16, v67
    v_and_b32 v67, 0xffff, v67
    v_add_u32 v68, v66, v67
    s_nop 1
    v_permlane16_swap_b32 v66, v68
    v_permlane16_swap_b32 v67, v69
    v_mov_b32 v73, v67
    """)
    for sh in (1, 2, 4, 8):
        a(f"v_add_u32_dpp v73, v73, v73 row_shr:{sh} row_mask:0xf bank_mask:0xf bound_ctrl:0")
    a(f"""
    s_mov_b32 s{sT0}, 0x80000000
    v_readlane_b32 s{sTot0}, v73, 15
    v_readlane_b32 s{sTot1}, v73, 31
    v_sub_u32 v{vG}, v73, v67
    v_sub_u32 v{vDD}, v66, v{vG}
    v_writelane_b32 v{vG}, s{sTot0}, 32
    v_writelane_b32 v{vG}, s{sTot1}, 48
    v_writelane_b32 v{vDD}, s{sT0}, 32
    v_writelane_b32 v{vDD}, s{sT0}, 48
    s_mov_b32 s{sBase}, 0
    """)
    a("KB_ROUND:")
    a(f"""
    s_sub_u32 s{sRem0}, s{sTot0}, s{sBase}
    s_sub_u32 s{sRem1}, s{sTot1}, s{sBase}
    s_max_i32 s{sRem0}, s{sRem0}, 0
    s_max_i32 s{sRem1}, s{sRem1}, 0
    v_subrev_u32 v72, s{sBase}, v{vG}
    v_and_b32 v73, 16, v1
    v_max_i32 v72, 0, v72
    v_lshlrev_b32 v73, 6, v73
    v_cmp_gt_u32 vcc, {64 * NRB}, v72
    v_lshl_add_u32 v72, v72, 2, s{sMk}
    v_add_u32 v72, v72, v73
    s_mov_b32 exec_lo, vcc_lo
    s_and_b32 exec_hi, vcc_hi, 0x10001
    ds_max_u32 v72, v{vDD}
    s_mov_b64 exec, -1
    ds_read_b128 v[64:67], v{vMkW}
    ds_read_b128 v[68:71], v{vMkW} offset:1024
    v_add_u32 v74, s{sBase}, v1
    v_lshl_add_u32 v75, v1, 2, s{sMk}
    s_waitcnt lgkmcnt(0)
    """)
    for b in (64, 68):
        for i in range(1, 4):
            a(f"v_max_u32 v{b+i}, v{b+i-1}, v{b+i}")
    a("v_mov_b32 v72, v67")
    a("v_mov_b32 v73, v71")
    for sh in (1, 2, 4, 8):
        for r in (72, 73):
            a(f"v_max_u32_dpp v{r}, v{r}, v{r} row_shr:{sh} row_mask:0xf bank_mask:0xf bound_ctrl:0")
    for r in (72, 73):
        a(f"v_max_u32_dpp v{r}, v{r}, v{r} row_bcast:15 row_mask:0xa bank_mask:0xf")
    for r in (72, 73):
        a(f"v_max_u32_dpp v{r}, v{r}, v{r} row_bcast:31 row_mask:0xc bank_mask:0xf")
    for i in range(4):
        for b, r in ((64, 72), (68, 73)):
            a(f"v_max_u32_dpp v{b+i}, v{r}, v{b+i} wave_shr:1 row_mask:0xf bank_mask:0xf bound_ctrl:0")
    a(f"ds_write_b128 v{vMkW}, v[64:67]")
    a(f"ds_write_b128 v{vMkW}, v[68:71] offset:1024")
    for beta in range(2):
        for k in range(NRB):
            a(f"ds_read_b32 v{RAW[beta]+4*k}, v75 offset:{1024 * beta + 256 * k}")
    a(f"v_add_u32 v76, 64, v74")
    a(f"v_add_u32 v77, 128, v74")
    a(f"v_add_u32 v78, 192, v74")
    idx = (74, 76, 77, 78)

    def load_raw(beta):
        for k in range(NRB):
            r = RAW[beta] + 4 * k
            a(f"buffer_load_dwordx3 v[{r}:{r+2}], v{r}, s[{rRecR}:{rRecR+3}], 0 idxen sc1")

    for k in range(NRB):
        r = RAW[0] + 4 * k
        a(f"s_waitcnt lgkmcnt({2 * NRB - 1 - k})")
        a(f"v_add_u32 v{r}, v{r}, v{idx[k]}")
        a(f"buffer_load_dwordx3 v[{r}:{r+2}], v{r}, s[{rRecR}:{rRecR+3}], 0 idxen sc1")
    a("s_waitcnt lgkmcnt(0)")
    for k in range(NRB):
        r = RAW[1] + 4 * k
        a(f"v_add_u32 v{r}, v{r}, v{idx[k]}")
    a(f"""
    s_cmp_lg_u32 s{sBase}, 0
    s_cbranch_scc0 KB_FIRST
    """)
    load_raw(1)
    a(f"""
    s_branch KB_UNSORTED
    KB_FIRST:
    """)
    a(f"""
    s_max_u32 s{sT0}, s{sTot0}, s{sTot1}
    s_cmp_gt_u32 s{sT0}, {64 * NRB}
    s_cselect_b32 s{sT0}, 0x100000, 0
    s_add_u32 s{sT0}, s{sT0}, s{sTot0}
    v_mov_b32 v80, 0
    v_mov_b32 v82, s{sT0}
    v_mov_b32 v83, s{sTot1}
    s_mov_b64 exec, 1
    ds_add_u32 v80, v82 offset:{MISC}
    ds_add_u32 v80, v83 offset:{MISC + 4}
    s_mov_b64 exec, -1
    """)
    hist(0, 0)
    load_raw(1)
    a("s_waitcnt lgkmcnt(0)")
    a("s_barrier")
    ts.mark("B2")
    a(f"""
    v_mov_b32 v84, 0
    ds_read_b64 v[86:87], v84 offset:{MISC}
    s_cmp_lg_u32 s{sWave}, 0
    s_cbranch_scc1 KB_SCANNED0
    """)
    scan(0)
    a("KB_SCANNED0:")
    convert_all(0)
    a(f"""
    s_waitcnt lgkmcnt(0)
    v_readfirstlane_b32 s{sT0}, v86
    v_readfirstlane_b32 s{sT1}, v87
    s_barrier
    s_sub_u32 s{sT0}, s{sT0}, {16 * 16 * DEPTH + 128}
    s_cmp_gt_u32 s{sT0}, {SORTCAP // 2 - 16 * 16 * DEPTH - 128 if not p['force_fb'] else 0}
    s_cbranch_scc1 KB_UNSORTED0
    s_cmp_gt_u32 s{sT1}, {SORTCAP // 2}
    s_cbranch_scc1 KB_UNSORTED0
    """)
    scatter(0)
    a("s_waitcnt lgkmcnt(0)")
    a("s_barrier")
    ts.mark("B4")
    for k in range(3):
        for h in range(2):
            a(f"ds_read_b64 v[{REC+4*k+2*h}:{REC+4*k+2*h+1}], v{vRb} offset:{16384 * k + 4096 * h}")
    a("s_waitcnt lgkmcnt(4)")
    issue(0, track=False, ga=vGA2)
    hist(1, 1)
    a("s_waitcnt lgkmcnt(0)")
    a("s_barrier")
    a(f"""
    s_cmp_lg_u32 s{sWave}, 0
    s_cbranch_scc1 KB_SCANNED1
    """)
    scan(1)
    a("KB_SCANNED1:")
    issue(1, track=False, ga=vGA2)
    convert_all(1)
    a("s_waitcnt lgkmcnt(0)")
    a("s_barrier")
    scatter(1)
    issue(2, track=False, ga=vGA2)
    a(f"""
    s_lshl_b32 s{sT0}, s{sN0}, 12
    s_add_u32 s{sSteps}, s{sN0}, s{sN1}
    v_subrev_u32 v80, s{sT0}, v{vRb}
    v_subrev_u32 v82, s{sN0}, v{vPar}
    v_add_u32 v81, 0x10000, v80
    s_waitcnt lgkmcnt(0)
    s_barrier
    """)
    for k in range(6):
        for h in range(2):
            u0 = 4 * k + h
            if u0 + 2 < DEPTH:
                continue
            base, off = (80, 16384 * k + 4096 * h) if k < 4 else (81, 16384 * (k - 4) + 4096 * h)
            a(f"v_cmpx_le_i32 vcc, {-u0}, v82")
            a(f"ds_read_b64 v[{REC+4*k+2*h}:{REC+4*k+2*h+1}], v{base} offset:{off}")
            a(f"s_mov_b64 exec, -1")
    a(f"s_mov_b32 s{sPhase}, 2")
    a("s_waitcnt lgkmcnt(0)")
    a("s_nop 2")
    a("s_branch KB_LOOP")
    a("KB_UNSORTED:")
    a("s_waitcnt vmcnt(0)")
    for k in range(NRB):
        convert(0, k)
    a("KB_UNSORTED0:")
    a("s_waitcnt vmcnt(0)")
    a(f"s_mov_b32 s{sPhase}, 0")
    a(f"s_mov_b32 s{sSteps}, s{sRem0}")
    a("KB_UNSORTED_GO:")
    a(f"""
    s_add_u32 s{sSteps}, s{sSteps}, 63
    s_lshr_b32 s{sSteps}, s{sSteps}, 6
    s_min_u32 s{sSteps}, s{sSteps}, {NRB}
    s_lshl_b32 s{sSteps}, s{sSteps}, 2
    """)
    for u in range(DEPTH):
        issue(u)
    a("KB_LOOP:")
    ts.mark("loop")
    prio = {int(x.split(":")[0]): int(x.split(":")[1]) for x in p["prio"].split(",") if x}
    for u in range(NU):
        if u in prio:
            a(f"s_setprio {prio[u]}")
        if u + DEPTH < NU:
            issue(u + DEPTH)
        process(u)
        if u < NU - 1:
            a(f"s_cmp_le_u32 s{sSteps}, {u+1}")
            a(f"s_cbranch_scc1 KB_LOOPED")
    a("KB_LOOPED:")
    a(f"""
    s_waitcnt vmcnt(0)
    s_cmp_eq_u32 s{sPhase}, 2
    s_cbranch_scc1 KB_DONE
    s_cmp_eq_u32 s{sPhase}, 1
    s_cbranch_scc1 KB_NEXT_ROUND
    """)
    for k in range(NRB):
        convert(1, k)
    for i in range(4 * NRB):
        a(f"v_mov_b32 v{REC+i}, v{RAW[1]+i}")
    a(f"""
    s_mov_b32 s{sPhase}, 1
    s_mov_b32 s{sSteps}, s{sRem1}
    s_branch KB_UNSORTED_GO
    KB_NEXT_ROUND:
    s_add_u32 s{sBase}, s{sBase}, {64 * NRB}
    s_max_u32 s{sT0}, s{sTot0}, s{sTot1}
    s_cmp_ge_u32 s{sBase}, s{sT0}
    s_cbranch_scc1 KB_DONE
    """)
    zero_quad(a, 76)
    a(f"""
    ds_write_b128 v{vMkW}, v[76:79]
    ds_write_b128 v{vMkW}, v[76:79] offset:1024
    s_branch KB_ROUND
    """)
    a("KB_DONE:")
    vA, vMf, vRf, vF, vB = 8, 32, 44, 68, 80
    a(f"""
    v_and_b32 v64, 15, v1
    v_lshrrev_b32 v65, 4, v1
    v_lshlrev_b32 v64, 7, v64
    s_lshl_b32 s{sT0}, s{sWave}, 11
    v_lshl_add_u32 v64, v65, 5, v64
    v_add_u32 v64, s{sT0}, v64
    v_add_u32 v65, 0x10000, v64
    """)
    for t in range(3):
        for src, dst_ in ((vM, vMf), (vR, vRf)):
            a(f"v_lshlrev_b32 v{dst_+4*t}, 16, v{src+2*t}")
            a(f"v_and_b32 v{dst_+4*t+1}, v{vMask}, v{src+2*t}")
            a(f"v_lshlrev_b32 v{dst_+4*t+2}, 16, v{src+2*t+1}")
            a(f"v_and_b32 v{dst_+4*t+3}, v{vMask}, v{src+2*t+1}")
    a("s_waitcnt lgkmcnt(0)")
    a("s_barrier")
    ts.mark("fin")
    op = (" " + p["out_pol"]) if p["out_pol"] else ""

    def tiles(ts_):
        for t in ts_:
            base, off = (64, 32768 * t + ACC) if t < 2 else (65, ACC)
            a(f"ds_read_b128 v[{vA+8*t}:{vA+8*t+3}], v{base} offset:{off}")
            a(f"ds_read_b128 v[{vA+8*t+4}:{vA+8*t+7}], v{base} offset:{off+16}")
        for n, t in enumerate(ts_):
            f, b = vF + 4 * t, vB + 2 * t
            a(f"s_waitcnt lgkmcnt({2 * (len(ts_) - 1 - n)})")
            for i in range(4):
                a(f"v_cvt_f32_f64 v{f+i}, v[{vA+8*t+2*i}:{vA+8*t+2*i+1}]")
            a(f"v_cvt_pk_bf16_f32 v{b}, v{f}, v{f+1}")
            a(f"v_cvt_pk_bf16_f32 v{b+1}, v{f+2}, v{f+3}")
            a(f"v_mfma_f32_16x16x16_bf16 v[{vA+8*t}:{vA+8*t+3}], v[{vWd}:{vWd+1}], v[{b}:{b+1}], 0")
        for t in ts_:
            f, b = vF + 4 * t, vB + 2 * t
            for i in range(4):
                a(f"v_mul_f32 v{f+i}, v{vA+8*t+i}, v{vS+4*t+i}")
            a(f"v_cvt_pk_bf16_f32 v{b}, v{f}, v{f+1}")
            a(f"v_cvt_pk_bf16_f32 v{b+1}, v{f+2}, v{f+3}")
            a(f"v_mfma_f32_16x16x16_bf16 v[{vA+8*t+4}:{vA+8*t+7}], v[{vWu}:{vWu+1}], v[{b}:{b+1}], 0")
        for t in ts_:
            b = vB + 2 * t
            for i in range(4):
                a(f"v_fmac_f32 v{vMf+4*t+i}, v{vA+8*t+4+i}, v{vRf+4*t+i}")
            a(f"v_cvt_pk_bf16_f32 v{b}, v{vMf+4*t}, v{vMf+4*t+1}")
            a(f"v_cvt_pk_bf16_f32 v{b+1}, v{vMf+4*t+2}, v{vMf+4*t+3}")
            a(f"buffer_store_dwordx2 v[{b}:{b+1}], v{vEo[t]}, s[{rOut}:{rOut+3}], 0 offen{op}")

    a(f"s_cmp_ge_u32 s{sWave}, 8")
    a("s_cbranch_scc1 KB_TWO_TILES")
    tiles([0, 1, 2])
    a("s_branch KB_STORED")
    a("KB_TWO_TILES:")
    tiles([0, 1])
    a("KB_STORED:")


def build(p):
    ref = open("standalone__molecular_angular_gemnet__graph.s.ref").read().split("\n")
    out = [l for l in ref if l.startswith(";") and "@launch" not in l and "Override launch" not in l and "grid=ceil" not in l]
    if p["diag"]:
        out.append(f"; @launch kernel={NAME} grid=(256,1,1) block=(1024,1,1) lds={LDS}")
        out.append("; @launch kernel=diag_kernel grid=(1,1,1) block=(256,1,1) lds=1024")
    else:
        out.append(f"; @launch grid=(256,1,1) block=(1024,1,1) lds={LDS}")
    out.append('.amdgcn_target "amdgcn-amd-amdhsa--gfx950"')
    out.append(".text")
    a = Asm()
    ts = Stamps(a, p)
    a.raw(f".globl {NAME}\n.p2align 8\n.type {NAME},@function\n{NAME}:")
    phase_a(a, p, ts)
    phase_b(a, p, ts)
    if p["ts"]:
        a("s_waitcnt vmcnt(0)")
        ts.mark("end")
        ts.flush()
    a("K_END:")
    a("s_endpgm")
    extra = ""
    if p["diag"]:
        from diag import diag_kernel
        f = p["diag"].split(",")
        a.raw(diag_kernel((int(f[0]), int(f[1]), f[2], int(f[3]), int(f[4]), f[5]), p["mult"]))
        extra += ".p2align 6\n" + kd("diag_kernel", 32, 32)
    return "\n".join(out) + "\n" + a.text() + '.section .rodata,"a"\n.p2align 6\n' + kd(NAME, 128, 102 if p['ts'] else 96) + extra


if __name__ == "__main__":
    ap = argparse.ArgumentParser()
    ap.add_argument("-o", default="standalone__molecular_angular_gemnet__graph.s")
    ap.add_argument("kv", nargs="*")
    args = ap.parse_args()
    p = dict(P)
    for kv in args.kv:
        k, v = kv.split("=")
        p[k] = v.replace("+", " ") if not isinstance(P[k], int) else int(v, 0)
    open(args.o, "w").write(build(p))
```

```python
import argparse
from emit import Asm
from gen1 import kd, scan_add

NAME = "standalone__molecular_angular_gemnet__graph_kernel"
E, T = 160000, 2560000
NB, BS = 256, 625
NCH, CH = 256, 10000
CHG = 5280
CH_STRIDE = CHG * 12
OFFROW = 2048
HALF = 626 * 128 - 1

P = dict(ws_rec=0, ld_pol="nt", depth=3, ts=0, no_ds=0, no_valu=0, prio="0:3,5:2,10:1,15:0",
         diag="", mult=10, guard=16, force_fb=0, sleep=2, out_pol="", tsel="start,histA,scanA,scatA,pub,ready,end", tswave=0, stages='3,4', scanwave=0, warm=0, wstride=128, mearly=0)

CNT1 = 3072 - 626 * 4
MISC = 6144
ACC = 6400
SORT = ACC + 81920
SORTCAP = 6144
STAGE = SORT
ACNT = STAGE + 65536
WL = ACNT + 2080
DL = WL + 1552
LDS = DL + 1280

sM, sIn, sOutI, sDist, sAng, sCen, sFreq, sWr = 4, 6, 8, 10, 12, 14, 16, 18
sWs, sWd, sWu, sOut, sDbg, sWsp = 20, 22, 24, 26, 28, 30
rIn, rOutI, rAng, rRecW, rOff, rM, rDist, rOut, rRecR = 32, 36, 40, 44, 48, 52, 56, 60, 64
sAct, sSwap = 68, 70
sWave, sBkt, sF, sT0, sT1, sT2, sT3 = 3, 72, 73, 74, 75, 76, 77
sTot0, sTot1, sBase, sRem0, sRem1, sN0, sN1, sSteps, sPhase, sMk = 78, 79, 80, 81, 82, 83, 84, 85, 86, 87
sTS = 88

vMask, vM, vWd, vWu, vS, vR = 96, 98, 104, 106, 108, 120
vEnt = 72
vEo = (97, 126, 127)
vDist = 108


def srd(a, d, lo, nbytes, add=None, stride=0):
    if add is None:
        a(f"s_mov_b32 s{d}, s{lo}")
        a(f"s_and_b32 s{d+1}, s{lo+1}, 0xffff")
    else:
        a(f"s_add_u32 s{d}, s{lo}, {add}")
        a(f"s_addc_u32 s{d+1}, s{lo+1}, 0")
        a(f"s_and_b32 s{d+1}, s{d+1}, 0xffff")
    if stride:
        a(f"s_or_b32 s{d+1}, s{d+1}, {stride << 16}")
    a(f"s_mov_b32 s{d+2}, {nbytes}")
    a(f"s_mov_b32 s{d+3}, 0x20000")


class Stamps:
    def __init__(self, a, p):
        self.a, self.on, self.n = a, p["ts"], 0
        self.sel = p["tsel"].split(",")
        self.wave = p["tswave"]

    def mark(self, name):
        if self.on and name in self.sel:
            op = "s_memtime" if self.on == 2 else "s_memrealtime"
            k = self.sel.index(name)
            self.a(f"{op} s[{sTS+2*k}:{sTS+2*k+1}]")

    def flush(self):
        if not self.on:
            return
        a = self.a
        a(f"""
        s_waitcnt lgkmcnt(0)
        s_cmp_lg_u32 s{sWave}, {self.wave}
        s_cbranch_scc1 TS_DONE
        s_lshl_b32 s4, s2, 6
        s_add_u32 s4, s4, {200 << 20}
        s_add_u32 s6, s{sWsp}, s4
        s_addc_u32 s7, s{sWsp+1}, 0
        v_lshlrev_b32 v2, 3, v1
        v_mov_b32 v4, 0
        v_mov_b32 v5, 0
        """)
        for k in range(len(self.sel)):
            a(f"v_writelane_b32 v4, s{sTS+2*k}, {k}")
        a("""
        s_mov_b64 exec, 0xff
        global_store_dwordx2 v2, v[4:5], s[6:7]
        TS_DONE:
        """)


def zero_quad(a, r):
    for i in range(4):
        a(f"v_mov_b32 v{r+i}, 0")


def warm(a, p):
    n = p['warm']
    if not n:
        return
    a(f"s_mul_i32 s{sT2}, s2, {16 * n * p['wstride']}")
    a(f"s_mul_i32 s{sT3}, s{sWave}, {n * p['wstride']}")
    a(f"s_add_u32 s{sT2}, s{sT2}, s{sT3}")
    a(f"s_min_u32 s{sT2}, s{sT2}, {E * 32 - n * p['wstride']}")
    a(f"s_add_u32 s{sIn}, s{sM}, s{sT2}")
    a(f"s_addc_u32 s{sIn+1}, s{sM+1}, 0")
    for i in range(n):
        a(f"s_load_dword s{rIn + i % 12}, s[{sIn}:{sIn+1}], {p['wstride'] * i}")


def rbf_block(a, b, after_reads):
    a.comment("radial basis (same bf16 rounding steps as the reference), S = rbf@w_sbf, R = rbf@w_rbf")
    c0, c1, aS, aR, T0 = b, b + 1, b + 2, b + 4, b + 8
    a(f"""
    v_lshlrev_b32 v{T0}, 3, v95
    v_lshrrev_b32 v{T0+1}, 4, v95
    v_and_b32 v{T0+2}, 63, v{T0}
    v_add_u32 v{T0}, {WL}, v{T0}
    v_lshl_add_u32 v{T0+2}, v{T0+1}, 6, v{T0+2}
    v_lshlrev_b32 v{T0+1}, 2, v{T0+1}
    v_add_u32 v{T0+2}, {WL + 1024}, v{T0+2}
    v_add_u32 v{T0+1}, {WL + 1536}, v{T0+1}
    ds_read_b64_tr_b16 v[{vWd}:{vWd+1}], v{T0}
    ds_read_b64_tr_b16 v[{vWu}:{vWu+1}], v{T0} offset:512
    ds_read_b64_tr_b16 v[{aS}:{aS+1}], v{T0+2}
    ds_read_b64_tr_b16 v[{aR}:{aR+1}], v{T0+2} offset:256
    ds_read_b32 v{c1}, v{T0+1}
    s_mov_b32 s{sT0}, 0xc1200000
    s_mov_b32 s{sT1}, 0x3fb8aa3b
    s_waitcnt lgkmcnt(0)
    v_lshlrev_b32 v{c0}, 16, v{c1}
    v_and_b32 v{c1}, v{vMask}, v{c1}
    """)
    after_reads()
    for t in range(3):
        a(f"v_mov_b32 v{T0+1+4*t}, 0")

    def each(fn):
        for t in range(3):
            fn(t, T0 + 2 + 4 * t, T0 + 3 + 4 * t)

    def rnd():
        each(lambda t, x0, x1: a(f"v_cvt_pk_bf16_f32 v{x0}, v{x0}, v{x1}"))
        each(lambda t, x0, x1: a(f"v_and_b32 v{x1}, v{vMask}, v{x0}"))
        each(lambda t, x0, x1: a(f"v_lshlrev_b32 v{x0}, 16, v{x0}"))

    each(lambda t, x0, x1: a(f"v_lshlrev_b32 v{vDist+t}, 16, v{vDist+t}"))
    each(lambda t, x0, x1: a(f"v_sub_f32 v{x0}, v{vDist+t}, v{c0}\nv_sub_f32 v{x1}, v{vDist+t}, v{c1}"))
    rnd()
    each(lambda t, x0, x1: a(f"v_mul_f32 v{x0}, v{x0}, v{x0}\nv_mul_f32 v{x1}, v{x1}, v{x1}"))
    rnd()
    each(lambda t, x0, x1: a(f"v_mul_f32 v{x0}, s{sT0}, v{x0}\nv_mul_f32 v{x1}, s{sT0}, v{x1}"))
    rnd()
    each(lambda t, x0, x1: a(f"v_mul_f32 v{x0}, s{sT1}, v{x0}\nv_mul_f32 v{x1}, s{sT1}, v{x1}"))
    each(lambda t, x0, x1: a(f"v_exp_f32 v{x0}, v{x0}\nv_exp_f32 v{x1}, v{x1}"))
    each(lambda t, x0, x1: a(f"v_cvt_pk_bf16_f32 v{T0+4*t}, v{x0}, v{x1}"))
    for t in range(3):
        a(f"v_mfma_f32_16x16x16_bf16 v[{vS+4*t}:{vS+4*t+3}], v[{aS}:{aS+1}], v[{T0+4*t}:{T0+1+4*t}], 0")
    a(f"v_mfma_f32_16x16x16_bf16 v[{T0+12}:{T0+15}], v[{aR}:{aR+1}], v[{T0+8}:{T0+9}], 0")
    a(f"s_nop 3")
    a(f"v_mfma_f32_16x16x16_bf16 v[{T0+8}:{T0+11}], v[{aR}:{aR+1}], v[{T0+4}:{T0+5}], 0")
    a(f"s_nop 3")
    a(f"v_mfma_f32_16x16x16_bf16 v[{T0+4}:{T0+7}], v[{aR}:{aR+1}], v[{T0}:{T0+1}], 0")
    for t in (2, 1, 0):
        a(f"v_cvt_pk_bf16_f32 v{vR+2*t}, v{T0+4+4*t}, v{T0+5+4*t}")
        a(f"v_cvt_pk_bf16_f32 v{vR+2*t+1}, v{T0+6+4*t}, v{T0+7+4*t}")


def phase_a(a, p, ts):
    ld = (" " + p["ld_pol"]) if p["ld_pol"] else ""
    vO, vI, vAn, vKey, vRank, vW, vCos = 4, 14, 24, 30, 40, 50, 60
    vZ, vT16 = 84, 94
    a(f"""
    s_cmp_ge_u32 s2, {NCH}
    s_cbranch_scc1 K_END
    s_load_dwordx16 s[4:19], s[0:1], 0
    s_load_dwordx8 s[20:27], s[0:1], 64
    s_load_dwordx4 s[28:31], s[0:1], 96
    v_lshlrev_b32 v1, 3, v0
    v_lshlrev_b32 v2, 2, v0
    v_lshlrev_b32 v{vT16}, 4, v0
    v_lshrrev_b32 v70, 6, v0
    v_and_b32 v95, 63, v0
    s_mul_i32 s{rM}, s2, {CH * 4}
    s_mul_i32 s{rOut}, s2, {CH * 2}
    v_cmp_gt_u32 vcc, 1000, v0
    v_readfirstlane_b32 s{sWave}, v70
    """)
    so4 = [rM, rM + 1, rM + 2, rM + 3, rDist]
    so2 = [rOut, rOut + 1, rOut + 2, rOut + 3, rDist + 1]
    for j in range(1, 5):
        a(f"s_add_u32 s{so4[j]}, s{rM}, {8000*j}")
        a(f"s_add_u32 s{so2[j]}, s{rOut}, {4000*j}")
    a(f"s_mov_b64 s[{sAct}:{sAct+1}], vcc")
    zero_quad(a, vZ)
    a(f"""
    v_add_u32 v71, {ACNT}, v{vT16}
    v_cmp_gt_u32 vcc, {(WL - ACNT) // 16}, v0
    v_mov_b32 v3, 6
    v_mov_b32 v29, {ACNT}
    s_mov_b64 exec, vcc
    ds_write_b128 v71, v[{vZ}:{vZ+3}]
    s_mov_b64 exec, -1
    s_waitcnt lgkmcnt(0)
    s_barrier
    """)
    srd(a, rOutI, sOutI, T * 4)
    srd(a, rIn, sIn, T * 4)
    srd(a, rAng, sAng, T * 2)
    a(f"s_load_dword s{sF}, s[{sFreq}:{sFreq+1}], 0")
    srd(a, rOff, sWsp, NCH * OFFROW, add=str(p["ws_rec"] + NCH * CH_STRIDE))
    a(f"""
    s_mul_i32 s{sTot1}, s2, {OFFROW}
    s_cmp_lg_u32 s{sWave}, 0
    s_cbranch_scc1 KA_CLEARED
    buffer_store_dwordx4 v[{vZ}:{vZ+3}], v{vT16}, s[{rOff}:{rOff+3}], s{sTot1} offen sc1
    buffer_store_dwordx4 v[{vZ}:{vZ+3}], v{vT16}, s[{rOff}:{rOff+3}], s{sTot1} offen offset:1024 sc1
    KA_CLEARED:
    """)
    a(f"""
    s_and_b32 s{sBkt}, s2, 7
    s_lshl_b32 s{sBkt}, s{sBkt}, 5
    s_lshr_b32 s{sT0}, s2, 3
    s_or_b32 s{sBkt}, s{sBkt}, s{sT0}
    s_cmp_lg_u32 s{sWave}, 2
    s_cbranch_scc1 KA_NO_DIST
    """)
    srd(a, rRecR, sDist, E * 2)
    a(f"""
    s_mul_i32 s{sT0}, s{sBkt}, {BS * 2}
    s_and_b32 s{sT0}, s{sT0}, -4
    v_lshl_add_u32 v70, v95, 4, s{sT0}
    buffer_load_dwordx4 v[76:79], v70, s[{rRecR}:{rRecR+3}], 0 offen
    s_mov_b64 exec, 0xffff
    buffer_load_dwordx4 v[80:83], v70, s[{rRecR}:{rRecR+3}], 0 offen offset:1024
    s_mov_b64 exec, -1
    KA_NO_DIST:
    """)
    a(f"""
    s_cmp_lg_u32 s{sWave}, 1
    s_cbranch_scc1 KA_NO_WEIGHTS
    v_lshlrev_b32 v70, 4, v95
    v_and_b32 v71, 0x1ff, v70
    s_mov_b32 exec_hi, 0
    global_load_dwordx4 v[76:79], v71, s[{sWd}:{sWd+1}]
    s_mov_b32 exec_lo, 0
    s_mov_b32 exec_hi, -1
    global_load_dwordx4 v[76:79], v71, s[{sWu}:{sWu+1}]
    v_and_b32 v71, 0xff, v70
    s_mov_b32 exec_hi, 1
    global_load_dwordx4 v[80:83], v71, s[{sCen}:{sCen+1}]
    s_mov_b64 exec, -1
    v_and_b32 v71, 0xff, v70
    s_mov_b64 exec, 0xffff
    global_load_dwordx4 v[80:83], v71, s[{sWs}:{sWs+1}]
    s_mov_b32 exec_lo, 0xffff0000
    global_load_dwordx4 v[80:83], v71, s[{sWr}:{sWr+1}]
    s_mov_b64 exec, -1
    KA_NO_WEIGHTS:
    """)
    a(f"s_mov_b64 exec, s[{sAct}:{sAct+1}]")
    for j in range(5):
        a(f"buffer_load_dwordx2 v[{vO+2*j}:{vO+2*j+1}], v1, s[{rOutI}:{rOutI+3}], s{so4[j]} offen{ld}")
        a(f"buffer_load_dwordx2 v[{vI+2*j}:{vI+2*j+1}], v1, s[{rIn}:{rIn+3}], s{so4[j]} offen{ld}")
    for j in range(5):
        a(f"buffer_load_dword v{vAn+j}, v2, s[{rAng}:{rAng+3}], s{so2[j]} offen{ld}")
    a("s_mov_b64 exec, -1")
    ts.mark("start")
    a(f"""
    v_add_u32 v70, {STAGE}, v{vT16}
    v_add_u32 v71, 0x10000, v{vT16}
    v_cmp_gt_u32 vcc, {(SORT - 81920) // 16}, v0
    ds_write_b128 v70, v[{vZ}:{vZ+3}]
    ds_write_b128 v70, v[{vZ}:{vZ+3}] offset:16384
    ds_write_b128 v70, v[{vZ}:{vZ+3}] offset:32768
    ds_write_b128 v70, v[{vZ}:{vZ+3}] offset:49152
    ds_write_b128 v{vT16}, v[{vZ}:{vZ+3}]
    ds_write_b128 v{vT16}, v[{vZ}:{vZ+3}] offset:16384
    ds_write_b128 v{vT16}, v[{vZ}:{vZ+3}] offset:32768
    ds_write_b128 v{vT16}, v[{vZ}:{vZ+3}] offset:49152
    ds_write_b128 v71, v[{vZ}:{vZ+3}]
    s_mov_b64 exec, vcc
    ds_write_b128 v71, v[{vZ}:{vZ+3}] offset:16384
    s_mov_b64 exec, -1
    """)

    def epilogue_operands(b):
        a.comment("output addresses: lane = (n = lane&15 edge in tile, g = lane>>4 feature group); distances of the three tiles")
        a(f"""
        s_mul_i32 s{sT0}, s{sBkt}, {BS}
        s_lshl_b32 s{sT1}, s{sWave}, 4
        v_and_b32 v{b+0}, 15, v95
        v_lshrrev_b32 v{b+1}, 4, v95
        v_add_u32 v{b+2}, s{sT1}, v{b+0}
        v_lshlrev_b32 v{b+3}, 3, v{b+1}
        s_lshl_b32 s{sT2}, s{sBkt}, 1
        s_and_b32 s{sT2}, s{sT2}, 2
        s_add_u32 s{sT2}, s{sT2}, {DL}
        v_mov_b32 v{b+6}, 0x80000000
        v_lshl_add_u32 v{b+7}, v{b+2}, 1, s{sT2}
        v_mov_b32 v{vMask}, 0xffff0000
        """)
        for t in range(3):
            a(f"ds_read_u16 v{vDist+t}, v{b+7} offset:{512 * t}")
        srd(a, rM, sM, E * 32)
        srd(a, rOut, sOut, E * 32)
        for t in range(3):
            a(f"""
            v_add_u32 v{b+4}, {256 * t}, v{b+2}
            v_cmp_gt_u32 vcc, {BS}, v{b+4}
            v_add_u32 v{b+4}, s{sT0}, v{b+4}
            v_lshl_add_u32 v{b+5}, v{b+4}, 5, v{b+3}
            v_cndmask_b32 v{vEo[t]}, v{b+6}, v{b+5}, vcc
            """)

    NPRE = 19
    sChO, sRow, sChG, sMag, sHalf, sNeg, sHi, sK = sTot0, sTot1, sBase, sRem0, sRem1, sN0, sN1, sSteps
    a(f"""
    s_mul_i32 s{sChO}, s2, {CH_STRIDE}
    s_mul_i32 s{sChG}, s2, {CHG}
    s_add_u32 s{sChO}, s{sChO}, {p['ws_rec']}
    s_mov_b32 s{sMag}, 6871948
    s_mov_b32 s{sHalf}, {HALF}
    s_mov_b32 s{sNeg}, {-BS}
    s_mov_b32 s{sHi}, 0xffff0000
    s_mov_b32 s{sK}, 1024
    """)
    srd(a, rRecW, sWsp, 0, add=f"s{sChO}")
    srd(a, rRecR, sWsp, NCH * CHG, add=str(p["ws_rec"]), stride=12)
    a(f"s_mov_b64 exec, s[{sAct}:{sAct+1}]")
    for j in range(5):
        o0, o1, i0, i1 = vO + 2 * j, vO + 2 * j + 1, vI + 2 * j, vI + 2 * j + 1
        k0, k1_, r0, r1 = vKey + 2 * j, vKey + 1 + 2 * j, vRank + 2 * j, vRank + 1 + 2 * j
        q0, q1, l0, l1 = 72, 73, 74, 75
        a(f"""
        s_waitcnt vmcnt({5 + 8 - 2 * j})
        v_mul_hi_u32_u24 v{q0}, s{sMag}, v{o0}
        v_mul_hi_u32_u24 v{q1}, s{sMag}, v{o1}
        v_cmp_le_u32 vcc, s{sHalf}, v{i0}
        v_cmp_le_u32 s[{sSwap}:{sSwap+1}], s{sHalf}, v{i1}
        v_mad_i32_i24 v{l0}, v{q0}, s{sNeg}, v{o0}
        v_mad_i32_i24 v{l1}, v{q1}, s{sNeg}, v{o1}
        v_addc_co_u32 v{k0}, vcc, v{q0}, v{q0}, vcc
        v_addc_co_u32 v{k1_}, s[{sSwap}:{sSwap+1}], v{q1}, v{q1}, s[{sSwap}:{sSwap+1}]
        v_lshl_add_u32 v{k0}, v{k0}, 2, v29
        v_lshl_add_u32 v{k1_}, v{k1_}, 2, v29
        ds_add_rtn_u32 v{r0}, v{k0}, v3
        ds_add_rtn_u32 v{r1}, v{k1_}, v3
        v_lshlrev_b32 v{i0}, 10, v{i0}
        v_lshlrev_b32 v{i1}, 10, v{i1}
        v_add3_u32 v{vW+2*j}, v{i0}, v{l0}, s{sK}
        v_add3_u32 v{vW+2*j+1}, v{i1}, v{l1}, s{sK}
        """)
    a("s_mov_b64 exec, -1")
    a("s_waitcnt lgkmcnt(0)")
    a(f"s_lshl_b32 s{sF}, s{sF}, 16")
    ts.mark("histA")
    a("s_barrier")

    def cos_block(tag):
        a.comment("cos(bf16(freq * angle)) rounded to bf16, two angles per register")
        a(f"s_cmp_eq_u32 s{sWave}, 0")
        a("s_cbranch_scc1 KA_ANGLES0")
        a(f"s_waitcnt vmcnt({3 * p['mearly']})")
        a("KA_ANGLES0:")
        a(f"s_waitcnt vmcnt({3 * p['mearly'] + 1})")
        xs = [(4 + 2 * j, 5 + 2 * j) for j in range(5)]
        for j, (x0, x1) in enumerate(xs):
            a(f"v_lshlrev_b32 v{x0}, 16, v{vAn+j}")
            a(f"v_and_b32 v{x1}, s{sHi}, v{vAn+j}")
        a(f"s_cmp_eq_u32 s{sF}, 0x3f800000")
        a(f"s_cbranch_scc1 K_UNIT_FREQ{tag}")
        for x0, x1 in xs:
            a(f"v_mul_f32 v{x0}, s{sF}, v{x0}")
            a(f"v_mul_f32 v{x1}, s{sF}, v{x1}")
        for x0, x1 in xs:
            a(f"v_cvt_pk_bf16_f32 v{x0}, v{x0}, v{x1}")
        for x0, x1 in xs:
            a(f"v_and_b32 v{x1}, s{sHi}, v{x0}")
            a(f"v_lshlrev_b32 v{x0}, 16, v{x0}")
        a(f"K_UNIT_FREQ{tag}:")
        for op in ("v_mul_f32 v{0}, 0.15915494, v{0}", "v_fract_f32 v{0}, v{0}", "v_cos_f32 v{0}, v{0}"):
            for x0, x1 in xs:
                a(op.format(x0))
                a(op.format(x1))
        for j, (x0, x1) in enumerate(xs):
            a(f"v_cvt_pk_bf16_f32 v{vCos+j}, v{x0}, v{x1}")

    a(f"""
    s_cmp_eq_u32 s{sWave}, 0
    s_cbranch_scc1 KA_SCAN
    s_cmp_gt_u32 s{sWave}, 2
    s_cbranch_scc1 KA_SCANNED
    s_mov_b32 s{sT0}, {DL}
    s_cmp_eq_u32 s{sWave}, 1
    s_cselect_b32 s{sT0}, {WL}, s{sT0}
    s_cselect_b32 s{sT1}, -1, 0xffff
    s_cselect_b32 s{sT2}, 1, 0
    v_lshl_add_u32 v70, v95, 4, s{sT0}
    ds_write_b128 v70, v[76:79]
    s_mov_b32 exec_lo, s{sT1}
    s_mov_b32 exec_hi, s{sT2}
    ds_write_b128 v70, v[80:83] offset:1024
    s_mov_b64 exec, -1
    s_waitcnt lgkmcnt(0)
    s_branch KA_SCANNED
    """)
    a("KA_SCAN:")
    a(f"""
    v_mov_b32 v70, 0
    v_mov_b32 v71, 1
    s_mov_b64 exec, 1
    global_atomic_add v70, v71, s[{sDbg}:{sDbg+1}]
    s_mov_b64 exec, -1
    v_lshlrev_b32 v70, 5, v95
    v_add_u32 v69, {ACNT}, v70
    ds_read_b128 v[72:75], v69
    ds_read_b128 v[76:79], v69 offset:16
    s_mov_b32 s{sT1}, 43691
    s_waitcnt lgkmcnt(0)
    """)
    for i in range(8):
        a(f"v_and_b32 v{80+i}, 2, v{72+i}")
    for i in range(8):
        a(f"v_mad_u32_u24 v{72+i}, v{80+i}, 3, v{72+i}")
    for i in range(1, 8):
        a(f"v_add_u32 v{72+i}, v{71+i}, v{72+i}")
    a("v_mov_b32 v71, v79")
    scan_add(a, 71)
    a(f"v_sub_u32 v80, v71, v79")
    a(f"v_readlane_b32 s{sT0}, v71, 63")
    for i in range(1, 8):
        a(f"v_add_u32 v{80+i}, v80, v{71+i}")
    for i in range(8):
        a(f"v_add_u32 v{72+i}, {STAGE}, v{80+i}")
    a(f"""
    v_mov_b32 v88, s{sT0}
    ds_write_b128 v69, v[72:75]
    ds_write_b128 v69, v[76:79] offset:16
    ds_write_b32 v29, v88 offset:2048
    s_waitcnt lgkmcnt(0)
    """)
    a("KA_SCANNED:")
    a("s_barrier")
    ts.mark("scanA")
    a("ds_read_b32 v68, v29 offset:2048")
    a(f"s_mov_b64 exec, s[{sAct}:{sAct+1}]")
    vB = 14
    for i in range(10):
        a(f"ds_read_b32 v{vB+i}, v{vKey+i}")
    a("s_mov_b64 exec, -1")
    a(f"s_cmp_lg_u32 s{sWave}, 0")
    a("s_cbranch_scc1 KA_HAVE_ENTRIES")
    a(f"v_mov_b32 v88, v71")
    for i in range(9):
        a(f"v_mul_u32_u24 v{80+i}, s{sT1}, v{80+i}")
    for i in range(9):
        a(f"v_lshrrev_b32 v{80+i}, 19, v{80+i}")
    a(f"s_or_b32 s{sChG}, s{sChG}, 0x80000000")
    for b in range(4):
        a(f"v_sub_u32 v{72+2*b}, v{81+2*b}, v{80+2*b}")
        a(f"v_sub_u32 v{73+2*b}, v{82+2*b}, v{81+2*b}")
    for b in range(4):
        a(f"v_lshl_or_b32 v{vEnt+2*b+1}, v{73+2*b}, 16, v{72+2*b}")
        a(f"v_add_u32 v{vEnt+2*b}, s{sChG}, v{80+2*b}")
    a("KA_HAVE_ENTRIES:")
    if p["mearly"]:
        epilogue_operands(4)
        for t in range(3):
            a(f"buffer_load_dwordx2 v[{vM+2*t}:{vM+2*t+1}], v{vEo[t]}, s[{rM}:{rM+3}], 0 offen")
    a(f"s_mov_b64 exec, s[{sAct}:{sAct+1}]")
    for i in range(10):
        a(f"v_and_b32 v{vKey+i}, 2, v{vRank+i}")
        a(f"v_sub_u32 v{vRank+i}, v{vRank+i}, v{vKey+i}")
    a("s_waitcnt lgkmcnt(0)")
    for i in range(10):
        a(f"v_add_u32 v{vB+i}, v{vB+i}, v{vRank+i}")
        a(f"ds_write_b32 v{vB+i}, v{vW+i}")
        a(f"v_sub_u32 v{vKey+i}, v{vB+i}, v{vKey+i}")
    cos_block("A")
    for i in range(10):
        a(f"ds_write_b16{'_d16_hi' if i % 2 else ''} v{vKey+i}, v{vCos+i//2} offset:8")
    a("s_mov_b64 exec, -1")
    a(f"v_readfirstlane_b32 s{rRecW+2}, v68")
    a(f"v_add_u32 v69, {STAGE}, v{vT16}")
    for i in range(1, 4):
        a(f"v_add_u32 v{65+i}, {i*16384}, v{vT16}")
    a(f"s_add_u32 s{rRecW+2}, s{rRecW+2}, 15")
    a(f"s_and_b32 s{rRecW+2}, s{rRecW+2}, -16")
    a("s_waitcnt lgkmcnt(0)")
    a("s_barrier")
    ts.mark("scatA")
    for i in range(4):
        a(f"ds_read_b128 v[{4+4*i}:{7+4*i}], v69 offset:{16384 * i}")
    for i in range(4):
        a(f"s_waitcnt lgkmcnt({3 - i})")
        a(f"buffer_store_dwordx4 v[{4+4*i}:{7+4*i}], v{vT16 if i == 0 else 65+i}, s[{rRecW}:{rRecW+3}], 0 offen sc1")
    if not p["mearly"]:
        epilogue_operands(20)
    rbf_block(a, 32, lambda: warm(a, p))
    a("v_mov_b32 v1, v95")


def phase_b(a, p, ts):
    DEPTH = p["depth"]
    NU = 24
    NRB = 5
    NMIN = 8
    vCoff, vLoff, vSel = 2, 3, 4
    REC, RING, NRING = 8, 32, DEPTH + 1
    RAW = ([REC + 4 * k for k in range(NRB)], [48, 52, 56, 60, 88])
    RANK = (74, 20)
    vLa, vC, vGA, vL, vE, vX, vD = 64, 66, 67, 68, 72, 76, 80
    vBin = (64, 68)
    vRb, vPar, vEight, vGA2 = 92, 93, 94, 95
    vEn = 44
    vSt, vLn, vJ, vJ1 = (40, 41), (42, 43), 38, 39
    sOv, sN = (sRem0, sRem1), (sN0, sN1)
    sSeg, sLen, sStart = sTot0, sMk, sT2

    def convert(r, t=80):
        a(f"""
        v_and_b32 v{r+3}, 0x3ff, v{r+1}
        v_lshrrev_b32 v{t}, 5, v{r+1}
        v_and_b32 v{r+1}, 0x3ff, v{r}
        v_lshrrev_b32 v{r}, 5, v{r}
        v_and_or_b32 v{r+3}, v{r+2}, v{vMask}, v{r+3}
        v_lshl_or_b32 v{r+1}, v{r+2}, 16, v{r+1}
        v_and_b32 v{r+2}, -32, v{t}
        v_and_b32 v{r}, -32, v{r}
        """)

    def skip(beta, k, label):
        if k == NRB - 1:
            a(f"s_cmp_eq_u32 s{sOv[beta]}, 0")
            a(f"s_cbranch_scc1 {label}")

    def load(r):
        a(f"buffer_load_dwordx3 v[{r}:{r+2}], v{r}, s[{rRecR}:{rRecR+3}], 0 idxen sc1")

    def indices(beta):
        for k in range(4):
            r = RAW[beta][k]
            a(f"v_add_u32_dpp v{r}, v{vSt[beta]}, v{vJ} row_newbcast:{k} row_mask:0xf bank_mask:0xf")
            a(f"v_sub_u32_dpp v{r+1}, v{vLn[beta]}, v{vJ1} row_newbcast:{k} row_mask:0xf bank_mask:0xf")
            a(f"v_and_or_b32 v{r}, v{r+1}, s{sT3}, v{r}")
            if beta == 0:
                load(r)
        r = RAW[beta][4]
        a(f"""
        v_cmp_lt_u32 vcc, 16, v{vLn[beta]}
        v_mov_b32 v{r}, -1
        s_mov_b32 s{sOv[beta]}, 0
        s_cbranch_vccz KB_SHORT{beta}
        s_mov_b32 s{sOv[beta]}, 1
        s_bcnt1_i32_b64 s{sT0}, vcc
        v_cmp_lt_u32 s[{sAct}:{sAct+1}], 32, v{vLn[beta]}
        s_cmp_gt_u32 s{sT0}, 4
        s_cselect_b32 s{sPhase}, 1, s{sPhase}
        v_mov_b32 v{r+2}, 0
        v_mov_b32 v{r+3}, 0
        s_cmp_lg_u64 s[{sAct}:{sAct+1}], 0
        s_cselect_b32 s{sPhase}, 1, s{sPhase}
        """)
        for i in range(4):
            a(f"""
            s_ff1_i32_b64 s{sT0}, vcc
            s_bitset0_b64 vcc, s{sT0}
            v_readlane_b32 s{sT1}, v{vSt[beta]}, s{sT0}
            v_readlane_b32 s{sT0}, v{vLn[beta]}, s{sT0}
            s_add_u32 s{sT1}, s{sT1}, 16
            s_sub_u32 s{sT0}, s{sT0}, 16
            v_writelane_b32 v{r+2}, s{sT1}, {16 * i}
            v_writelane_b32 v{r+3}, s{sT0}, {16 * i}
            """)
            if i < 3:
                a(f"s_cmp_eq_u64 vcc, 0")
                a(f"s_cbranch_scc1 KB_LONG{beta}")
        a(f"""
        KB_LONG{beta}:
        s_nop 1
        v_add_u32_dpp v{r}, v{r+2}, v{vJ} row_newbcast:0 row_mask:0xf bank_mask:0xf
        v_sub_u32_dpp v{r+1}, v{r+3}, v{vJ1} row_newbcast:0 row_mask:0xf bank_mask:0xf
        v_and_or_b32 v{r}, v{r+1}, s{sT3}, v{r}
        KB_SHORT{beta}:
        """)
        if beta == 0:
            load(r)

    def hist(beta, waits):
        off = f" offset:{CNT1}" if beta else ""
        for k in range(NRB):
            skip(beta, k, f"KB_HISTED{beta}")
            if waits:
                a(f"s_waitcnt vmcnt({NRB - 1 - k})")
            r = RAW[beta][k]
            for h in range(2):
                a(f"v_lshrrev_b32 v{vBin[beta]+2*k+h}, 15, v{r+h}")
            for h in range(2):
                a(f"v_and_b32 v{vBin[beta]+2*k+h}, -4, v{vBin[beta]+2*k+h}")
            for h in range(2):
                a(f"v_cmpx_ne_u32 vcc, 0, v{r+h}")
                a(f"ds_add_rtn_u32 v{RANK[beta]+2*k+h}, v{vBin[beta]+2*k+h}, v{vEight}{off}")
                a(f"s_mov_b64 exec, -1")
        a(f"KB_HISTED{beta}:")

    def scan(beta, B, t):
        a.comment("one wave: exclusive scan of the bin counters (bytes); null records behind the last real one")
        a(f"""
        v_mul_u32_u24 v{t}, 48, v1
        ds_read_b128 v[{B}:{B+3}], v{t} offset:{3072 * beta}
        ds_read_b128 v[{B+4}:{B+7}], v{t} offset:{3072 * beta + 16}
        ds_read_b128 v[{B+8}:{B+11}], v{t} offset:{3072 * beta + 32}
        v_mov_b32 v{t+2}, 0
        s_waitcnt lgkmcnt(0)
        """)
        for i in range(1, 12):
            a(f"v_add_u32 v{B+i}, v{B+i-1}, v{B+i}")
        a(f"v_mov_b32 v{t+1}, v{B+11}")
        scan_add(a, t + 1)
        a(f"v_readlane_b32 s{sT0}, v{t+1}, 63")
        a(f"v_sub_u32 v{t+1}, v{t+1}, v{B+11}")
        a(f"v_add_u32 v{t+1}, {SORT}, v{t+1}")
        for i in range(11, 0, -1):
            a(f"v_add_u32 v{B+i}, v{t+1}, v{B+i-1}")
        a(f"v_mov_b32 v{B}, v{t+1}")
        a(f"""
        v_mov_b32 v{t+3}, s{sT0}
        ds_write_b128 v{t}, v[{B}:{B+3}] offset:{3072 * beta}
        ds_write_b128 v{t}, v[{B+4}:{B+7}] offset:{3072 * beta + 16}
        ds_write_b128 v{t}, v[{B+8}:{B+11}] offset:{3072 * beta + 32}
        ds_write_b32 v{t+2}, v{t+3} offset:{MISC + 16 + 4 * beta}
        s_min_u32 s{sT0}, s{sT0}, {SORTCAP * 8}
        s_add_u32 s{sT0}, s{sT0}, {SORT}
        v_lshl_add_u32 v{t+1}, v1, 2, s{sT0}
        ds_write_b32 v{t+1}, v{t+2}
        """)

    def convert_all(beta, t):
        for k in range(NRB):
            skip(beta, k, f"KB_CONV{beta}")
            convert(RAW[beta][k], t)
        a(f"KB_CONV{beta}:")

    def scatter(beta, t):
        off = f" offset:{CNT1}" if beta else ""
        a(f"v_mov_b32 v{t}, 0")
        a(f"ds_read_b32 v{t+1}, v{t} offset:{MISC + 16 + 4 * beta}")
        for k in range(NRB):
            skip(beta, k, f"KB_BASES{beta}")
            for h in range(2):
                b = vBin[beta] + 2 * k + h
                if beta:
                    a(f"v_lshrrev_b32 v{b}, 10, v{RAW[beta][k]+2*h}")
                    a(f"v_and_b32 v{b}, -4, v{b}")
                a(f"ds_read_b32 v{b}, v{b}{off}")
        a(f"KB_BASES{beta}:")
        a("s_waitcnt lgkmcnt(0)")
        a(f"v_readfirstlane_b32 s{sN[beta]}, v{t+1}")
        for k in range(NRB):
            skip(beta, k, f"KB_SCATTERED{beta}")
            for h in range(2):
                d, b = RAW[beta][k] + 2 * h, vBin[beta] + 2 * k + h
                a(f"v_add_u32 v{b}, v{b}, v{RANK[beta]+2*k+h}")
                a(f"v_cmpx_ne_u32 vcc, 0, v{d}")
                a(f"ds_write_b64 v{b}, v[{d}:{d+1}]")
                a(f"s_mov_b64 exec, -1")
        a(f"KB_SCATTERED{beta}:")
        n = sN[beta]
        a(f"""
        s_add_u32 s{n}, s{n}, 255
        s_lshr_b32 s{n}, s{n}, 8
        s_sub_u32 s{n}, s{n}, s{sWave}
        s_add_u32 s{n}, s{n}, 15
        s_lshr_b32 s{n}, s{n}, 4
        """)

    seq, done = [], set()

    def wait_for(op):
        if op in done:
            return
        i = seq.index(op)
        a(f"s_waitcnt vmcnt({len(seq) - 1 - i})")
        done.update(seq[: i + 1])

    def qperm(kk):
        return f"quad_perm:[{kk},{kk},{kk+2},{kk+2}] row_mask:0xf bank_mask:0xf"

    def issue(u, track=True):
        kb, kk, h = u // 4, (u // 2) % 2, u % 2
        slot = RING + 4 * (u % NRING)
        guard = u >= p["guard"]
        if guard:
            a(f"s_cmp_gt_u32 s{sSteps}, {u}")
            a(f"s_cselect_b64 exec, -1, 1")
        ga = (vGA, vGA2)[u % 2]
        a(f"v_add_u32_dpp v{ga}, v{REC+4*kb+2*h}, v{vCoff} {qperm(kk)}")
        a(f"buffer_load_dwordx4 v[{slot}:{slot+3}], v{ga}, s[{rM}:{rM+3}], 0 offen")
        if track:
            seq.append(("G", u))
        if guard:
            a("s_mov_b64 exec, -1")

    def process(u):
        kb, kk, h = u // 4, (u // 2) % 2, u % 2
        slot = RING + 4 * (u % NRING)
        if u % 4 == 0:
            for hh in range(2):
                a(f"v_lshlrev_b32_sdwa v{vLa+hh}, 7, v{REC+4*kb+2*hh+1} dst_sel:DWORD dst_unused:UNUSED_PAD src0_sel:DWORD src1_sel:WORD_0")
        a(f"v_and_b32_dpp v{vC}, v{REC+4*kb+2*h+1}, v{vMask} {qperm(kk)}")
        a(f"v_xor_b32_dpp v{vL}, v{vLa+h}, v{vLoff} {qperm(kk)}")
        wait_for(("G", u))
        if p["no_valu"]:
            return
        for i in range(4):
            a(f"v_cndmask_b32 v{vE+i}, v{slot+i}, v{slot+(i^2)}, s[{sSwap}:{sSwap+1}]")
        for j in range(1, 4):
            a(f"v_xor_b32 v{vL+j}, {8*j}, v{vL}")
        for half in range(2):
            for j in range(4):
                a(f"v_perm_b32 v{vX+j}, v{vE+2*half+1}, v{vE+2*half}, v{vSel+j}")
            if half:
                for j in range(4):
                    a(f"v_xor_b32 v{vL+j}, 32, v{vL+j}")
            for j in range(4):
                a(f"v_mul_f32 v{vX+j}, v{vC}, v{vX+j}")
            for j in range(4):
                a(f"v_cvt_f64_f32 v[{vD+2*j}:{vD+2*j+1}], v{vX+j}")
            for j in range(4):
                if not p["no_ds"]:
                    a(f"ds_add_f64 v{vL+j}, v[{vD+2*j}:{vD+2*j+1}] offset:{ACC}")

    a(f"""
    v_and_b32 v32, 1, v1
    v_bfe_u32 v33, v1, 1, 3
    v_lshlrev_b32 v{vCoff}, 4, v32
    v_lshlrev_b32 v{vLoff}, 6, v32
    v_subrev_u32 v{vCoff}, 32, v{vCoff}
    v_lshl_add_u32 v{vLoff}, v33, 3, v{vLoff}
    v_mov_b32 v{vEight}, 8
    s_mov_b32 s{sT0}, 0x02020000
    s_mov_b32 s{sT1}, 0x01000c0c
    s_mov_b32 s{sSwap}, 0xff00ff00
    s_mov_b32 s{sSwap+1}, 0xff00ff00
    v_lshrrev_b32 v34, 1, v1
    v_lshlrev_b32 v34, 3, v34
    v_lshl_add_u32 v{vRb}, v32, 13, v34
    s_lshl_b32 s{sT2}, s{sWave}, 8
    s_add_u32 s{sT2}, s{sT2}, {SORT}
    v_lshlrev_b32 v{vPar}, 1, v32
    v_and_b32 v33, 3, v33
    v_add_u32 v{vRb}, s{sT2}, v{vRb}
    v_and_b32 v{vJ}, 15, v1
    v_lshrrev_b32 v35, 4, v1
    v_add_u32 v{vJ1}, 1, v{vJ}
    v_lshl_add_u32 v46, v{vJ}, 2, v35
    v_lshlrev_b32 v46, 11, v46
    v_lshlrev_b32 v47, 5, v1
    s_lshl_b32 s{sT2}, s{sWave}, 15
    s_lshl_b32 s{sT3}, s{sBkt}, 3
    s_add_u32 s{sT2}, s{sT2}, s{sT3}
    v_mov_b32 v{vEn}, 0
    v_mov_b32 v{vEn+1}, 0
    v_mov_b32 v36, 0
    """)
    for j in range(4):
        a(f"v_xor_b32 v34, {j}, v33")
        a(f"v_mul_lo_u32 v34, v34, s{sT0}")
        a(f"v_add_u32 v{vSel+j}, s{sT1}, v34")
    a(f"""
    s_mov_b32 s{sT3}, 0x40000
    s_cmp_lg_u32 s{sWave}, 0
    s_cbranch_scc1 KB_ROWS_CLEAR
    """)
    a(f"""
    KB_POLL_CLEAR:
    global_load_dword v37, v36, s[{sDbg}:{sDbg+1}] sc1
    s_waitcnt vmcnt(0)
    v_readfirstlane_b32 s{sT0}, v37
    s_cmp_ge_u32 s{sT0}, {NCH}
    s_cbranch_scc1 KB_ROWS_CLEAR
    s_sub_u32 s{sT3}, s{sT3}, 1
    s_cbranch_scc1 K_END
    s_sleep 16
    s_branch KB_POLL_CLEAR
    KB_ROWS_CLEAR:
    """)
    a(f"""
    s_waitcnt vmcnt(0)
    s_barrier
    """)
    ts.mark("pub")
    a(f"""
    s_cmp_lg_u32 s{sWave}, 0
    s_cbranch_scc1 KB_PUBLISHED
    buffer_store_dwordx4 v[{vEnt}:{vEnt+3}], v47, s[{rOff}:{rOff+3}], s{sTot1} offen sc1
    buffer_store_dwordx4 v[{vEnt+4}:{vEnt+7}], v47, s[{rOff}:{rOff+3}], s{sTot1} offen offset:16 sc1
    KB_PUBLISHED:
    """)
    a(f"""
    s_mov_b32 exec_lo, 0x000f000f
    s_mov_b32 exec_hi, 0x000f000f
    KB_POLL:
    buffer_load_dwordx2 v[{vEn}:{vEn+1}], v46, s[{rOff}:{rOff+3}], s{sT2} offen sc1
    s_waitcnt vmcnt(0)
    v_cmpx_le_i32 vcc, 0, v{vEn}
    s_sub_u32 s{sT3}, s{sT3}, 1
    s_cbranch_execz KB_READY
    s_cbranch_scc1 K_END
    s_sleep {p['sleep']}
    s_branch KB_POLL
    KB_READY:
    s_mov_b64 exec, -1
    s_nop 1
    """)
    ts.mark("ready")
    a(f"""
    v_and_b32 v{vSt[0]}, 0x7fffffff, v{vEn}
    v_and_b32 v{vLn[0]}, 0xffff, v{vEn+1}
    v_lshrrev_b32 v{vLn[1]}, 16, v{vEn+1}
    s_mov_b32 s{sT3}, 0x80000000
    s_mov_b32 s{sPhase}, {1 if p['force_fb'] else 0}
    v_add_u32 v{vSt[1]}, v{vSt[0]}, v{vLn[0]}
    """)
    indices(0)
    indices(1)
    a(f"""
    v_add_u32_dpp v36, v{vLn[1]}, v{vLn[1]} quad_perm:[1,0,3,2] row_mask:0xf bank_mask:0xf
    s_lshl_b32 s{sT0}, s{sPhase}, 20
    v_mov_b32 v35, 0
    v_add_u32_dpp v36, v36, v36 quad_perm:[2,3,0,1] row_mask:0xf bank_mask:0xf
    v_add_u32 v36, s{sT0}, v36
    s_mov_b32 exec_lo, 0x00010001
    s_mov_b32 exec_hi, 0x00010001
    ds_add_u32 v35, v36 offset:{MISC}
    s_mov_b64 exec, -1
    """)
    hist(0, True)
    a("s_waitcnt vmcnt(0)")
    for k in range(NRB):
        load(RAW[1][k])
    a("s_waitcnt lgkmcnt(0)")
    a("s_barrier")
    ts.mark("B2")
    a(f"""
    s_cmp_lg_u32 s{sWave}, 0
    s_cbranch_scc1 KB_SCANNED0
    """)
    scan(0, 28, 84)
    a("KB_SCANNED0:")
    convert_all(0, 84)
    a(f"""
    s_waitcnt lgkmcnt(0)
    s_barrier
    v_mov_b32 v84, 0
    ds_read_b32 v86, v84 offset:{MISC}
    ds_read_b32 v87, v84 offset:{MISC + 16}
    s_waitcnt lgkmcnt(0)
    v_readfirstlane_b32 s{sT0}, v86
    v_readfirstlane_b32 s{sT1}, v87
    s_cmp_gt_u32 s{sT0}, {SORTCAP // 2}
    s_cbranch_scc1 KB_UNSORTED
    s_sub_u32 s{sT1}, s{sT1}, {NMIN * 512 * 8}
    s_cmp_gt_u32 s{sT1}, {(SORTCAP - NMIN * 512) * 8}
    s_cbranch_scc1 KB_UNSORTED
    """)
    scatter(0, 84)
    a(f"s_mov_b32 s{sPhase}, 2")
    a(f"s_mov_b32 s{sSteps}, {NU}")
    a("s_waitcnt lgkmcnt(0)")
    a("s_barrier")
    ts.mark("B4")
    for k in range(3):
        for h in range(2):
            a(f"ds_read_b64 v[{REC+4*k+2*h}:{REC+4*k+2*h+1}], v{vRb} offset:{16384 * k + 4096 * h}")
    a("s_waitcnt vmcnt(0) lgkmcnt(4)")
    issue(0, track=False)
    hist(1, False)
    a(f"""
    s_waitcnt lgkmcnt(0)
    s_barrier
    s_cmp_lg_u32 s{sWave}, 0
    s_cbranch_scc1 KB_SCANNED1
    """)
    scan(1, 68, 80)
    a("KB_SCANNED1:")
    issue(1, track=False)
    convert_all(1, 84)
    a("s_waitcnt lgkmcnt(0)")
    a("s_barrier")
    scatter(1, 80)
    a(f"""
    v_mov_b32 v81, 1
    s_mov_b64 exec, 1
    ds_add_u32 v80, v81 offset:{MISC + 32}
    s_mov_b64 exec, -1
    """)
    issue(2, track=False)
    a("s_branch KB_LOOP")
    a(f"""
    KB_UNSORTED:
    s_waitcnt vmcnt(0)
    v_mov_b32 v48, v{vSt[0]}
    v_mov_b32 v49, v{vSt[1]}
    v_mov_b32 v50, v{vLn[0]}
    v_mov_b32 v51, v{vLn[1]}
    s_mov_b32 s{sPhase}, 0
    s_mov_b32 s{sSeg}, -1
    s_mov_b32 s{sLen}, 0
    s_mov_b32 s{sBase}, 0
    KB_NEXT_PASS:
    s_cmp_lt_u32 s{sBase}, s{sLen}
    s_cbranch_scc1 KB_PASS
    s_add_u32 s{sSeg}, s{sSeg}, 1
    s_cmp_ge_u32 s{sSeg}, 32
    s_cbranch_scc1 KB_DONE
    s_bfe_u32 s{sT0}, s{sSeg}, 0x20002
    s_lshl_b32 s{sT0}, s{sT0}, 4
    s_and_b32 s{sT1}, s{sSeg}, 3
    s_or_b32 s{sT0}, s{sT0}, s{sT1}
    s_mov_b32 s{sBase}, 0
    v_readlane_b32 s{sStart}, v48, s{sT0}
    v_readlane_b32 s{sLen}, v50, s{sT0}
    s_cmp_lt_u32 s{sSeg}, 16
    s_cbranch_scc1 KB_NEXT_PASS
    v_readlane_b32 s{sStart}, v49, s{sT0}
    v_readlane_b32 s{sLen}, v51, s{sT0}
    s_nop 0
    s_branch KB_NEXT_PASS
    KB_PASS:
    s_sub_u32 s{sSteps}, s{sLen}, s{sBase}
    s_add_u32 s{sT0}, s{sStart}, s{sBase}
    s_add_u32 s{sBase}, s{sBase}, 256
    """)
    for k in range(4):
        r = REC + 4 * k
        a(f"""
        v_add_u32 v{r}, {64 * k}, v1
        v_cmp_gt_u32 vcc, s{sSteps}, v{r}
        v_add_u32 v{r}, s{sT0}, v{r}
        v_cndmask_b32 v{r}, -1, v{r}, vcc
        """)
        load(r)
    a(f"""
    s_add_u32 s{sSteps}, s{sSteps}, 63
    s_lshr_b32 s{sSteps}, s{sSteps}, 6
    s_min_u32 s{sSteps}, s{sSteps}, 4
    s_lshl_b32 s{sSteps}, s{sSteps}, 2
    s_waitcnt vmcnt(0)
    """)
    for k in range(4):
        convert(REC + 4 * k)
    a("s_nop 1")
    for u in range(DEPTH):
        issue(u)
    a("KB_LOOP:")
    ts.mark("loop")
    for t in range(0 if p["mearly"] else 3):
        a(f"buffer_load_dwordx2 v[{vM+2*t}:{vM+2*t+1}], v{vEo[t]}, s[{rM}:{rM+3}], 0 offen")
        seq.append(("M", t))

    def stage(i):
        a(f"s_cmp_lg_u32 s{sPhase}, 2")
        a(f"s_cbranch_scc1 KB_STAGED{i}")
        if i == 0:
            a(f"""
            s_lshl_b32 s{sT0}, s{sN0}, 12
            s_add_u32 s{sSteps}, s{sN0}, s{sN1}
            v_subrev_u32 v80, s{sT0}, v{vRb}
            v_subrev_u32 v82, s{sN0}, v{vPar}
            v_add_u32 v81, 0x10000, v80
            v_mov_b32 v83, 0
            s_mov_b32 s{sT1}, 0x200000
            KB_WAIT_SORTED:
            ds_read_b32 v84, v83 offset:{MISC + 32}
            s_sub_u32 s{sT1}, s{sT1}, 1
            s_cbranch_scc1 K_END
            s_waitcnt lgkmcnt(0)
            v_readfirstlane_b32 s{sT0}, v84
            s_cmp_lt_u32 s{sT0}, 16
            s_cbranch_scc1 KB_WAIT_SORTED
            """)
            for k in range(NMIN // 4, 6):
                for h in range(2):
                    u0 = 4 * k + h
                    base, off = (80, 16384 * k + 4096 * h) if k < 4 else (81, 16384 * (k - 4) + 4096 * h)
                    a(f"v_cmpx_le_i32 vcc, {-u0}, v82")
                    a(f"ds_read_b64 v[{REC+4*k+2*h}:{REC+4*k+2*h+1}], v{base} offset:{off}")
                    a(f"s_mov_b64 exec, -1")
            a("s_nop 2")
        else:
            a("s_waitcnt lgkmcnt(0)")
        a(f"KB_STAGED{i}:")

    prio = {int(x.split(":")[0]): int(x.split(":")[1]) for x in p["prio"].split(",") if x}
    stages = [int(x) for x in p["stages"].split(",")]
    assert stages[1] + 1 + DEPTH <= NMIN
    for u in range(NU):
        if u in prio:
            a(f"s_setprio {prio[u]}")
        if u + DEPTH < NU:
            issue(u + DEPTH)
        process(u)
        for i, at in enumerate(stages):
            if at == u:
                stage(i)
        if u < NU - 1:
            a(f"s_cmp_le_u32 s{sSteps}, {u+1}")
            a(f"s_cbranch_scc1 KB_LOOPED")
    a("KB_LOOPED:")
    a(f"""
    s_waitcnt vmcnt(0)
    s_cmp_lg_u32 s{sPhase}, 2
    s_cbranch_scc1 KB_NEXT_PASS
    """)
    a("KB_DONE:")
    vA, vMf, vRf, vF, vB = 8, 32, 44, 68, 80
    a(f"""
    v_and_b32 v64, 15, v1
    v_lshrrev_b32 v65, 4, v1
    v_lshlrev_b32 v64, 7, v64
    s_lshl_b32 s{sT0}, s{sWave}, 11
    v_lshl_add_u32 v64, v65, 5, v64
    v_add_u32 v64, s{sT0}, v64
    v_add_u32 v65, 0x10000, v64
    """)
    for t in range(3):
        for src, dst_ in ((vM, vMf), (vR, vRf)):
            a(f"v_lshlrev_b32 v{dst_+4*t}, 16, v{src+2*t}")
            a(f"v_and_b32 v{dst_+4*t+1}, v{vMask}, v{src+2*t}")
            a(f"v_lshlrev_b32 v{dst_+4*t+2}, 16, v{src+2*t+1}")
            a(f"v_and_b32 v{dst_+4*t+3}, v{vMask}, v{src+2*t+1}")
    a("s_waitcnt lgkmcnt(0)")
    a("s_barrier")
    ts.mark("fin")
    op = (" " + p["out_pol"]) if p["out_pol"] else ""

    def tiles(ts_):
        for t in ts_:
            base, off = (64, 32768 * t + ACC) if t < 2 else (65, ACC)
            a(f"ds_read_b128 v[{vA+8*t}:{vA+8*t+3}], v{base} offset:{off}")
            a(f"ds_read_b128 v[{vA+8*t+4}:{vA+8*t+7}], v{base} offset:{off+16}")
        for n, t in enumerate(ts_):
            f, b = vF + 4 * t, vB + 2 * t
            a(f"s_waitcnt lgkmcnt({2 * (len(ts_) - 1 - n)})")
            for i in range(4):
                a(f"v_cvt_f32_f64 v{f+i}, v[{vA+8*t+2*i}:{vA+8*t+2*i+1}]")
            a(f"v_cvt_pk_bf16_f32 v{b}, v{f}, v{f+1}")
            a(f"v_cvt_pk_bf16_f32 v{b+1}, v{f+2}, v{f+3}")
            a(f"v_mfma_f32_16x16x16_bf16 v[{vA+8*t}:{vA+8*t+3}], v[{vWd}:{vWd+1}], v[{b}:{b+1}], 0")
        for t in ts_:
            f, b = vF + 4 * t, vB + 2 * t
            for i in range(4):
                a(f"v_mul_f32 v{f+i}, v{vA+8*t+i}, v{vS+4*t+i}")
            a(f"v_cvt_pk_bf16_f32 v{b}, v{f}, v{f+1}")
            a(f"v_cvt_pk_bf16_f32 v{b+1}, v{f+2}, v{f+3}")
            a(f"v_mfma_f32_16x16x16_bf16 v[{vA+8*t+4}:{vA+8*t+7}], v[{vWu}:{vWu+1}], v[{b}:{b+1}], 0")
        for t in ts_:
            b = vB + 2 * t
            for i in range(4):
                a(f"v_fmac_f32 v{vMf+4*t+i}, v{vA+8*t+4+i}, v{vRf+4*t+i}")
            a(f"v_cvt_pk_bf16_f32 v{b}, v{vMf+4*t}, v{vMf+4*t+1}")
            a(f"v_cvt_pk_bf16_f32 v{b+1}, v{vMf+4*t+2}, v{vMf+4*t+3}")
            a(f"buffer_store_dwordx2 v[{b}:{b+1}], v{vEo[t]}, s[{rOut}:{rOut+3}], 0 offen{op}")

    a(f"s_cmp_ge_u32 s{sWave}, 8")
    a("s_cbranch_scc1 KB_TWO_TILES")
    tiles([0, 1, 2])
    a("s_branch KB_STORED")
    a("KB_TWO_TILES:")
    tiles([0, 1])
    a("KB_STORED:")


def build(p):
    ref = open("standalone__molecular_angular_gemnet__graph.s.ref").read().split("\n")
    out = [l for l in ref if l.startswith(";") and "@launch" not in l and "Override launch" not in l and "grid=ceil" not in l]
    if p["diag"]:
        out.append(f"; @launch kernel={NAME} grid=(256,1,1) block=(1024,1,1) lds={LDS}")
        out.append("; @launch kernel=diag_kernel grid=(1,1,1) block=(256,1,1) lds=1024")
    else:
        out.append(f"; @launch grid=(256,1,1) block=(1024,1,1) lds={LDS}")
    out.append('.amdgcn_target "amdgcn-amd-amdhsa--gfx950"')
    out.append(".text")
    a = Asm()
    ts = Stamps(a, p)
    a.raw(f".globl {NAME}\n.p2align 8\n.type {NAME},@function\n{NAME}:")
    phase_a(a, p, ts)
    phase_b(a, p, ts)
    if p["ts"]:
        a("s_waitcnt vmcnt(0)")
        ts.mark("end")
        ts.flush()
    a("K_END:")
    a("s_endpgm")
    extra = ""
    if p["diag"]:
        from diag import diag_kernel
        f = p["diag"].split(",")
        a.raw(diag_kernel((int(f[0]), int(f[1]), f[2], int(f[3]), int(f[4]), f[5]), p["mult"]))
        extra += ".p2align 6\n" + kd("diag_kernel", 32, 32)
    return "\n".join(out) + "\n" + a.text() + '.section .rodata,"a"\n.p2align 6\n' + kd(NAME, 128, 102 if p['ts'] else 96) + extra


if __name__ == "__main__":
    ap = argparse.ArgumentParser()
    ap.add_argument("-o", default="standalone__molecular_angular_gemnet__graph.s")
    ap.add_argument("kv", nargs="*")
    args = ap.parse_args()
    p = dict(P)
    for kv in args.kv:
        k, v = kv.split("=")
        p[k] = v.replace("+", " ") if not isinstance(P[k], int) else int(v, 0)
    open(args.o, "w").write(build(p))
```

```python
import argparse
from emit import Asm
from gen1 import kd, scan_add

NAME = "standalone__molecular_angular_gemnet__graph_kernel"
E, T = 160000, 2560000
NB, BS = 256, 625
NCH, CH = 256, 10000
CHG = 5280
CH_STRIDE = CHG * 12
OFFROW = 2048
HALF = 626 * 128 - 1

P = dict(ws_rec=0, ld_pol="nt", depth=3, ts=0, no_ds=0, no_valu=0, prio="0:3,5:2,10:1,15:0",
         diag="", mult=10, guard=16, force_fb=0, sleep=2, out_pol="", tsel="start,histA,scanA,scatA,pub,ready,end", tswave=0, stages='3,4', scanwave=0, warm=0, wstride=128, mearly=0, mpos=2, r1pos=1, poll_pol='sc1', pub_pol='sc1', rec_pol='sc1', anglate=3, pk=0, xmap=1, touch=0, angw=13)

CNT1 = 3072 - 626 * 4
MISC = 6144
ACC = 6400
SORT = ACC + 81920
SORTCAP = 6144
STAGE = SORT
ACNT = STAGE + 65536
WL = ACNT + 2080
DL = WL + 1552
LDS = DL + 1280

sM, sIn, sOutI, sDist, sAng, sCen, sFreq, sWr = 4, 6, 8, 10, 12, 14, 16, 18
sWs, sWd, sWu, sOut, sDbg, sWsp = 20, 22, 24, 26, 28, 30
rIn, rOutI, rAng, rRecW, rOff, rM, rDist, rOut, rRecR = 32, 36, 40, 44, 48, 52, 56, 60, 64
sAct, sSwap = 68, 70
sWave, sBkt, sF, sT0, sT1, sT2, sT3 = 3, 72, 73, 74, 75, 76, 77
sTot0, sTot1, sBase, sRem0, sRem1, sN0, sN1, sSteps, sPhase, sMk = 78, 79, 80, 81, 82, 83, 84, 85, 86, 87
sTS = 88

vMask, vM, vWd, vWu, vS, vR = 96, 98, 104, 106, 108, 120
vEnt = 72
vEo = (97, 126, 127)
vDist = 108


def srd(a, d, lo, nbytes, add=None, stride=0):
    if add is None:
        a(f"s_mov_b32 s{d}, s{lo}")
        a(f"s_and_b32 s{d+1}, s{lo+1}, 0xffff")
    else:
        a(f"s_add_u32 s{d}, s{lo}, {add}")
        a(f"s_addc_u32 s{d+1}, s{lo+1}, 0")
        a(f"s_and_b32 s{d+1}, s{d+1}, 0xffff")
    if stride:
        a(f"s_or_b32 s{d+1}, s{d+1}, {stride << 16}")
    a(f"s_mov_b32 s{d+2}, {nbytes}")
    a(f"s_mov_b32 s{d+3}, 0x20000")


class Stamps:
    def __init__(self, a, p):
        self.a, self.on, self.n = a, p["ts"], 0
        self.sel = p["tsel"].split(",")
        self.wave = p["tswave"]

    def mark(self, name):
        if self.on and name in self.sel:
            op = "s_memtime" if self.on == 2 else "s_memrealtime"
            k = self.sel.index(name)
            self.a(f"{op} s[{sTS+2*k}:{sTS+2*k+1}]")

    def flush(self):
        if not self.on:
            return
        a = self.a
        a(f"""
        s_waitcnt lgkmcnt(0)
        s_lshl_b32 s4, s2, 4
        s_add_u32 s4, s4, s{sWave}
        s_lshl_b32 s4, s4, 6
        s_add_u32 s5, s4, {(200 << 20) + 65536}
        s_add_u32 s8, s{sWsp}, s5
        s_addc_u32 s9, s{sWsp+1}, 0
        s_lshl_b32 s4, s2, 6
        s_add_u32 s4, s4, {200 << 20}
        s_add_u32 s6, s{sWsp}, s4
        s_addc_u32 s7, s{sWsp+1}, 0
        v_lshlrev_b32 v2, 3, v1
        v_mov_b32 v4, 0
        v_mov_b32 v5, 0
        """)
        for k in range(len(self.sel)):
            a(f"v_writelane_b32 v4, s{sTS+2*k}, {k}")
        a(f"""
        s_mov_b64 exec, 0xff
        global_store_dwordx2 v2, v[4:5], s[8:9]
        s_cmp_lg_u32 s{sWave}, {self.wave}
        s_cbranch_scc1 TS_DONE
        global_store_dwordx2 v2, v[4:5], s[6:7]
        TS_DONE:
        """)


def zero_quad(a, r):
    for i in range(4):
        a(f"v_mov_b32 v{r+i}, 0")


def warm(a, p):
    n = p['warm']
    if not n:
        return
    a(f"s_mul_i32 s{sT2}, s2, {16 * n * p['wstride']}")
    a(f"s_mul_i32 s{sT3}, s{sWave}, {n * p['wstride']}")
    a(f"s_add_u32 s{sT2}, s{sT2}, s{sT3}")
    a(f"s_min_u32 s{sT2}, s{sT2}, {E * 32 - n * p['wstride']}")
    a(f"s_add_u32 s{sIn}, s{sM}, s{sT2}")
    a(f"s_addc_u32 s{sIn+1}, s{sM+1}, 0")
    for i in range(n):
        a(f"s_load_dword s{rIn + i % 12}, s[{sIn}:{sIn+1}], {p['wstride'] * i}")


def rbf_block(a, b, after_reads):
    a.comment("radial basis (same bf16 rounding steps as the reference), S = rbf@w_sbf, R = rbf@w_rbf")
    c0, c1, aS, aR, T0 = b, b + 1, b + 2, b + 4, b + 8
    a(f"""
    v_lshlrev_b32 v{T0}, 3, v95
    v_lshrrev_b32 v{T0+1}, 4, v95
    v_and_b32 v{T0+2}, 63, v{T0}
    v_add_u32 v{T0}, {WL}, v{T0}
    v_lshl_add_u32 v{T0+2}, v{T0+1}, 6, v{T0+2}
    v_lshlrev_b32 v{T0+1}, 2, v{T0+1}
    v_add_u32 v{T0+2}, {WL + 1024}, v{T0+2}
    v_add_u32 v{T0+1}, {WL + 1536}, v{T0+1}
    ds_read_b64_tr_b16 v[{vWd}:{vWd+1}], v{T0}
    ds_read_b64_tr_b16 v[{vWu}:{vWu+1}], v{T0} offset:512
    ds_read_b64_tr_b16 v[{aS}:{aS+1}], v{T0+2}
    ds_read_b64_tr_b16 v[{aR}:{aR+1}], v{T0+2} offset:256
    ds_read_b32 v{c1}, v{T0+1}
    s_mov_b32 s{sT0}, 0xc1200000
    s_mov_b32 s{sT1}, 0x3fb8aa3b
    s_waitcnt lgkmcnt(0)
    v_lshlrev_b32 v{c0}, 16, v{c1}
    v_and_b32 v{c1}, v{vMask}, v{c1}
    """)
    after_reads()
    for t in range(3):
        a(f"v_mov_b32 v{T0+1+4*t}, 0")

    def each(fn):
        for t in range(3):
            fn(t, T0 + 2 + 4 * t, T0 + 3 + 4 * t)

    def rnd():
        each(lambda t, x0, x1: a(f"v_cvt_pk_bf16_f32 v{x0}, v{x0}, v{x1}"))
        each(lambda t, x0, x1: a(f"v_and_b32 v{x1}, v{vMask}, v{x0}"))
        each(lambda t, x0, x1: a(f"v_lshlrev_b32 v{x0}, 16, v{x0}"))

    each(lambda t, x0, x1: a(f"v_lshlrev_b32 v{vDist+t}, 16, v{vDist+t}"))
    each(lambda t, x0, x1: a(f"v_sub_f32 v{x0}, v{vDist+t}, v{c0}\nv_sub_f32 v{x1}, v{vDist+t}, v{c1}"))
    rnd()
    each(lambda t, x0, x1: a(f"v_mul_f32 v{x0}, v{x0}, v{x0}\nv_mul_f32 v{x1}, v{x1}, v{x1}"))
    rnd()
    each(lambda t, x0, x1: a(f"v_mul_f32 v{x0}, s{sT0}, v{x0}\nv_mul_f32 v{x1}, s{sT0}, v{x1}"))
    rnd()
    each(lambda t, x0, x1: a(f"v_mul_f32 v{x0}, s{sT1}, v{x0}\nv_mul_f32 v{x1}, s{sT1}, v{x1}"))
    each(lambda t, x0, x1: a(f"v_exp_f32 v{x0}, v{x0}\nv_exp_f32 v{x1}, v{x1}"))
    each(lambda t, x0, x1: a(f"v_cvt_pk_bf16_f32 v{T0+4*t}, v{x0}, v{x1}"))
    for t in range(3):
        a(f"v_mfma_f32_16x16x16_bf16 v[{vS+4*t}:{vS+4*t+3}], v[{aS}:{aS+1}], v[{T0+4*t}:{T0+1+4*t}], 0")
    a(f"v_mfma_f32_16x16x16_bf16 v[{T0+12}:{T0+15}], v[{aR}:{aR+1}], v[{T0+8}:{T0+9}], 0")
    a(f"s_nop 3")
    a(f"v_mfma_f32_16x16x16_bf16 v[{T0+8}:{T0+11}], v[{aR}:{aR+1}], v[{T0+4}:{T0+5}], 0")
    a(f"s_nop 3")
    a(f"v_mfma_f32_16x16x16_bf16 v[{T0+4}:{T0+7}], v[{aR}:{aR+1}], v[{T0}:{T0+1}], 0")
    for t in (2, 1, 0):
        a(f"v_cvt_pk_bf16_f32 v{vR+2*t}, v{T0+4+4*t}, v{T0+5+4*t}")
        a(f"v_cvt_pk_bf16_f32 v{vR+2*t+1}, v{T0+6+4*t}, v{T0+7+4*t}")


def phase_a(a, p, ts):
    ld = (" " + p["ld_pol"]) if p["ld_pol"] else ""
    vO, vI, vAn, vKey, vRank, vW, vCos = 4, 14, 24, 30, 40, 50, 60
    vZ, vT16 = 84, 94
    a(f"""
    s_cmp_ge_u32 s2, {NCH}
    s_cbranch_scc1 K_END
    s_load_dwordx16 s[4:19], s[0:1], 0
    s_load_dwordx8 s[20:27], s[0:1], 64
    s_load_dwordx4 s[28:31], s[0:1], 96
    """)
    ts.mark("entry")
    a(f"""
    v_lshlrev_b32 v1, 3, v0
    v_lshlrev_b32 v2, 2, v0
    v_lshlrev_b32 v{vT16}, 4, v0
    v_lshrrev_b32 v70, 6, v0
    v_and_b32 v95, 63, v0
    s_mul_i32 s{rM}, s2, {CH * 4}
    s_mul_i32 s{rOut}, s2, {CH * 2}
    v_cmp_gt_u32 vcc, 1000, v0
    v_readfirstlane_b32 s{sWave}, v70
    """)
    so4 = [rM, rM + 1, rM + 2, rM + 3, rDist]
    so2 = [rOut, rOut + 1, rOut + 2, rOut + 3, rDist + 1]
    for j in range(1, 5):
        a(f"s_add_u32 s{so4[j]}, s{rM}, {8000*j}")
        a(f"s_add_u32 s{so2[j]}, s{rOut}, {4000*j}")
    a(f"s_mov_b64 s[{sAct}:{sAct+1}], vcc")
    zero_quad(a, vZ)
    a(f"""
    v_add_u32 v71, {ACNT}, v{vT16}
    v_cmp_gt_u32 vcc, {(WL - ACNT) // 16}, v0
    v_mov_b32 v3, 6
    v_mov_b32 v29, {ACNT}
    v_mov_b32 v65, {ACNT + 1024}
    s_mov_b64 exec, vcc
    ds_write_b128 v71, v[{vZ}:{vZ+3}]
    s_mov_b64 exec, -1
    s_waitcnt lgkmcnt(0)
    s_barrier
    """)
    srd(a, rOutI, sOutI, T * 4)
    srd(a, rIn, sIn, T * 4)
    srd(a, rAng, sAng, T * 2)
    a(f"s_load_dword s{sF}, s[{sFreq}:{sFreq+1}], 0")
    srd(a, rOff, sWsp, NCH * OFFROW, add=str(p["ws_rec"] + NCH * CH_STRIDE))
    a(f"""
    s_mul_i32 s{sTot1}, s2, {OFFROW}
    s_cmp_lg_u32 s{sWave}, 0
    s_cbranch_scc1 KA_CLEARED
    buffer_store_dwordx4 v[{vZ}:{vZ+3}], v{vT16}, s[{rOff}:{rOff+3}], s{sTot1} offen sc1
    buffer_store_dwordx4 v[{vZ}:{vZ+3}], v{vT16}, s[{rOff}:{rOff+3}], s{sTot1} offen offset:1024 sc1
    KA_CLEARED:
    """)
    if p["touch"]:
        a.comment("wave 3 touches the unused tail of every chunk slot so the address translations are warm")
        a(f"""
        s_cmp_lg_u32 s{sWave}, 3
        s_cbranch_scc1 KA_NO_TOUCH
        s_add_u32 s{sT0}, s{sWsp}, {p['ws_rec'] + CH_STRIDE - 128}
        s_addc_u32 s{sT1}, s{sWsp+1}, 0
        v_mul_u32_u24 v70, {CH_STRIDE}, v95
        """)
        for i in range(4):
            a(f"global_load_dword v{76+i}, v70, s[{sT0}:{sT0+1}]")
            if i < 3:
                a(f"v_add_u32 v70, {64 * CH_STRIDE}, v70")
        a("KA_NO_TOUCH:")
    a(f"""
    s_and_b32 s{sBkt}, s2, 7
    s_lshl_b32 s{sBkt}, s{sBkt}, 5
    s_lshr_b32 s{sT0}, s2, 3
    s_or_b32 s{sBkt}, s{sBkt}, s{sT0}
    s_cmp_lg_u32 s{sWave}, 2
    s_cbranch_scc1 KA_NO_DIST
    """)
    srd(a, rRecR, sDist, E * 2)
    a(f"""
    s_mul_i32 s{sT0}, s{sBkt}, {BS * 2}
    s_and_b32 s{sT0}, s{sT0}, -4
    v_lshl_add_u32 v70, v95, 4, s{sT0}
    buffer_load_dwordx4 v[76:79], v70, s[{rRecR}:{rRecR+3}], 0 offen
    s_mov_b64 exec, 0xffff
    buffer_load_dwordx4 v[80:83], v70, s[{rRecR}:{rRecR+3}], 0 offen offset:1024
    s_mov_b64 exec, -1
    KA_NO_DIST:
    """)
    a(f"""
    s_cmp_lg_u32 s{sWave}, 1
    s_cbranch_scc1 KA_NO_WEIGHTS
    v_lshlrev_b32 v70, 4, v95
    v_and_b32 v71, 0x1ff, v70
    s_mov_b32 exec_hi, 0
    global_load_dwordx4 v[76:79], v71, s[{sWd}:{sWd+1}]
    s_mov_b32 exec_lo, 0
    s_mov_b32 exec_hi, -1
    global_load_dwordx4 v[76:79], v71, s[{sWu}:{sWu+1}]
    v_and_b32 v71, 0xff, v70
    s_mov_b32 exec_hi, 1
    global_load_dwordx4 v[80:83], v71, s[{sCen}:{sCen+1}]
    s_mov_b64 exec, -1
    v_and_b32 v71, 0xff, v70
    s_mov_b64 exec, 0xffff
    global_load_dwordx4 v[80:83], v71, s[{sWs}:{sWs+1}]
    s_mov_b32 exec_lo, 0xffff0000
    global_load_dwordx4 v[80:83], v71, s[{sWr}:{sWr+1}]
    s_mov_b64 exec, -1
    KA_NO_WEIGHTS:
    """)
    a(f"s_mov_b64 exec, s[{sAct}:{sAct+1}]")
    if p["anglate"] >= 2:
        a("s_setprio 3")
    for j in range(5):
        a(f"buffer_load_dwordx2 v[{vO+2*j}:{vO+2*j+1}], v1, s[{rOutI}:{rOutI+3}], s{so4[j]} offen{ld}")
        a(f"buffer_load_dwordx2 v[{vI+2*j}:{vI+2*j+1}], v1, s[{rIn}:{rIn+3}], s{so4[j]} offen{ld}")
    def load_angles():
        for j in range(5):
            a(f"buffer_load_dword v{vAn+j}, v2, s[{rAng}:{rAng+3}], s{so2[j]} offen{ld}")

    if p["anglate"] == 0:
        load_angles()
    if p["anglate"] == 2:
        a("s_setprio 0")
        load_angles()
    if p["anglate"] == 3:
        a("s_setprio 0")
        a(f"s_cmp_lt_u32 s{sWave}, {p['angw']}")
        a("s_cbranch_scc1 KA_ANG_LATER")
        load_angles()
        a("KA_ANG_LATER:")
    a("s_mov_b64 exec, -1")
    ts.mark("start")
    a(f"""
    v_add_u32 v70, {STAGE}, v{vT16}
    v_add_u32 v71, 0x10000, v{vT16}
    v_cmp_gt_u32 vcc, {(SORT - 81920) // 16}, v0
    ds_write_b128 v70, v[{vZ}:{vZ+3}]
    ds_write_b128 v70, v[{vZ}:{vZ+3}] offset:16384
    ds_write_b128 v70, v[{vZ}:{vZ+3}] offset:32768
    ds_write_b128 v70, v[{vZ}:{vZ+3}] offset:49152
    ds_write_b128 v{vT16}, v[{vZ}:{vZ+3}]
    ds_write_b128 v{vT16}, v[{vZ}:{vZ+3}] offset:16384
    ds_write_b128 v{vT16}, v[{vZ}:{vZ+3}] offset:32768
    ds_write_b128 v{vT16}, v[{vZ}:{vZ+3}] offset:49152
    ds_write_b128 v71, v[{vZ}:{vZ+3}]
    s_mov_b64 exec, vcc
    ds_write_b128 v71, v[{vZ}:{vZ+3}] offset:16384
    s_mov_b64 exec, -1
    """)

    def epilogue_operands(b):
        a.comment("output addresses: lane = (n = lane&15 edge in tile, g = lane>>4 feature group); distances of the three tiles")
        a(f"""
        s_mul_i32 s{sT0}, s{sBkt}, {BS}
        s_lshl_b32 s{sT1}, s{sWave}, 4
        v_and_b32 v{b+0}, 15, v95
        v_lshrrev_b32 v{b+1}, 4, v95
        v_add_u32 v{b+2}, s{sT1}, v{b+0}
        v_lshlrev_b32 v{b+3}, 3, v{b+1}
        s_lshl_b32 s{sT2}, s{sBkt}, 1
        s_and_b32 s{sT2}, s{sT2}, 2
        s_add_u32 s{sT2}, s{sT2}, {DL}
        v_mov_b32 v{b+6}, 0x80000000
        v_lshl_add_u32 v{b+7}, v{b+2}, 1, s{sT2}
        v_mov_b32 v{vMask}, 0xffff0000
        """)
        for t in range(3):
            a(f"ds_read_u16 v{vDist+t}, v{b+7} offset:{512 * t}")
        srd(a, rM, sM, E * 32)
        srd(a, rOut, sOut, E * 32)
        for t in range(3):
            a(f"""
            v_add_u32 v{b+4}, {256 * t}, v{b+2}
            v_cmp_gt_u32 vcc, {BS}, v{b+4}
            v_add_u32 v{b+4}, s{sT0}, v{b+4}
            v_lshl_add_u32 v{b+5}, v{b+4}, 5, v{b+3}
            v_cndmask_b32 v{vEo[t]}, v{b+6}, v{b+5}, vcc
            """)

    NPRE = 19
    sChO, sRow, sChG, sMag, sHalf, sNeg, sHi, sK = sTot0, sTot1, sBase, sRem0, sRem1, sN0, sN1, sSteps
    a(f"""
    s_mul_i32 s{sChO}, s2, {CH_STRIDE}
    s_add_u32 s{sChO}, s{sChO}, {p['ws_rec']}
    s_mov_b32 s{sMag}, 6871948
    s_mov_b32 s{sHalf}, {HALF}
    s_mov_b32 s{sNeg}, {-BS}
    s_mov_b32 s{sHi}, 0xffff0000
    s_mov_b32 s{sK}, 1024
    """)
    srd(a, rRecW, sWsp, 0, add=f"s{sChO}")
    srd(a, rRecR, sWsp, NCH * CHG, add=str(p["ws_rec"]), stride=12)
    a(f"s_mov_b64 exec, s[{sAct}:{sAct+1}]")
    for j in range(5):
        o0, o1, i0, i1 = vO + 2 * j, vO + 2 * j + 1, vI + 2 * j, vI + 2 * j + 1
        k0, k1_, r0, r1 = vKey + 2 * j, vKey + 1 + 2 * j, vRank + 2 * j, vRank + 1 + 2 * j
        q0, q1, l0, l1 = 72, 73, 74, 75
        if p["anglate"] == 3:
            a(f"""
            s_cmp_lt_u32 s{sWave}, {p['angw']}
            s_cbranch_scc0 KA_W{j}
            s_waitcnt vmcnt({8 - 2 * j})
            KA_W{j}:
            """)
        a(f"""
        s_waitcnt vmcnt({(0 if p['anglate'] == 1 else 5) + 8 - 2 * j})
        v_mul_hi_u32_u24 v{q0}, s{sMag}, v{o0}
        v_mul_hi_u32_u24 v{q1}, s{sMag}, v{o1}
        v_cmp_le_u32 vcc, s{sHalf}, v{i0}
        v_cmp_le_u32 s[{sSwap}:{sSwap+1}], s{sHalf}, v{i1}
        v_mad_i32_i24 v{l0}, v{q0}, s{sNeg}, v{o0}
        v_mad_i32_i24 v{l1}, v{q1}, s{sNeg}, v{o1}
        v_cndmask_b32 v{k0}, v29, v65, vcc
        v_cndmask_b32 v{k1_}, v29, v65, s[{sSwap}:{sSwap+1}]
        v_lshl_add_u32 v{k0}, v{q0}, 2, v{k0}
        v_lshl_add_u32 v{k1_}, v{q1}, 2, v{k1_}
        ds_add_rtn_u32 v{r0}, v{k0}, v3
        ds_add_rtn_u32 v{r1}, v{k1_}, v3
        v_lshlrev_b32 v{i0}, 10, v{i0}
        v_lshlrev_b32 v{i1}, 10, v{i1}
        v_add3_u32 v{vW+2*j}, v{i0}, v{l0}, s{sK}
        v_add3_u32 v{vW+2*j+1}, v{i1}, v{l1}, s{sK}
        """)
    if p["anglate"] == 3:
        a(f"s_cmp_lt_u32 s{sWave}, {p['angw']}")
        a("s_cbranch_scc0 KA_ANG_DONE")
        load_angles()
        a("KA_ANG_DONE:")
    a("s_mov_b64 exec, -1")
    a("s_waitcnt lgkmcnt(0)")
    a(f"s_lshl_b32 s{sF}, s{sF}, 16")
    ts.mark("histA")
    a("s_barrier")
    if p["anglate"] == 1:
        a(f"s_mov_b64 exec, s[{sAct}:{sAct+1}]")
        load_angles()
        a("s_mov_b64 exec, -1")

    def cos_block(tag):
        a.comment("cos(bf16(freq * angle)) rounded to bf16, two angles per register")
        a(f"s_cmp_eq_u32 s{sWave}, 0")
        a("s_cbranch_scc1 KA_ANGLES0")
        a(f"s_waitcnt vmcnt({3 * p['mearly']})")
        a("KA_ANGLES0:")
        a(f"s_waitcnt vmcnt({3 * p['mearly'] + 1})")
        xs = [(4 + 2 * j, 5 + 2 * j) for j in range(5)]
        for j, (x0, x1) in enumerate(xs):
            a(f"v_lshlrev_b32 v{x0}, 16, v{vAn+j}")
            a(f"v_and_b32 v{x1}, s{sHi}, v{vAn+j}")
        a(f"s_cmp_eq_u32 s{sF}, 0x3f800000")
        a(f"s_cbranch_scc1 K_UNIT_FREQ{tag}")
        for x0, x1 in xs:
            a(f"v_mul_f32 v{x0}, s{sF}, v{x0}")
            a(f"v_mul_f32 v{x1}, s{sF}, v{x1}")
        for x0, x1 in xs:
            a(f"v_cvt_pk_bf16_f32 v{x0}, v{x0}, v{x1}")
        for x0, x1 in xs:
            a(f"v_and_b32 v{x1}, s{sHi}, v{x0}")
            a(f"v_lshlrev_b32 v{x0}, 16, v{x0}")
        a(f"K_UNIT_FREQ{tag}:")
        for op in ("v_mul_f32 v{0}, 0.15915494, v{0}", "v_fract_f32 v{0}, v{0}", "v_cos_f32 v{0}, v{0}"):
            for x0, x1 in xs:
                a(op.format(x0))
                a(op.format(x1))
        for j, (x0, x1) in enumerate(xs):
            a(f"v_cvt_pk_bf16_f32 v{vCos+j}, v{x0}, v{x1}")

    a(f"""
    s_cmp_eq_u32 s{sWave}, 0
    s_cbranch_scc1 KA_SCAN
    s_cmp_gt_u32 s{sWave}, 2
    s_cbranch_scc1 KA_SCANNED
    s_mov_b32 s{sT0}, {DL}
    s_cmp_eq_u32 s{sWave}, 1
    s_cselect_b32 s{sT0}, {WL}, s{sT0}
    s_cselect_b32 s{sT1}, -1, 0xffff
    s_cselect_b32 s{sT2}, 1, 0
    v_lshl_add_u32 v70, v95, 4, s{sT0}
    ds_write_b128 v70, v[76:79]
    s_mov_b32 exec_lo, s{sT1}
    s_mov_b32 exec_hi, s{sT2}
    ds_write_b128 v70, v[80:83] offset:1024
    s_mov_b64 exec, -1
    s_waitcnt lgkmcnt(0)
    s_branch KA_SCANNED
    """)
    a("KA_SCAN:")
    a(f"""
    v_mov_b32 v70, 0
    v_mov_b32 v71, 1
    s_mov_b64 exec, 1
    global_atomic_add v70, v71, s[{sDbg}:{sDbg+1}]
    s_mov_b64 exec, -1
    v_lshlrev_b32 v70, 5, v95
    v_add_u32 v69, {ACNT}, v70
    ds_read_b128 v[72:75], v69
    ds_read_b128 v[76:79], v69 offset:16
    s_mov_b32 s{sT1}, 43691
    s_waitcnt lgkmcnt(0)
    """)
    for i in range(8):
        a(f"v_and_b32 v{80+i}, 2, v{72+i}")
    for i in range(8):
        a(f"v_mad_u32_u24 v{72+i}, v{80+i}, 3, v{72+i}")
    for i in range(1, 8):
        a(f"v_add_u32 v{72+i}, v{71+i}, v{72+i}")
    a("v_mov_b32 v71, v79")
    scan_add(a, 71)
    a(f"v_sub_u32 v80, v71, v79")
    a(f"v_readlane_b32 s{sT0}, v71, 63")
    for i in range(1, 8):
        a(f"v_add_u32 v{80+i}, v80, v{71+i}")
    for i in range(8):
        a(f"v_add_u32 v{72+i}, {STAGE}, v{80+i}")
    a(f"""
    v_mov_b32 v88, s{sT0}
    ds_write_b128 v69, v[72:75]
    ds_write_b128 v69, v[76:79] offset:16
    ds_write_b32 v29, v88 offset:2048
    s_waitcnt lgkmcnt(0)
    """)
    a("KA_SCANNED:")
    a("s_barrier")
    ts.mark("scanA")
    a("ds_read_b32 v68, v29 offset:2048")
    a(f"s_mov_b64 exec, s[{sAct}:{sAct+1}]")
    vB = 14
    for i in range(10):
        a(f"ds_read_b32 v{vB+i}, v{vKey+i}")
    a("s_mov_b64 exec, -1")
    a(f"s_cmp_lg_u32 s{sWave}, 0")
    a("s_cbranch_scc1 KA_HAVE_ENTRIES")
    a(f"v_mov_b32 v88, v71")
    for i in range(9):
        a(f"v_mul_u32_u24 v{80+i}, s{sT1}, v{80+i}")
    for i in range(9):
        a(f"v_lshrrev_b32 v{80+i}, 19, v{80+i}")
    reg = lambda i: vEnt + 2 * (i % 4) + i // 4
    for i in range(8):
        a(f"v_sub_u32 v{reg(i)}, v{81+i}, v{80+i}")
    for i in range(8):
        a(f"v_lshl_or_b32 v{reg(i)}, v{reg(i)}, 16, v{80+i}")
    for i in range(4):
        a(f"v_permlane32_swap_b32 v{reg(i)}, v{reg(i + 4)}")
    for i in range(4):
        a(f"v_or_b32 v{reg(i)}, 0x80000000, v{reg(i)}")
    a("KA_HAVE_ENTRIES:")
    if p["mearly"]:
        epilogue_operands(4)
        for t in range(3):
            a(f"buffer_load_dwordx2 v[{vM+2*t}:{vM+2*t+1}], v{vEo[t]}, s[{rM}:{rM+3}], 0 offen")
    a(f"s_mov_b64 exec, s[{sAct}:{sAct+1}]")
    for i in range(10):
        a(f"v_and_b32 v{vKey+i}, 2, v{vRank+i}")
        a(f"v_sub_u32 v{vRank+i}, v{vRank+i}, v{vKey+i}")
    a("s_waitcnt lgkmcnt(0)")
    for i in range(10):
        a(f"v_add_u32 v{vB+i}, v{vB+i}, v{vRank+i}")
        a(f"ds_write_b32 v{vB+i}, v{vW+i}")
        a(f"v_sub_u32 v{vKey+i}, v{vB+i}, v{vKey+i}")
    cos_block("A")
    for i in range(10):
        a(f"ds_write_b16{'_d16_hi' if i % 2 else ''} v{vKey+i}, v{vCos+i//2} offset:8")
    a("s_mov_b64 exec, -1")
    a(f"v_readfirstlane_b32 s{rRecW+2}, v68")
    a(f"v_add_u32 v69, {STAGE}, v{vT16}")
    for i in range(1, 4):
        a(f"v_add_u32 v{65+i}, {i*16384}, v{vT16}")
    a(f"s_add_u32 s{rRecW+2}, s{rRecW+2}, 15")
    a(f"s_and_b32 s{rRecW+2}, s{rRecW+2}, -16")
    a("s_waitcnt lgkmcnt(0)")
    a("s_barrier")
    ts.mark("scatA")
    for i in range(4):
        a(f"ds_read_b128 v[{4+4*i}:{7+4*i}], v69 offset:{16384 * i}")
    for i in range(4):
        a(f"s_waitcnt lgkmcnt({3 - i})")
        a(f"buffer_store_dwordx4 v[{4+4*i}:{7+4*i}], v{vT16 if i == 0 else 65+i}, s[{rRecW}:{rRecW+3}], 0 offen sc1")
    if not p["mearly"]:
        epilogue_operands(20)
    rbf_block(a, 32, lambda: warm(a, p))
    a("v_mov_b32 v1, v95")


def phase_b(a, p, ts):
    DEPTH = p["depth"]
    NU = 24
    NRB = 5
    NMIN = 8
    vCoff, vLoff, vSel = 2, 3, 4
    REC, RING, NRING = 8, 32, DEPTH + 1
    RAW = ([REC + 4 * k for k in range(NRB)], [48, 52, 56, 60, 88])
    RANK = (74, 20)
    vLa, vC, vGA, vL, vE, vX, vD = 64, 66, 67, 68, 72, 76, 80
    vBin = (64, 68)
    vRb, vPar, vEight, vGA2 = 92, 93, 94, 95
    vEn = 44
    vSt, vLn, vJ, vJ1 = (40, 41), (42, 43), 38, 39
    sOv, sN = (sRem0, sRem1), (sN0, sN1)
    sSeg, sLen, sStart = sTot0, sMk, sT2

    def convert(r, t=80):
        a(f"""
        v_and_b32 v{r+3}, 0x3ff, v{r+1}
        v_lshrrev_b32 v{t}, 5, v{r+1}
        v_and_b32 v{r+1}, 0x3ff, v{r}
        v_lshrrev_b32 v{r}, 5, v{r}
        v_and_or_b32 v{r+3}, v{r+2}, v{vMask}, v{r+3}
        v_lshl_or_b32 v{r+1}, v{r+2}, 16, v{r+1}
        v_and_b32 v{r+2}, -32, v{t}
        v_and_b32 v{r}, -32, v{r}
        """)

    def skip(beta, k, label):
        if k == NRB - 1:
            a(f"s_cmp_eq_u32 s{sOv[beta]}, 0")
            a(f"s_cbranch_scc1 {label}")

    def load(r):
        a(f"buffer_load_dwordx3 v[{r}:{r+2}], v{r}, s[{rRecR}:{rRecR+3}], 0 idxen {p['rec_pol']}".rstrip())

    def indices(beta):
        r = RAW[beta][4]
        a(f"""
        v_cmp_lt_u32 vcc, 16, v{vLn[beta]}
        s_mov_b32 s{sOv[beta]}, 0
        s_cbranch_vccz KB_SHORT{beta}
        s_mov_b32 s{sOv[beta]}, 1
        s_bcnt1_i32_b64 s{sT0}, vcc
        v_cmp_lt_u32 s[{sAct}:{sAct+1}], 32, v{vLn[beta]}
        s_cmp_gt_u32 s{sT0}, 4
        s_cselect_b32 s{sPhase}, 1, s{sPhase}
        v_mov_b32 v{r+2}, 0
        v_mov_b32 v{r+3}, 0
        s_cmp_lg_u64 s[{sAct}:{sAct+1}], 0
        s_cselect_b32 s{sPhase}, 1, s{sPhase}
        """)
        for i in range(4):
            a(f"""
            s_ff1_i32_b64 s{sT0}, vcc
            s_bitset0_b64 vcc, s{sT0}
            v_readlane_b32 s{sT1}, v{vSt[beta]}, s{sT0}
            v_readlane_b32 s{sT0}, v{vLn[beta]}, s{sT0}
            s_add_u32 s{sT1}, s{sT1}, 16
            s_sub_u32 s{sT0}, s{sT0}, 16
            v_writelane_b32 v{r+2}, s{sT1}, {16 * i}
            v_writelane_b32 v{r+3}, s{sT0}, {16 * i}
            """)
            if i < 3:
                a(f"s_cmp_eq_u64 vcc, 0")
                a(f"s_cbranch_scc1 KB_LONG{beta}")
        a(f"""
        KB_LONG{beta}:
        s_nop 1
        v_add_u32_dpp v{r}, v{r+2}, v{vJ} row_newbcast:0 row_mask:0xf bank_mask:0xf
        v_sub_u32_dpp v{r+1}, v{r+3}, v{vJ1} row_newbcast:0 row_mask:0xf bank_mask:0xf
        v_and_or_b32 v{r}, v{r+1}, s{sT3}, v{r}
        """)
        if beta == 0:
            load(r)
        a(f"KB_SHORT{beta}:")
        for k in range(4):
            r = RAW[beta][k]
            a(f"v_add_u32_dpp v{r}, v{vSt[beta]}, v{vJ} row_newbcast:{k} row_mask:0xf bank_mask:0xf")
            a(f"v_sub_u32_dpp v{r+1}, v{vLn[beta]}, v{vJ1} row_newbcast:{k} row_mask:0xf bank_mask:0xf")
            a(f"v_and_or_b32 v{r}, v{r+1}, s{sT3}, v{r}")
            if beta == 0:
                load(r)

    def hist(beta, waits):
        off = f" offset:{CNT1}" if beta else ""
        for k in range(NRB):
            skip(beta, k, f"KB_HISTED{beta}")
            if waits and k < 4:
                a(f"s_waitcnt vmcnt({3 - k})")
            r = RAW[beta][k]
            for h in range(2):
                a(f"v_lshrrev_b32 v{vBin[beta]+2*k+h}, 15, v{r+h}")
            for h in range(2):
                a(f"v_and_b32 v{vBin[beta]+2*k+h}, -4, v{vBin[beta]+2*k+h}")
            for h in range(2):
                a(f"v_cmpx_ne_u32 vcc, 0, v{r+h}")
                a(f"ds_add_rtn_u32 v{RANK[beta]+2*k+h}, v{vBin[beta]+2*k+h}, v{vEight}{off}")
                a(f"s_mov_b64 exec, -1")
        a(f"KB_HISTED{beta}:")

    def scan(beta, B, t):
        a.comment("one wave: exclusive scan of the bin counters (bytes); null records behind the last real one")
        a(f"""
        v_mul_u32_u24 v{t}, 48, v1
        ds_read_b128 v[{B}:{B+3}], v{t} offset:{3072 * beta}
        ds_read_b128 v[{B+4}:{B+7}], v{t} offset:{3072 * beta + 16}
        ds_read_b128 v[{B+8}:{B+11}], v{t} offset:{3072 * beta + 32}
        v_mov_b32 v{t+2}, 0
        s_waitcnt lgkmcnt(0)
        """)
        for i in range(1, 12):
            a(f"v_add_u32 v{B+i}, v{B+i-1}, v{B+i}")
        a(f"v_mov_b32 v{t+1}, v{B+11}")
        scan_add(a, t + 1)
        a(f"v_readlane_b32 s{sT0}, v{t+1}, 63")
        a(f"v_sub_u32 v{t+1}, v{t+1}, v{B+11}")
        a(f"v_add_u32 v{t+1}, {SORT}, v{t+1}")
        for i in range(11, 0, -1):
            a(f"v_add_u32 v{B+i}, v{t+1}, v{B+i-1}")
        a(f"v_mov_b32 v{B}, v{t+1}")
        a(f"""
        s_or_b32 s{sT1}, s{sT0}, 0x80000000
        s_min_u32 s{sT0}, s{sT0}, {SORTCAP * 8}
        s_add_u32 s{sT0}, s{sT0}, {SORT}
        v_mov_b32 v{t+3}, s{sT1}
        v_lshl_add_u32 v{t+1}, v1, 2, s{sT0}
        ds_write_b128 v{t}, v[{B}:{B+3}] offset:{3072 * beta}
        ds_write_b128 v{t}, v[{B+4}:{B+7}] offset:{3072 * beta + 16}
        ds_write_b128 v{t}, v[{B+8}:{B+11}] offset:{3072 * beta + 32}
        ds_write_b32 v{t+1}, v{t+2}
        ds_write_b32 v{t+2}, v{t+3} offset:{MISC + 16 + 4 * beta}
        """)

    def convert_all(beta, t, tag=""):
        for k in range(NRB):
            skip(beta, k, f"KB_CONV{beta}{tag}")
            convert(RAW[beta][k], t)
        a(f"KB_CONV{beta}{tag}:")

    def scatter(beta, t):
        off = f" offset:{CNT1}" if beta else ""
        for k in range(NRB):
            skip(beta, k, f"KB_BASES{beta}")
            for h in range(2):
                b = vBin[beta] + 2 * k + h
                if beta:
                    a(f"v_lshrrev_b32 v{b}, 10, v{RAW[beta][k]+2*h}")
                    a(f"v_and_b32 v{b}, -4, v{b}")
                a(f"ds_read_b32 v{b}, v{b}{off}")
        a(f"KB_BASES{beta}:")
        a("s_waitcnt lgkmcnt(0)")
        for k in range(NRB):
            skip(beta, k, f"KB_SCATTERED{beta}")
            for h in range(2):
                d, b = RAW[beta][k] + 2 * h, vBin[beta] + 2 * k + h
                a(f"v_add_u32 v{b}, v{b}, v{RANK[beta]+2*k+h}")
                a(f"v_cmpx_ne_u32 vcc, 0, v{d}")
                a(f"ds_write_b64 v{b}, v[{d}:{d+1}]")
                a(f"s_mov_b64 exec, -1")
        a(f"KB_SCATTERED{beta}:")
        n = sN[beta]
        a(f"""
        s_add_u32 s{n}, s{n}, 255
        s_lshr_b32 s{n}, s{n}, 8
        s_sub_u32 s{n}, s{n}, s{sWave}
        s_add_u32 s{n}, s{n}, 15
        s_lshr_b32 s{n}, s{n}, 4
        """)

    seq, done = [], set()

    def wait_for(op):
        if op in done:
            return
        i = seq.index(op)
        a(f"s_waitcnt vmcnt({len(seq) - 1 - i})")
        done.update(seq[: i + 1])

    def qperm(kk):
        return f"quad_perm:[{kk},{kk},{kk+2},{kk+2}] row_mask:0xf bank_mask:0xf"

    def issue(u, track=True):
        kb, kk, h = u // 4, (u // 2) % 2, u % 2
        slot = RING + 4 * (u % NRING)
        guard = u >= p["guard"]
        if guard:
            a(f"s_cmp_gt_u32 s{sSteps}, {u}")
            a(f"s_cselect_b64 exec, -1, 1")
        ga = (vGA, vGA2)[u % 2]
        a(f"v_add_u32_dpp v{ga}, v{REC+4*kb+2*h}, v{vCoff} {qperm(kk)}")
        a(f"buffer_load_dwordx4 v[{slot}:{slot+3}], v{ga}, s[{rM}:{rM+3}], 0 offen")
        if track:
            seq.append(("G", u))
        if guard:
            a("s_mov_b64 exec, -1")

    def process(u):
        kb, kk, h = u // 4, (u // 2) % 2, u % 2
        slot = RING + 4 * (u % NRING)
        if u % 4 == 0:
            for hh in range(2):
                a(f"v_lshlrev_b32_sdwa v{vLa+hh}, 7, v{REC+4*kb+2*hh+1} dst_sel:DWORD dst_unused:UNUSED_PAD src0_sel:DWORD src1_sel:WORD_0")
        a(f"v_and_b32_dpp v{vC}, v{REC+4*kb+2*h+1}, v{vMask} {qperm(kk)}")
        a(f"v_xor_b32_dpp v{vL}, v{vLa+h}, v{vLoff} {qperm(kk)}")
        wait_for(("G", u))
        if p["no_valu"]:
            return
        for i in range(4):
            a(f"v_cndmask_b32 v{vE+i}, v{slot+i}, v{slot+(i^2)}, s[{sSwap}:{sSwap+1}]")
        for j in range(1, 4):
            a(f"v_xor_b32 v{vL+j}, {8*j}, v{vL}")
        for half in range(2):
            for j in range(4):
                a(f"v_perm_b32 v{vX+j}, v{vE+2*half+1}, v{vE+2*half}, v{vSel+j}")
            if half:
                for j in range(4):
                    a(f"v_xor_b32 v{vL+j}, 32, v{vL+j}")
            if p["pk"]:
                for j in (0, 2):
                    a(f"v_pk_mul_f32 v[{vX+j}:{vX+j+1}], v[{vX+j}:{vX+j+1}], v[{vC}:{vC+1}] op_sel_hi:[1,0]")
            else:
                for j in range(4):
                    a(f"v_mul_f32 v{vX+j}, v{vC}, v{vX+j}")
            for j in range(4):
                a(f"v_cvt_f64_f32 v[{vD+2*j}:{vD+2*j+1}], v{vX+j}")
            for j in range(4):
                if not p["no_ds"]:
                    a(f"ds_add_f64 v{vL+j}, v[{vD+2*j}:{vD+2*j+1}] offset:{ACC}")

    def load_m():
        for t in range(3):
            a(f"buffer_load_dwordx2 v[{vM+2*t}:{vM+2*t+1}], v{vEo[t]}, s[{rM}:{rM+3}], 0 offen")

    a(f"""
    v_and_b32 v32, 1, v1
    v_bfe_u32 v33, v1, 1, 3
    v_lshlrev_b32 v{vCoff}, 4, v32
    v_lshlrev_b32 v{vLoff}, 6, v32
    v_subrev_u32 v{vCoff}, 32, v{vCoff}
    v_lshl_add_u32 v{vLoff}, v33, 3, v{vLoff}
    v_mov_b32 v{vEight}, 8
    s_mov_b32 s{sT0}, 0x02020000
    s_mov_b32 s{sT1}, 0x01000c0c
    s_mov_b32 s{sSwap}, 0xff00ff00
    s_mov_b32 s{sSwap+1}, 0xff00ff00
    v_lshrrev_b32 v34, 1, v1
    v_lshlrev_b32 v34, 3, v34
    v_lshl_add_u32 v{vRb}, v32, 13, v34
    s_lshl_b32 s{sT2}, s{sWave}, 8
    s_add_u32 s{sT2}, s{sT2}, {SORT}
    v_lshlrev_b32 v{vPar}, 1, v32
    v_and_b32 v33, 3, v33
    v_add_u32 v{vRb}, s{sT2}, v{vRb}
    v_and_b32 v{vJ}, 15, v1
    v_lshrrev_b32 v35, 4, v1
    v_add_u32 v{vJ1}, 1, v{vJ}
    v_lshl_add_u32 v46, v{vJ}, 2, v35
    v_lshlrev_b32 v46, {14 if p['xmap'] else 11}, v46
    v_and_b32 v47, 31, v1
    v_lshrrev_b32 v34, 5, v1
    v_lshlrev_b32 v47, 6, v47
    v_lshl_add_u32 v47, v34, 5, v47
    s_lshr_b32 s{sT2}, s{sWave}, {3 if p['xmap'] else 0}
    s_lshl_b32 s{sT2}, s{sT2}, {18 if p['xmap'] else 15}
    s_and_b32 s{sT3}, s{sWave}, {7 if p['xmap'] else 0}
    s_lshl_b32 s{sT3}, s{sT3}, 11
    s_add_u32 s{sT2}, s{sT2}, s{sT3}
    v_add_u32 v31, s{sT2}, v46
    v_lshrrev_b32 v31, 11, v31
    v_mul_u32_u24 v31, {CHG}, v31
    s_lshl_b32 s{sT3}, s{sBkt}, 3
    s_add_u32 s{sT2}, s{sT2}, s{sT3}
    v_mov_b32 v{vEn}, 0
    v_mov_b32 v{vEn+1}, 0
    v_mov_b32 v36, 0
    """)
    for j in range(4):
        a(f"v_xor_b32 v34, {j}, v33")
        a(f"v_mul_lo_u32 v34, v34, s{sT0}")
        a(f"v_add_u32 v{vSel+j}, s{sT1}, v34")
    a(f"""
    s_mov_b32 s{sT3}, 0x40000
    s_cmp_lg_u32 s{sWave}, 0
    s_cbranch_scc1 KB_ROWS_CLEAR
    """)
    a(f"""
    KB_POLL_CLEAR:
    global_load_dword v37, v36, s[{sDbg}:{sDbg+1}] sc1
    s_waitcnt vmcnt(0)
    v_readfirstlane_b32 s{sT0}, v37
    s_cmp_ge_u32 s{sT0}, {NCH}
    s_cbranch_scc1 KB_ROWS_CLEAR
    s_sub_u32 s{sT3}, s{sT3}, 1
    s_cbranch_scc1 K_END
    s_sleep 16
    s_branch KB_POLL_CLEAR
    KB_ROWS_CLEAR:
    """)
    a(f"""
    s_waitcnt vmcnt(0)
    s_barrier
    """)
    ts.mark("pub")
    a(f"""
    s_cmp_lg_u32 s{sWave}, 0
    s_cbranch_scc1 KB_PUBLISHED
    buffer_store_dwordx4 v[{vEnt}:{vEnt+3}], v47, s[{rOff}:{rOff+3}], s{sTot1} offen {p['pub_pol']}
    buffer_store_dwordx4 v[{vEnt+4}:{vEnt+7}], v47, s[{rOff}:{rOff+3}], s{sTot1} offen offset:16 {p['pub_pol']}
    KB_PUBLISHED:
    """)
    a(f"""
    s_mov_b32 exec_lo, 0x000f000f
    s_mov_b32 exec_hi, 0x000f000f
    s_mov_b32 s{sSteps}, 0
    KB_POLL:
    buffer_load_dwordx2 v[{vEn}:{vEn+1}], v46, s[{rOff}:{rOff+3}], s{sT2} offen {p['poll_pol']}
    s_waitcnt vmcnt(0)
    v_cmpx_le_i32 vcc, 0, v{vEn}
    s_sub_u32 s{sT3}, s{sT3}, 1
    s_cbranch_execz KB_READY
    s_cbranch_scc1 K_END
    """)
    a(f"""
    s_sleep {p['sleep']}
    s_branch KB_POLL
    KB_READY:
    s_mov_b64 exec, -1
    s_nop 1
    """)
    ts.mark("ready")
    a(f"""
    v_and_b32 v{vSt[0]}, 0xffff, v{vEn}
    v_bfe_u32 v{vLn[0]}, v{vEn}, 16, 15
    v_and_b32 v{vSt[1]}, 0xffff, v{vEn+1}
    v_lshrrev_b32 v{vLn[1]}, 16, v{vEn+1}
    s_mov_b32 s{sT3}, 0x80000000
    s_mov_b32 s{sPhase}, {1 if p['force_fb'] else 0}
    v_add_u32 v{vSt[0]}, v{vSt[0]}, v31
    v_add_u32 v{vSt[1]}, v{vSt[1]}, v31
    """)
    indices(0)
    ts.mark("idx")
    indices(1)
    a(f"""
    v_add_u32_dpp v36, v{vLn[1]}, v{vLn[1]} quad_perm:[1,0,3,2] row_mask:0xf bank_mask:0xf
    s_lshl_b32 s{sT0}, s{sPhase}, 20
    v_mov_b32 v35, 0
    v_add_u32_dpp v36, v36, v36 quad_perm:[2,3,0,1] row_mask:0xf bank_mask:0xf
    v_add_u32 v36, s{sT0}, v36
    s_mov_b32 exec_lo, 0x00010001
    s_mov_b32 exec_hi, 0x00010001
    ds_add_u32 v35, v36 offset:{MISC}
    s_mov_b64 exec, -1
    """)
    hist(0, True)
    ts.mark("h0")
    def late_loads(pos):
        if p["r1pos"] == pos:
            for k in range(NRB):
                skip(1, k, "KB_RAW1")
                load(RAW[1][k])
            a("KB_RAW1:")
        if p["mpos"] == pos:
            load_m()

    late_loads(0)
    a(f"s_cmp_lg_u32 s{sWave}, 0")
    a("s_cbranch_scc1 KB_CONV0W")
    convert_all(0, 84, "W")
    a("s_waitcnt lgkmcnt(0)")
    a("s_barrier")
    ts.mark("B2")
    a(f"""
    s_cmp_lg_u32 s{sWave}, 0
    s_cbranch_scc1 KB_NOSCAN0
    """)
    scan(0, 28, 84)
    a("KB_NOSCAN0:")
    late_loads(1)
    a(f"""
    s_cmp_eq_u32 s{sWave}, 0
    s_cbranch_scc1 KB_CONV0
    """)
    convert_all(0, 84)
    a(f"""
    v_mov_b32 v84, 0
    s_mov_b32 s{sT2}, 0x200000
    KB_WAIT_SCAN0:
    ds_read_b32 v87, v84 offset:{MISC + 16}
    ds_read_b32 v86, v84 offset:{MISC}
    s_sub_u32 s{sT2}, s{sT2}, 1
    s_cbranch_scc1 K_END
    s_waitcnt lgkmcnt(0)
    v_readfirstlane_b32 s{sT1}, v87
    v_readfirstlane_b32 s{sT0}, v86
    s_bitcmp1_b32 s{sT1}, 31
    s_cbranch_scc0 KB_WAIT_SCAN0
    s_bitset0_b32 s{sT1}, 31
    s_mov_b32 s{sN0}, s{sT1}
    s_cmp_gt_u32 s{sT0}, {SORTCAP // 2}
    s_cbranch_scc1 KB_UNSORTED
    s_sub_u32 s{sT1}, s{sT1}, {NMIN * 512 * 8}
    s_cmp_gt_u32 s{sT1}, {(SORTCAP - NMIN * 512) * 8}
    s_cbranch_scc1 KB_UNSORTED
    """)
    scatter(0, 84)
    late_loads(2)
    a(f"s_mov_b32 s{sPhase}, 2")
    a(f"s_mov_b32 s{sSteps}, {NU}")
    a("s_waitcnt lgkmcnt(0)")
    a("s_barrier")
    ts.mark("B4")
    for k in range(3):
        for h in range(2):
            a(f"ds_read_b64 v[{REC+4*k+2*h}:{REC+4*k+2*h+1}], v{vRb} offset:{16384 * k + 4096 * h}")
    a("s_waitcnt lgkmcnt(4)")
    issue(0, track=False)
    a("s_waitcnt vmcnt(1)")
    hist(1, False)
    a(f"""
    s_waitcnt lgkmcnt(0)
    s_barrier
    s_cmp_lg_u32 s{sWave}, 0
    s_cbranch_scc1 KB_SCANNED1
    """)
    scan(1, 68, 80)
    a("KB_SCANNED1:")
    issue(1, track=False)
    convert_all(1, 84)
    a(f"""
    v_mov_b32 v80, 0
    s_mov_b32 s{sT2}, 0x200000
    KB_WAIT_SCAN1:
    ds_read_b32 v81, v80 offset:{MISC + 20}
    s_sub_u32 s{sT2}, s{sT2}, 1
    s_cbranch_scc1 K_END
    s_waitcnt lgkmcnt(0)
    v_readfirstlane_b32 s{sN1}, v81
    s_bitcmp1_b32 s{sN1}, 31
    s_cbranch_scc0 KB_WAIT_SCAN1
    s_bitset0_b32 s{sN1}, 31
    """)
    scatter(1, 80)
    a(f"""
    v_mov_b32 v81, 1
    s_mov_b64 exec, 1
    ds_add_u32 v80, v81 offset:{MISC + 32}
    s_mov_b64 exec, -1
    """)
    issue(2, track=False)
    a("s_branch KB_LOOP")
    a(f"""
    KB_UNSORTED:
    """)
    if p["mpos"] >= 2:
        load_m()
    a(f"""
    s_waitcnt vmcnt(0)
    v_mov_b32 v48, v{vSt[0]}
    v_mov_b32 v49, v{vSt[1]}
    v_mov_b32 v50, v{vLn[0]}
    v_mov_b32 v51, v{vLn[1]}
    s_mov_b32 s{sPhase}, 0
    s_mov_b32 s{sSeg}, -1
    s_mov_b32 s{sLen}, 0
    s_mov_b32 s{sBase}, 0
    KB_NEXT_PASS:
    s_cmp_lt_u32 s{sBase}, s{sLen}
    s_cbranch_scc1 KB_PASS
    s_add_u32 s{sSeg}, s{sSeg}, 1
    s_cmp_ge_u32 s{sSeg}, 32
    s_cbranch_scc1 KB_DONE
    s_bfe_u32 s{sT0}, s{sSeg}, 0x20002
    s_lshl_b32 s{sT0}, s{sT0}, 4
    s_and_b32 s{sT1}, s{sSeg}, 3
    s_or_b32 s{sT0}, s{sT0}, s{sT1}
    s_mov_b32 s{sBase}, 0
    v_readlane_b32 s{sStart}, v48, s{sT0}
    v_readlane_b32 s{sLen}, v50, s{sT0}
    s_cmp_lt_u32 s{sSeg}, 16
    s_cbranch_scc1 KB_NEXT_PASS
    v_readlane_b32 s{sStart}, v49, s{sT0}
    v_readlane_b32 s{sLen}, v51, s{sT0}
    s_nop 0
    s_branch KB_NEXT_PASS
    KB_PASS:
    s_sub_u32 s{sSteps}, s{sLen}, s{sBase}
    s_add_u32 s{sT0}, s{sStart}, s{sBase}
    s_add_u32 s{sBase}, s{sBase}, 256
    """)
    for k in range(4):
        r = REC + 4 * k
        a(f"""
        v_add_u32 v{r}, {64 * k}, v1
        v_cmp_gt_u32 vcc, s{sSteps}, v{r}
        v_add_u32 v{r}, s{sT0}, v{r}
        v_cndmask_b32 v{r}, -1, v{r}, vcc
        """)
        load(r)
    a(f"""
    s_add_u32 s{sSteps}, s{sSteps}, 63
    s_lshr_b32 s{sSteps}, s{sSteps}, 6
    s_min_u32 s{sSteps}, s{sSteps}, 4
    s_lshl_b32 s{sSteps}, s{sSteps}, 2
    s_waitcnt vmcnt(0)
    """)
    for k in range(4):
        convert(REC + 4 * k)
    a("s_nop 1")
    for u in range(DEPTH):
        issue(u)
    a("KB_LOOP:")
    ts.mark("loop")
    for t in range(3 if p["mpos"] == 3 else 0):
        a(f"buffer_load_dwordx2 v[{vM+2*t}:{vM+2*t+1}], v{vEo[t]}, s[{rM}:{rM+3}], 0 offen")
        seq.append(("M", t))

    def stage(i):
        a(f"s_cmp_lg_u32 s{sPhase}, 2")
        a(f"s_cbranch_scc1 KB_STAGED{i}")
        if i == 0:
            a(f"""
            s_lshl_b32 s{sT0}, s{sN0}, 12
            s_add_u32 s{sSteps}, s{sN0}, s{sN1}
            v_subrev_u32 v80, s{sT0}, v{vRb}
            v_subrev_u32 v82, s{sN0}, v{vPar}
            v_add_u32 v81, 0x10000, v80
            v_mov_b32 v83, 0
            s_mov_b32 s{sT1}, 0x200000
            KB_WAIT_SORTED:
            ds_read_b32 v84, v83 offset:{MISC + 32}
            s_sub_u32 s{sT1}, s{sT1}, 1
            s_cbranch_scc1 K_END
            s_waitcnt lgkmcnt(0)
            v_readfirstlane_b32 s{sT0}, v84
            s_cmp_lt_u32 s{sT0}, 16
            s_cbranch_scc1 KB_WAIT_SORTED
            """)
            for k in range(NMIN // 4, 6):
                for h in range(2):
                    u0 = 4 * k + h
                    base, off = (80, 16384 * k + 4096 * h) if k < 4 else (81, 16384 * (k - 4) + 4096 * h)
                    a(f"v_cmpx_le_i32 vcc, {-u0}, v82")
                    a(f"ds_read_b64 v[{REC+4*k+2*h}:{REC+4*k+2*h+1}], v{base} offset:{off}")
                    a(f"s_mov_b64 exec, -1")
            a("s_nop 2")
        else:
            a("s_waitcnt lgkmcnt(0)")
        a(f"KB_STAGED{i}:")

    prio = {int(x.split(":")[0]): int(x.split(":")[1]) for x in p["prio"].split(",") if x}
    stages = [int(x) for x in p["stages"].split(",")]
    assert stages[1] + 1 + DEPTH <= NMIN
    for u in range(NU):
        if u in prio:
            a(f"s_setprio {prio[u]}")
        if u + DEPTH < NU:
            issue(u + DEPTH)
        process(u)
        for i, at in enumerate(stages):
            if at == u:
                stage(i)
        if u < NU - 1:
            a(f"s_cmp_le_u32 s{sSteps}, {u+1}")
            a(f"s_cbranch_scc1 KB_LOOPED")
    a("KB_LOOPED:")
    a(f"""
    s_waitcnt vmcnt(0)
    s_cmp_lg_u32 s{sPhase}, 2
    s_cbranch_scc1 KB_NEXT_PASS
    """)
    a("KB_DONE:")
    vA, vMf, vRf, vF, vB = 8, 32, 44, 68, 80
    a(f"""
    v_and_b32 v64, 15, v1
    v_lshrrev_b32 v65, 4, v1
    v_lshlrev_b32 v64, 7, v64
    s_lshl_b32 s{sT0}, s{sWave}, 11
    v_lshl_add_u32 v64, v65, 5, v64
    v_add_u32 v64, s{sT0}, v64
    v_add_u32 v65, 0x10000, v64
    """)
    for t in range(3):
        for src, dst_ in ((vM, vMf), (vR, vRf)):
            a(f"v_lshlrev_b32 v{dst_+4*t}, 16, v{src+2*t}")
            a(f"v_and_b32 v{dst_+4*t+1}, v{vMask}, v{src+2*t}")
            a(f"v_lshlrev_b32 v{dst_+4*t+2}, 16, v{src+2*t+1}")
            a(f"v_and_b32 v{dst_+4*t+3}, v{vMask}, v{src+2*t+1}")
    a("s_waitcnt lgkmcnt(0)")
    a("s_barrier")
    ts.mark("fin")
    op = (" " + p["out_pol"]) if p["out_pol"] else ""

    def tiles(ts_):
        for t in ts_:
            base, off = (64, 32768 * t + ACC) if t < 2 else (65, ACC)
            a(f"ds_read_b128 v[{vA+8*t}:{vA+8*t+3}], v{base} offset:{off}")
            a(f"ds_read_b128 v[{vA+8*t+4}:{vA+8*t+7}], v{base} offset:{off+16}")
        for n, t in enumerate(ts_):
            f, b = vF + 4 * t, vB + 2 * t
            a(f"s_waitcnt lgkmcnt({2 * (len(ts_) - 1 - n)})")
            for i in range(4):
                a(f"v_cvt_f32_f64 v{f+i}, v[{vA+8*t+2*i}:{vA+8*t+2*i+1}]")
            a(f"v_cvt_pk_bf16_f32 v{b}, v{f}, v{f+1}")
            a(f"v_cvt_pk_bf16_f32 v{b+1}, v{f+2}, v{f+3}")
            a(f"v_mfma_f32_16x16x16_bf16 v[{vA+8*t}:{vA+8*t+3}], v[{vWd}:{vWd+1}], v[{b}:{b+1}], 0")
        for t in ts_:
            f, b = vF + 4 * t, vB + 2 * t
            for i in range(4):
                a(f"v_mul_f32 v{f+i}, v{vA+8*t+i}, v{vS+4*t+i}")
            a(f"v_cvt_pk_bf16_f32 v{b}, v{f}, v{f+1}")
            a(f"v_cvt_pk_bf16_f32 v{b+1}, v{f+2}, v{f+3}")
            a(f"v_mfma_f32_16x16x16_bf16 v[{vA+8*t+4}:{vA+8*t+7}], v[{vWu}:{vWu+1}], v[{b}:{b+1}], 0")
        for t in ts_:
            b = vB + 2 * t
            for i in range(4):
                a(f"v_fmac_f32 v{vMf+4*t+i}, v{vA+8*t+4+i}, v{vRf+4*t+i}")
            a(f"v_cvt_pk_bf16_f32 v{b}, v{vMf+4*t}, v{vMf+4*t+1}")
            a(f"v_cvt_pk_bf16_f32 v{b+1}, v{vMf+4*t+2}, v{vMf+4*t+3}")
            a(f"buffer_store_dwordx2 v[{b}:{b+1}], v{vEo[t]}, s[{rOut}:{rOut+3}], 0 offen{op}")

    a(f"s_cmp_ge_u32 s{sWave}, 8")
    a("s_cbranch_scc1 KB_TWO_TILES")
    tiles([0, 1, 2])
    a("s_branch KB_STORED")
    a("KB_TWO_TILES:")
    tiles([0, 1])
    a("KB_STORED:")


def build(p):
    ref = open("standalone__molecular_angular_gemnet__graph.s.ref").read().split("\n")
    out = [l for l in ref if l.startswith(";") and "@launch" not in l and "Override launch" not in l and "grid=ceil" not in l]
    if p["diag"]:
        out.append(f"; @launch kernel={NAME} grid=(256,1,1) block=(1024,1,1) lds={LDS}")
        out.append("; @launch kernel=diag_kernel grid=(1,1,1) block=(256,1,1) lds=1024")
    else:
        out.append(f"; @launch grid=(256,1,1) block=(1024,1,1) lds={LDS}")
    out.append('.amdgcn_target "amdgcn-amd-amdhsa--gfx950"')
    out.append(".text")
    a = Asm()
    ts = Stamps(a, p)
    a.raw(f".globl {NAME}\n.p2align 8\n.type {NAME},@function\n{NAME}:")
    phase_a(a, p, ts)
    phase_b(a, p, ts)
    if p["ts"]:
        a("s_waitcnt vmcnt(0)")
        ts.mark("end")
        ts.flush()
    a("K_END:")
    a("s_endpgm")
    extra = ""
    if p["diag"]:
        from diag import diag_kernel
        f = p["diag"].split(",")
        a.raw(diag_kernel((int(f[0]), int(f[1]), f[2], int(f[3]), int(f[4]), f[5]), p["mult"]))
        extra += ".p2align 6\n" + kd("diag_kernel", 32, 32)
    return "\n".join(out) + "\n" + a.text() + '.section .rodata,"a"\n.p2align 6\n' + kd(NAME, 128, 102 if p['ts'] else 96) + extra


if __name__ == "__main__":
    ap = argparse.ArgumentParser()
    ap.add_argument("-o", default="standalone__molecular_angular_gemnet__graph.s")
    ap.add_argument("kv", nargs="*")
    args = ap.parse_args()
    p = dict(P)
    for kv in args.kv:
        k, v = kv.split("=")
        p[k] = v.replace("+", " ") if not isinstance(P[k], int) else int(v, 0)
    open(args.o, "w").write(build(p))
```

```python
import argparse
from emit import Asm
from gen1 import kd, scan_add

NAME = "standalone__molecular_angular_gemnet__graph_kernel"
E, T = 160000, 2560000
NB, BS = 256, 625
NCH, CH = 256, 10000
CHG = 5280
CH_STRIDE = CHG * 12
OFFROW = 2048
HALF = 626 * 128 - 1

P = dict(ws_rec=0, ld_pol="nt", depth=3, ts=0, no_ds=0, no_valu=0, prio="0:2,7:1,14:0",
         diag="", mult=10, guard=16, force_fb=0, sleep=2, out_pol="", tsel="start,histA,scanA,scatA,pub,ready,end", tswave=0, stages='3,4', scanwave=0, warm=0, wstride=128, mearly=0, mpos=2, r1pos=1, pf=0, pfpos=1, pfrows=80128, early0=0, spf=0, spfn=4, poll_pol='sc1', pub_pol='sc1', rec_pol='sc1', anglate=3, pk=0, xmap=1, touch=0, angw=13)

CNT1 = 3072 - 626 * 4
MISC = 6144
ACC = 6400
SORT = ACC + 81920
SORTCAP = 6144
STAGE = SORT
ACNT = STAGE + 65536
WL = ACNT + 2080
DL = WL + 1552
LDS = DL + 1280

sM, sIn, sOutI, sDist, sAng, sCen, sFreq, sWr = 4, 6, 8, 10, 12, 14, 16, 18
sWs, sWd, sWu, sOut, sDbg, sWsp = 20, 22, 24, 26, 28, 30
rIn, rOutI, rAng, rRecW, rOff, rM, rDist, rOut, rRecR = 32, 36, 40, 44, 48, 52, 56, 60, 64
sAct, sSwap = 68, 70
sWave, sBkt, sF, sT0, sT1, sT2, sT3 = 3, 72, 73, 74, 75, 76, 77
sTot0, sTot1, sBase, sRem0, sRem1, sN0, sN1, sSteps, sPhase, sMk = 78, 79, 80, 81, 82, 83, 84, 85, 86, 87
sTS = 88

vMask, vM, vWd, vWu, vS, vR = 96, 98, 104, 106, 108, 120
vEnt = 72
vEo = (97, 126, 127)
vDist = 108


def srd(a, d, lo, nbytes, add=None, stride=0):
    if add is None:
        a(f"s_mov_b32 s{d}, s{lo}")
        a(f"s_and_b32 s{d+1}, s{lo+1}, 0xffff")
    else:
        a(f"s_add_u32 s{d}, s{lo}, {add}")
        a(f"s_addc_u32 s{d+1}, s{lo+1}, 0")
        a(f"s_and_b32 s{d+1}, s{d+1}, 0xffff")
    if stride:
        a(f"s_or_b32 s{d+1}, s{d+1}, {stride << 16}")
    a(f"s_mov_b32 s{d+2}, {nbytes}")
    a(f"s_mov_b32 s{d+3}, 0x20000")


class Stamps:
    def __init__(self, a, p):
        self.a, self.on, self.n = a, p["ts"], 0
        self.sel = p["tsel"].split(",")
        self.wave = p["tswave"]

    def mark(self, name):
        if self.on and name in self.sel:
            op = "s_memtime" if self.on == 2 else "s_memrealtime"
            k = self.sel.index(name)
            self.a(f"{op} s[{sTS+2*k}:{sTS+2*k+1}]")
        if self.on and name + "_c" in self.sel:
            k = self.sel.index(name + "_c")
            self.a(f"s_memtime s[{sTS+2*k}:{sTS+2*k+1}]")

    def flush(self):
        if not self.on:
            return
        a = self.a
        a(f"""
        s_waitcnt lgkmcnt(0)
        s_lshl_b32 s4, s2, 4
        s_add_u32 s4, s4, s{sWave}
        s_lshl_b32 s4, s4, 6
        s_add_u32 s5, s4, {(200 << 20) + 65536}
        s_add_u32 s8, s{sWsp}, s5
        s_addc_u32 s9, s{sWsp+1}, 0
        s_lshl_b32 s4, s2, 6
        s_add_u32 s4, s4, {200 << 20}
        s_add_u32 s6, s{sWsp}, s4
        s_addc_u32 s7, s{sWsp+1}, 0
        v_lshlrev_b32 v2, 3, v1
        v_mov_b32 v4, 0
        v_mov_b32 v5, 0
        """)
        for k in range(len(self.sel)):
            a(f"v_writelane_b32 v4, s{sTS+2*k}, {k}")
        a(f"""
        s_mov_b64 exec, 0xff
        global_store_dwordx2 v2, v[4:5], s[8:9]
        s_cmp_lg_u32 s{sWave}, {self.wave}
        s_cbranch_scc1 TS_DONE
        global_store_dwordx2 v2, v[4:5], s[6:7]
        TS_DONE:
        """)


def zero_quad(a, r):
    for i in range(4):
        a(f"v_mov_b32 v{r+i}, 0")


def warm(a, p):
    n = p['warm']
    if not n:
        return
    a(f"s_mul_i32 s{sT2}, s2, {16 * n * p['wstride']}")
    a(f"s_mul_i32 s{sT3}, s{sWave}, {n * p['wstride']}")
    a(f"s_add_u32 s{sT2}, s{sT2}, s{sT3}")
    a(f"s_min_u32 s{sT2}, s{sT2}, {E * 32 - n * p['wstride']}")
    a(f"s_add_u32 s{sIn}, s{sM}, s{sT2}")
    a(f"s_addc_u32 s{sIn+1}, s{sM+1}, 0")
    for i in range(n):
        a(f"s_load_dword s{rIn + i % 12}, s[{sIn}:{sIn+1}], {p['wstride'] * i}")


def rbf_block(a, b, after_reads):
    a.comment("radial basis (same bf16 rounding steps as the reference), S = rbf@w_sbf, R = rbf@w_rbf")
    c0, c1, aS, aR, T0 = b, b + 1, b + 2, b + 4, b + 8
    a(f"""
    v_lshlrev_b32 v{T0}, 3, v95
    v_lshrrev_b32 v{T0+1}, 4, v95
    v_and_b32 v{T0+2}, 63, v{T0}
    v_add_u32 v{T0}, {WL}, v{T0}
    v_lshl_add_u32 v{T0+2}, v{T0+1}, 6, v{T0+2}
    v_lshlrev_b32 v{T0+1}, 2, v{T0+1}
    v_add_u32 v{T0+2}, {WL + 1024}, v{T0+2}
    v_add_u32 v{T0+1}, {WL + 1536}, v{T0+1}
    ds_read_b64_tr_b16 v[{vWd}:{vWd+1}], v{T0}
    ds_read_b64_tr_b16 v[{vWu}:{vWu+1}], v{T0} offset:512
    ds_read_b64_tr_b16 v[{aS}:{aS+1}], v{T0+2}
    ds_read_b64_tr_b16 v[{aR}:{aR+1}], v{T0+2} offset:256
    ds_read_b32 v{c1}, v{T0+1}
    s_mov_b32 s{sT0}, 0xc1200000
    s_mov_b32 s{sT1}, 0x3fb8aa3b
    s_waitcnt lgkmcnt(0)
    v_lshlrev_b32 v{c0}, 16, v{c1}
    v_and_b32 v{c1}, v{vMask}, v{c1}
    """)
    after_reads()
    for t in range(3):
        a(f"v_mov_b32 v{T0+1+4*t}, 0")

    def each(fn):
        for t in range(3):
            fn(t, T0 + 2 + 4 * t, T0 + 3 + 4 * t)

    def rnd():
        each(lambda t, x0, x1: a(f"v_cvt_pk_bf16_f32 v{x0}, v{x0}, v{x1}"))
        each(lambda t, x0, x1: a(f"v_and_b32 v{x1}, v{vMask}, v{x0}"))
        each(lambda t, x0, x1: a(f"v_lshlrev_b32 v{x0}, 16, v{x0}"))

    each(lambda t, x0, x1: a(f"v_lshlrev_b32 v{vDist+t}, 16, v{vDist+t}"))
    each(lambda t, x0, x1: a(f"v_sub_f32 v{x0}, v{vDist+t}, v{c0}\nv_sub_f32 v{x1}, v{vDist+t}, v{c1}"))
    rnd()
    each(lambda t, x0, x1: a(f"v_mul_f32 v{x0}, v{x0}, v{x0}\nv_mul_f32 v{x1}, v{x1}, v{x1}"))
    rnd()
    each(lambda t, x0, x1: a(f"v_mul_f32 v{x0}, s{sT0}, v{x0}\nv_mul_f32 v{x1}, s{sT0}, v{x1}"))
    rnd()
    each(lambda t, x0, x1: a(f"v_mul_f32 v{x0}, s{sT1}, v{x0}\nv_mul_f32 v{x1}, s{sT1}, v{x1}"))
    each(lambda t, x0, x1: a(f"v_exp_f32 v{x0}, v{x0}\nv_exp_f32 v{x1}, v{x1}"))
    each(lambda t, x0, x1: a(f"v_cvt_pk_bf16_f32 v{T0+4*t}, v{x0}, v{x1}"))
    for t in range(3):
        a(f"v_mfma_f32_16x16x16_bf16 v[{vS+4*t}:{vS+4*t+3}], v[{aS}:{aS+1}], v[{T0+4*t}:{T0+1+4*t}], 0")
    a(f"v_mfma_f32_16x16x16_bf16 v[{T0+12}:{T0+15}], v[{aR}:{aR+1}], v[{T0+8}:{T0+9}], 0")
    a(f"s_nop 3")
    a(f"v_mfma_f32_16x16x16_bf16 v[{T0+8}:{T0+11}], v[{aR}:{aR+1}], v[{T0+4}:{T0+5}], 0")
    a(f"s_nop 3")
    a(f"v_mfma_f32_16x16x16_bf16 v[{T0+4}:{T0+7}], v[{aR}:{aR+1}], v[{T0}:{T0+1}], 0")
    for t in (2, 1, 0):
        a(f"v_cvt_pk_bf16_f32 v{vR+2*t}, v{T0+4+4*t}, v{T0+5+4*t}")
        a(f"v_cvt_pk_bf16_f32 v{vR+2*t+1}, v{T0+6+4*t}, v{T0+7+4*t}")


def phase_a(a, p, ts):
    ld = (" " + p["ld_pol"]) if p["ld_pol"] else ""
    vO, vI, vAn, vKey, vRank, vW, vCos = 4, 14, 24, 30, 40, 50, 60
    vZ, vT16 = 84, 94
    a(f"""
    s_cmp_ge_u32 s2, {NCH}
    s_cbranch_scc1 K_END
    s_load_dwordx16 s[4:19], s[0:1], 0
    s_load_dwordx8 s[20:27], s[0:1], 64
    s_load_dwordx4 s[28:31], s[0:1], 96
    """)
    ts.mark("entry")
    a(f"""
    v_lshlrev_b32 v1, 3, v0
    v_lshlrev_b32 v2, 2, v0
    v_lshlrev_b32 v{vT16}, 4, v0
    v_lshrrev_b32 v70, 6, v0
    v_and_b32 v95, 63, v0
    s_mul_i32 s{rM}, s2, {CH * 4}
    s_mul_i32 s{rOut}, s2, {CH * 2}
    v_cmp_gt_u32 vcc, 1000, v0
    v_readfirstlane_b32 s{sWave}, v70
    """)
    so4 = [rM, rM + 1, rM + 2, rM + 3, rDist]
    so2 = [rOut, rOut + 1, rOut + 2, rOut + 3, rDist + 1]
    for j in range(1, 5):
        a(f"s_add_u32 s{so4[j]}, s{rM}, {8000*j}")
        a(f"s_add_u32 s{so2[j]}, s{rOut}, {4000*j}")
    a(f"s_mov_b64 s[{sAct}:{sAct+1}], vcc")
    zero_quad(a, vZ)
    a(f"""
    v_add_u32 v71, {ACNT}, v{vT16}
    v_cmp_gt_u32 vcc, {(WL - ACNT) // 16}, v0
    v_mov_b32 v3, 6
    v_mov_b32 v29, {ACNT}
    v_mov_b32 v65, {ACNT + 1024}
    s_mov_b64 exec, vcc
    ds_write_b128 v71, v[{vZ}:{vZ+3}]
    s_mov_b64 exec, -1
    s_waitcnt lgkmcnt(0)
    s_barrier
    """)
    srd(a, rOutI, sOutI, T * 4)
    srd(a, rIn, sIn, T * 4)
    srd(a, rAng, sAng, T * 2)
    a(f"s_load_dword s{sF}, s[{sFreq}:{sFreq+1}], 0")
    srd(a, rOff, sWsp, NCH * OFFROW, add=str(p["ws_rec"] + NCH * CH_STRIDE))
    a(f"""
    s_mul_i32 s{sTot1}, s2, {OFFROW}
    s_cmp_lg_u32 s{sWave}, 0
    s_cbranch_scc1 KA_CLEARED
    buffer_store_dwordx4 v[{vZ}:{vZ+3}], v{vT16}, s[{rOff}:{rOff+3}], s{sTot1} offen sc1
    buffer_store_dwordx4 v[{vZ}:{vZ+3}], v{vT16}, s[{rOff}:{rOff+3}], s{sTot1} offen offset:1024 sc1
    KA_CLEARED:
    """)
    if p["touch"]:
        a.comment("wave 3 touches the unused tail of every chunk slot so the address translations are warm")
        a(f"""
        s_cmp_lg_u32 s{sWave}, 3
        s_cbranch_scc1 KA_NO_TOUCH
        s_add_u32 s{sT0}, s{sWsp}, {p['ws_rec'] + CH_STRIDE - 128}
        s_addc_u32 s{sT1}, s{sWsp+1}, 0
        v_mul_u32_u24 v70, {CH_STRIDE}, v95
        """)
        for i in range(4):
            a(f"global_load_dword v{76+i}, v70, s[{sT0}:{sT0+1}]")
            if i < 3:
                a(f"v_add_u32 v70, {64 * CH_STRIDE}, v70")
        a("KA_NO_TOUCH:")
    a(f"""
    s_and_b32 s{sBkt}, s2, 7
    s_lshl_b32 s{sBkt}, s{sBkt}, 5
    s_lshr_b32 s{sT0}, s2, 3
    s_or_b32 s{sBkt}, s{sBkt}, s{sT0}
    s_cmp_lg_u32 s{sWave}, 2
    s_cbranch_scc1 KA_NO_DIST
    """)
    srd(a, rRecR, sDist, E * 2)
    a(f"""
    s_mul_i32 s{sT0}, s{sBkt}, {BS * 2}
    s_and_b32 s{sT0}, s{sT0}, -4
    v_lshl_add_u32 v70, v95, 4, s{sT0}
    buffer_load_dwordx4 v[76:79], v70, s[{rRecR}:{rRecR+3}], 0 offen
    s_mov_b64 exec, 0xffff
    buffer_load_dwordx4 v[80:83], v70, s[{rRecR}:{rRecR+3}], 0 offen offset:1024
    s_mov_b64 exec, -1
    KA_NO_DIST:
    """)
    a(f"""
    s_cmp_lg_u32 s{sWave}, 1
    s_cbranch_scc1 KA_NO_WEIGHTS
    v_lshlrev_b32 v70, 4, v95
    v_and_b32 v71, 0x1ff, v70
    s_mov_b32 exec_hi, 0
    global_load_dwordx4 v[76:79], v71, s[{sWd}:{sWd+1}]
    s_mov_b32 exec_lo, 0
    s_mov_b32 exec_hi, -1
    global_load_dwordx4 v[76:79], v71, s[{sWu}:{sWu+1}]
    v_and_b32 v71, 0xff, v70
    s_mov_b32 exec_hi, 1
    global_load_dwordx4 v[80:83], v71, s[{sCen}:{sCen+1}]
    s_mov_b64 exec, -1
    v_and_b32 v71, 0xff, v70
    s_mov_b64 exec, 0xffff
    global_load_dwordx4 v[80:83], v71, s[{sWs}:{sWs+1}]
    s_mov_b32 exec_lo, 0xffff0000
    global_load_dwordx4 v[80:83], v71, s[{sWr}:{sWr+1}]
    s_mov_b64 exec, -1
    KA_NO_WEIGHTS:
    """)
    a(f"s_mov_b64 exec, s[{sAct}:{sAct+1}]")
    if p["anglate"] >= 2:
        a("s_setprio 3")
    for j in range(5):
        a(f"buffer_load_dwordx2 v[{vO+2*j}:{vO+2*j+1}], v1, s[{rOutI}:{rOutI+3}], s{so4[j]} offen{ld}")
        a(f"buffer_load_dwordx2 v[{vI+2*j}:{vI+2*j+1}], v1, s[{rIn}:{rIn+3}], s{so4[j]} offen{ld}")
    def load_angles():
        for j in range(5):
            a(f"buffer_load_dword v{vAn+j}, v2, s[{rAng}:{rAng+3}], s{so2[j]} offen{ld}")

    if p["anglate"] == 0:
        load_angles()
    if p["anglate"] == 2:
        a("s_setprio 0")
        load_angles()
    if p["anglate"] == 3:
        a("s_setprio 0")
        a(f"s_cmp_lt_u32 s{sWave}, {p['angw']}")
        a("s_cbranch_scc1 KA_ANG_LATER")
        load_angles()
        a("KA_ANG_LATER:")
    a("s_mov_b64 exec, -1")
    ts.mark("start")
    a(f"""
    v_add_u32 v70, {STAGE}, v{vT16}
    v_add_u32 v71, 0x10000, v{vT16}
    v_cmp_gt_u32 vcc, {(SORT - 81920) // 16}, v0
    ds_write_b128 v70, v[{vZ}:{vZ+3}]
    ds_write_b128 v70, v[{vZ}:{vZ+3}] offset:16384
    ds_write_b128 v70, v[{vZ}:{vZ+3}] offset:32768
    ds_write_b128 v70, v[{vZ}:{vZ+3}] offset:49152
    ds_write_b128 v{vT16}, v[{vZ}:{vZ+3}]
    ds_write_b128 v{vT16}, v[{vZ}:{vZ+3}] offset:16384
    ds_write_b128 v{vT16}, v[{vZ}:{vZ+3}] offset:32768
    ds_write_b128 v{vT16}, v[{vZ}:{vZ+3}] offset:49152
    ds_write_b128 v71, v[{vZ}:{vZ+3}]
    s_mov_b64 exec, vcc
    ds_write_b128 v71, v[{vZ}:{vZ+3}] offset:16384
    s_mov_b64 exec, -1
    """)

    def epilogue_operands(b):
        a.comment("output addresses: lane = (n = lane&15 edge in tile, g = lane>>4 feature group); distances of the three tiles")
        a(f"""
        s_mul_i32 s{sT0}, s{sBkt}, {BS}
        s_lshl_b32 s{sT1}, s{sWave}, 4
        v_and_b32 v{b+0}, 15, v95
        v_lshrrev_b32 v{b+1}, 4, v95
        v_add_u32 v{b+2}, s{sT1}, v{b+0}
        v_lshlrev_b32 v{b+3}, 3, v{b+1}
        s_lshl_b32 s{sT2}, s{sBkt}, 1
        s_and_b32 s{sT2}, s{sT2}, 2
        s_add_u32 s{sT2}, s{sT2}, {DL}
        v_mov_b32 v{b+6}, 0x80000000
        v_lshl_add_u32 v{b+7}, v{b+2}, 1, s{sT2}
        v_mov_b32 v{vMask}, 0xffff0000
        """)
        for t in range(3):
            a(f"ds_read_u16 v{vDist+t}, v{b+7} offset:{512 * t}")
        srd(a, rM, sM, E * 32)
        srd(a, rOut, sOut, E * 32)
        for t in range(3):
            a(f"""
            v_add_u32 v{b+4}, {256 * t}, v{b+2}
            v_cmp_gt_u32 vcc, {BS}, v{b+4}
            v_add_u32 v{b+4}, s{sT0}, v{b+4}
            v_lshl_add_u32 v{b+5}, v{b+4}, 5, v{b+3}
            v_cndmask_b32 v{vEo[t]}, v{b+6}, v{b+5}, vcc
            """)

    NPRE = 19
    sChO, sRow, sChG, sMag, sHalf, sNeg, sHi, sK = sTot0, sTot1, sBase, sRem0, sRem1, sN0, sN1, sSteps
    a(f"""
    s_mul_i32 s{sChO}, s2, {CH_STRIDE}
    s_add_u32 s{sChO}, s{sChO}, {p['ws_rec']}
    s_mov_b32 s{sMag}, 6871948
    s_mov_b32 s{sHalf}, {HALF}
    s_mov_b32 s{sNeg}, {-BS}
    s_mov_b32 s{sHi}, 0xffff0000
    s_mov_b32 s{sK}, 2048
    """)
    srd(a, rRecW, sWsp, 0, add=f"s{sChO}")
    srd(a, rRecR, sWsp, NCH * CHG, add=str(p["ws_rec"]), stride=12)
    a(f"s_mov_b64 exec, s[{sAct}:{sAct+1}]")
    for j in range(5):
        o0, o1, i0, i1 = vO + 2 * j, vO + 2 * j + 1, vI + 2 * j, vI + 2 * j + 1
        k0, k1_, r0, r1 = vKey + 2 * j, vKey + 1 + 2 * j, vRank + 2 * j, vRank + 1 + 2 * j
        q0, q1, l0, l1 = 72, 73, 74, 75
        if p["anglate"] == 3:
            a(f"""
            s_cmp_lt_u32 s{sWave}, {p['angw']}
            s_cbranch_scc0 KA_W{j}
            s_waitcnt vmcnt({8 - 2 * j})
            KA_W{j}:
            """)
        a(f"""
        s_waitcnt vmcnt({(0 if p['anglate'] == 1 else 5) + 8 - 2 * j})
        v_mul_hi_u32_u24 v{q0}, s{sMag}, v{o0}
        v_mul_hi_u32_u24 v{q1}, s{sMag}, v{o1}
        v_cmp_le_u32 vcc, s{sHalf}, v{i0}
        v_cmp_le_u32 s[{sSwap}:{sSwap+1}], s{sHalf}, v{i1}
        v_mad_i32_i24 v{l0}, v{q0}, s{sNeg}, v{o0}
        v_mad_i32_i24 v{l1}, v{q1}, s{sNeg}, v{o1}
        v_cndmask_b32 v{k0}, v29, v65, vcc
        v_cndmask_b32 v{k1_}, v29, v65, s[{sSwap}:{sSwap+1}]
        v_lshl_add_u32 v{k0}, v{q0}, 2, v{k0}
        v_lshl_add_u32 v{k1_}, v{q1}, 2, v{k1_}
        ds_add_rtn_u32 v{r0}, v{k0}, v3
        ds_add_rtn_u32 v{r1}, v{k1_}, v3
        v_bfe_u32 v{q0}, v{l0}, 2, 1
        v_bfe_u32 v{q1}, v{l1}, 2, 1
        v_lshl_add_u32 v{i0}, v{i0}, 10, v{l0}
        v_lshl_add_u32 v{i1}, v{i1}, 10, v{l1}
        v_or_b32 v{q0}, s{sK}, v{q0}
        v_or_b32 v{q1}, s{sK}, v{q1}
        v_lshl_add_u32 v{vW+2*j}, v{i0}, 1, v{q0}
        v_lshl_add_u32 v{vW+2*j+1}, v{i1}, 1, v{q1}
        """)
    if p["anglate"] == 3:
        a(f"s_cmp_lt_u32 s{sWave}, {p['angw']}")
        a("s_cbranch_scc0 KA_ANG_DONE")
        load_angles()
        a("KA_ANG_DONE:")
    a("s_mov_b64 exec, -1")
    a("s_waitcnt lgkmcnt(0)")
    a(f"s_lshl_b32 s{sF}, s{sF}, 16")
    ts.mark("histA")
    a("s_barrier")
    if p["anglate"] == 1:
        a(f"s_mov_b64 exec, s[{sAct}:{sAct+1}]")
        load_angles()
        a("s_mov_b64 exec, -1")

    def cos_block(tag):
        a.comment("cos(bf16(freq * angle)) rounded to bf16, two angles per register")
        a(f"s_cmp_eq_u32 s{sWave}, 0")
        a("s_cbranch_scc1 KA_ANGLES0")
        a(f"s_waitcnt vmcnt({3 * p['mearly']})")
        a("KA_ANGLES0:")
        a(f"s_waitcnt vmcnt({3 * p['mearly'] + 1})")
        xs = [(4 + 2 * j, 5 + 2 * j) for j in range(5)]
        for j, (x0, x1) in enumerate(xs):
            a(f"v_lshlrev_b32 v{x0}, 16, v{vAn+j}")
            a(f"v_and_b32 v{x1}, s{sHi}, v{vAn+j}")
        a(f"s_cmp_eq_u32 s{sF}, 0x3f800000")
        a(f"s_cbranch_scc1 K_UNIT_FREQ{tag}")
        for x0, x1 in xs:
            a(f"v_mul_f32 v{x0}, s{sF}, v{x0}")
            a(f"v_mul_f32 v{x1}, s{sF}, v{x1}")
        for x0, x1 in xs:
            a(f"v_cvt_pk_bf16_f32 v{x0}, v{x0}, v{x1}")
        for x0, x1 in xs:
            a(f"v_and_b32 v{x1}, s{sHi}, v{x0}")
            a(f"v_lshlrev_b32 v{x0}, 16, v{x0}")
        a(f"K_UNIT_FREQ{tag}:")
        for op in ("v_mul_f32 v{0}, 0.15915494, v{0}", "v_fract_f32 v{0}, v{0}", "v_cos_f32 v{0}, v{0}"):
            for x0, x1 in xs:
                a(op.format(x0))
                a(op.format(x1))
        for j, (x0, x1) in enumerate(xs):
            a(f"v_cvt_pk_bf16_f32 v{vCos+j}, v{x0}, v{x1}")

    a(f"""
    s_cmp_eq_u32 s{sWave}, 0
    s_cbranch_scc1 KA_SCAN
    s_cmp_gt_u32 s{sWave}, 2
    s_cbranch_scc1 KA_SCANNED
    s_mov_b32 s{sT0}, {DL}
    s_cmp_eq_u32 s{sWave}, 1
    s_cselect_b32 s{sT0}, {WL}, s{sT0}
    s_cselect_b32 s{sT1}, -1, 0xffff
    s_cselect_b32 s{sT2}, 1, 0
    v_lshl_add_u32 v70, v95, 4, s{sT0}
    ds_write_b128 v70, v[76:79]
    s_mov_b32 exec_lo, s{sT1}
    s_mov_b32 exec_hi, s{sT2}
    ds_write_b128 v70, v[80:83] offset:1024
    s_mov_b64 exec, -1
    s_waitcnt lgkmcnt(0)
    s_branch KA_SCANNED
    """)
    a("KA_SCAN:")
    a(f"""
    v_mov_b32 v70, 0
    v_mov_b32 v71, 1
    s_mov_b64 exec, 1
    global_atomic_add v70, v71, s[{sDbg}:{sDbg+1}]
    s_mov_b64 exec, -1
    v_lshlrev_b32 v70, 5, v95
    v_add_u32 v69, {ACNT}, v70
    ds_read_b128 v[72:75], v69
    ds_read_b128 v[76:79], v69 offset:16
    s_mov_b32 s{sT1}, 43691
    s_waitcnt lgkmcnt(0)
    """)
    for i in range(8):
        a(f"v_and_b32 v{80+i}, 2, v{72+i}")
    for i in range(8):
        a(f"v_mad_u32_u24 v{72+i}, v{80+i}, 3, v{72+i}")
    for i in range(1, 8):
        a(f"v_add_u32 v{72+i}, v{71+i}, v{72+i}")
    a("v_mov_b32 v71, v79")
    scan_add(a, 71)
    a(f"v_sub_u32 v80, v71, v79")
    a(f"v_readlane_b32 s{sT0}, v71, 63")
    for i in range(1, 8):
        a(f"v_add_u32 v{80+i}, v80, v{71+i}")
    for i in range(8):
        a(f"v_add_u32 v{72+i}, {STAGE}, v{80+i}")
    a(f"""
    v_mov_b32 v88, s{sT0}
    ds_write_b128 v69, v[72:75]
    ds_write_b128 v69, v[76:79] offset:16
    ds_write_b32 v29, v88 offset:2048
    s_waitcnt lgkmcnt(0)
    """)
    a("KA_SCANNED:")
    a("s_barrier")
    ts.mark("scanA")
    a("ds_read_b32 v68, v29 offset:2048")
    a(f"s_mov_b64 exec, s[{sAct}:{sAct+1}]")
    vB = 14
    for i in range(10):
        a(f"ds_read_b32 v{vB+i}, v{vKey+i}")
    a("s_mov_b64 exec, -1")
    a(f"s_cmp_lg_u32 s{sWave}, 0")
    a("s_cbranch_scc1 KA_HAVE_ENTRIES")
    a(f"v_mov_b32 v88, v71")
    for i in range(9):
        a(f"v_mul_u32_u24 v{80+i}, s{sT1}, v{80+i}")
    for i in range(9):
        a(f"v_lshrrev_b32 v{80+i}, 19, v{80+i}")
    reg = lambda i: vEnt + 2 * (i % 4) + i // 4
    for i in range(8):
        a(f"v_sub_u32 v{reg(i)}, v{81+i}, v{80+i}")
    for i in range(8):
        a(f"v_lshl_or_b32 v{reg(i)}, v{reg(i)}, 16, v{80+i}")
    for i in range(4):
        a(f"v_permlane32_swap_b32 v{reg(i)}, v{reg(i + 4)}")
    for i in range(4):
        a(f"v_or_b32 v{reg(i)}, 0x80000000, v{reg(i)}")
    a("KA_HAVE_ENTRIES:")
    if p["mearly"]:
        epilogue_operands(4)
        for t in range(3):
            a(f"buffer_load_dwordx2 v[{vM+2*t}:{vM+2*t+1}], v{vEo[t]}, s[{rM}:{rM+3}], 0 offen")
    a(f"s_mov_b64 exec, s[{sAct}:{sAct+1}]")
    for i in range(10):
        a(f"v_and_b32 v{vKey+i}, 2, v{vRank+i}")
        a(f"v_sub_u32 v{vRank+i}, v{vRank+i}, v{vKey+i}")
    a("s_waitcnt lgkmcnt(0)")
    for i in range(10):
        a(f"v_add_u32 v{vB+i}, v{vB+i}, v{vRank+i}")
        a(f"ds_write_b32 v{vB+i}, v{vW+i}")
        a(f"v_sub_u32 v{vKey+i}, v{vB+i}, v{vKey+i}")
    cos_block("A")
    for i in range(10):
        a(f"ds_write_b16{'_d16_hi' if i % 2 else ''} v{vKey+i}, v{vCos+i//2} offset:8")
    a("s_mov_b64 exec, -1")
    a(f"v_readfirstlane_b32 s{rRecW+2}, v68")
    a(f"v_add_u32 v69, {STAGE}, v{vT16}")
    for i in range(1, 4):
        a(f"v_add_u32 v{65+i}, {i*16384}, v{vT16}")
    a(f"s_add_u32 s{rRecW+2}, s{rRecW+2}, 15")
    a(f"s_and_b32 s{rRecW+2}, s{rRecW+2}, -16")
    a("s_waitcnt lgkmcnt(0)")
    a("s_barrier")
    ts.mark("scatA")
    for i in range(4):
        a(f"ds_read_b128 v[{4+4*i}:{7+4*i}], v69 offset:{16384 * i}")
    for i in range(4):
        a(f"s_waitcnt lgkmcnt({3 - i})")
        a(f"buffer_store_dwordx4 v[{4+4*i}:{7+4*i}], v{vT16 if i == 0 else 65+i}, s[{rRecW}:{rRecW+3}], 0 offen sc1")
    if not p["mearly"]:
        epilogue_operands(20)
    rbf_block(a, 32, lambda: warm(a, p))
    a("v_mov_b32 v1, v95")


def phase_b(a, p, ts):
    DEPTH = p["depth"]
    NU = 24
    NRB = 5
    NMIN = 8
    vCoff, vLoff, vSel = 2, 3, 4
    REC, RING, NRING = 8, 32, DEPTH + 1
    RAW = ([REC + 4 * k for k in range(NRB)], [48, 52, 56, 60, 88])
    RANK = (74, 20)
    vLa, vC, vGA, vL, vE, vX, vD = 64, 66, 67, 68, 72, 76, 80
    vBin = (64, 68)
    vRb, vPar, vEight, vGA2 = 92, 93, 94, 95
    vEn = 44
    vSt, vLn, vJ, vJ1 = (40, 41), (42, 43), 38, 39
    sOv, sN = (sRem0, sRem1), (sN0, sN1)
    sSeg, sLen, sStart = sTot0, sMk, sT2

    def convert(r, t=80):
        a(f"""
        v_and_b32 v{r+3}, 0x7ff, v{r+1}
        v_lshrrev_b32 v{t}, 6, v{r+1}
        v_and_b32 v{r+1}, 0x7ff, v{r}
        v_lshrrev_b32 v{r}, 6, v{r}
        v_and_or_b32 v{r+3}, v{r+2}, v{vMask}, v{r+3}
        v_lshl_or_b32 v{r+1}, v{r+2}, 16, v{r+1}
        v_and_b32 v{r+2}, -32, v{t}
        v_and_b32 v{r}, -32, v{r}
        """)

    def skip(beta, k, label):
        if k == NRB - 1:
            a(f"s_cmp_eq_u32 s{sOv[beta]}, 0")
            a(f"s_cbranch_scc1 {label}")

    def load(r):
        a(f"buffer_load_dwordx3 v[{r}:{r+2}], v{r}, s[{rRecR}:{rRecR+3}], 0 idxen {p['rec_pol']}".rstrip())

    def indices(beta):
        r = RAW[beta][4]
        a(f"""
        v_cmp_lt_u32 vcc, 16, v{vLn[beta]}
        s_mov_b32 s{sOv[beta]}, 0
        s_cbranch_vccz KB_SHORT{beta}
        s_mov_b32 s{sOv[beta]}, 1
        s_bcnt1_i32_b64 s{sT0}, vcc
        v_cmp_lt_u32 s[{sAct}:{sAct+1}], 32, v{vLn[beta]}
        s_cmp_gt_u32 s{sT0}, 4
        s_cselect_b32 s{sPhase}, 1, s{sPhase}
        v_mov_b32 v{r+2}, 0
        v_mov_b32 v{r+3}, 0
        s_cmp_lg_u64 s[{sAct}:{sAct+1}], 0
        s_cselect_b32 s{sPhase}, 1, s{sPhase}
        """)
        for i in range(4):
            a(f"""
            s_ff1_i32_b64 s{sT0}, vcc
            s_bitset0_b64 vcc, s{sT0}
            v_readlane_b32 s{sT1}, v{vSt[beta]}, s{sT0}
            v_readlane_b32 s{sT0}, v{vLn[beta]}, s{sT0}
            s_add_u32 s{sT1}, s{sT1}, 16
            s_sub_u32 s{sT0}, s{sT0}, 16
            v_writelane_b32 v{r+2}, s{sT1}, {16 * i}
            v_writelane_b32 v{r+3}, s{sT0}, {16 * i}
            """)
            if i < 3:
                a(f"s_cmp_eq_u64 vcc, 0")
                a(f"s_cbranch_scc1 KB_LONG{beta}")
        a(f"""
        KB_LONG{beta}:
        s_nop 1
        v_add_u32_dpp v{r}, v{r+2}, v{vJ} row_newbcast:0 row_mask:0xf bank_mask:0xf
        v_sub_u32_dpp v{r+1}, v{r+3}, v{vJ1} row_newbcast:0 row_mask:0xf bank_mask:0xf
        v_and_or_b32 v{r}, v{r+1}, s{sT3}, v{r}
        """)
        if beta == 0:
            load(r)
        a(f"KB_SHORT{beta}:")
        for k in range(4):
            r = RAW[beta][k]
            a(f"v_add_u32_dpp v{r}, v{vSt[beta]}, v{vJ} row_newbcast:{k} row_mask:0xf bank_mask:0xf")
            a(f"v_sub_u32_dpp v{r+1}, v{vLn[beta]}, v{vJ1} row_newbcast:{k} row_mask:0xf bank_mask:0xf")
            a(f"v_and_or_b32 v{r}, v{r+1}, s{sT3}, v{r}")
            if beta == 0:
                load(r)

    def hist(beta, waits):
        off = f" offset:{CNT1}" if beta else ""
        for k in range(NRB):
            skip(beta, k, f"KB_HISTED{beta}")
            if waits and k < 4:
                a(f"s_waitcnt vmcnt({3 - k})")
            r = RAW[beta][k]
            for h in range(2):
                a(f"v_lshrrev_b32 v{vBin[beta]+2*k+h}, 16, v{r+h}")
            for h in range(2):
                a(f"v_and_b32 v{vBin[beta]+2*k+h}, -4, v{vBin[beta]+2*k+h}")
            for h in range(2):
                a(f"v_cmpx_ne_u32 vcc, 0, v{r+h}")
                a(f"ds_add_rtn_u32 v{RANK[beta]+2*k+h}, v{vBin[beta]+2*k+h}, v{vEight}{off}")
                a(f"s_mov_b64 exec, -1")
        a(f"KB_HISTED{beta}:")

    def scan(beta, B, t):
        a.comment("one wave: exclusive scan of the bin counters (bytes); null records behind the last real one")
        a(f"""
        v_mul_u32_u24 v{t}, 48, v1
        ds_read_b128 v[{B}:{B+3}], v{t} offset:{3072 * beta}
        ds_read_b128 v[{B+4}:{B+7}], v{t} offset:{3072 * beta + 16}
        ds_read_b128 v[{B+8}:{B+11}], v{t} offset:{3072 * beta + 32}
        v_mov_b32 v{t+2}, 0
        s_waitcnt lgkmcnt(0)
        """)
        for i in range(1, 12):
            a(f"v_add_u32 v{B+i}, v{B+i-1}, v{B+i}")
        a(f"v_mov_b32 v{t+1}, v{B+11}")
        scan_add(a, t + 1)
        a(f"v_readlane_b32 s{sT0}, v{t+1}, 63")
        a(f"v_sub_u32 v{t+1}, v{t+1}, v{B+11}")
        a(f"v_add_u32 v{t+1}, {SORT}, v{t+1}")
        for i in range(11, 0, -1):
            a(f"v_add_u32 v{B+i}, v{t+1}, v{B+i-1}")
        a(f"v_mov_b32 v{B}, v{t+1}")
        a(f"""
        s_or_b32 s{sT1}, s{sT0}, 0x80000000
        s_min_u32 s{sT0}, s{sT0}, {SORTCAP * 8}
        s_add_u32 s{sT0}, s{sT0}, {SORT}
        v_mov_b32 v{t+3}, s{sT1}
        v_lshl_add_u32 v{t+1}, v1, 2, s{sT0}
        ds_write_b128 v{t}, v[{B}:{B+3}] offset:{3072 * beta}
        ds_write_b128 v{t}, v[{B+4}:{B+7}] offset:{3072 * beta + 16}
        ds_write_b128 v{t}, v[{B+8}:{B+11}] offset:{3072 * beta + 32}
        ds_write_b32 v{t+1}, v{t+2}
        ds_write_b32 v{t+2}, v{t+3} offset:{MISC + 16 + 4 * beta}
        """)

    def convert_all(beta, t, tag=""):
        for k in range(NRB):
            skip(beta, k, f"KB_CONV{beta}{tag}")
            convert(RAW[beta][k], t)
        a(f"KB_CONV{beta}{tag}:")

    def scatter(beta, t):
        off = f" offset:{CNT1}" if beta else ""
        for k in range(NRB):
            skip(beta, k, f"KB_BASES{beta}")
            for h in range(2):
                b = vBin[beta] + 2 * k + h
                if beta:
                    a(f"v_lshrrev_b32 v{b}, 10, v{RAW[beta][k]+2*h}")
                    a(f"v_and_b32 v{b}, -4, v{b}")
                a(f"ds_read_b32 v{b}, v{b}{off}")
        a(f"KB_BASES{beta}:")
        a("s_waitcnt lgkmcnt(0)")
        for k in range(NRB):
            skip(beta, k, f"KB_SCATTERED{beta}")
            for h in range(2):
                d, b = RAW[beta][k] + 2 * h, vBin[beta] + 2 * k + h
                a(f"v_add_u32 v{b}, v{b}, v{RANK[beta]+2*k+h}")
                a(f"v_cmpx_ne_u32 vcc, 0, v{d}")
                a(f"ds_write_b64 v{b}, v[{d}:{d+1}]")
                a(f"s_mov_b64 exec, -1")
        a(f"KB_SCATTERED{beta}:")
        n = sN[beta]
        a(f"""
        s_add_u32 s{n}, s{n}, 255
        s_lshr_b32 s{n}, s{n}, 8
        s_sub_u32 s{n}, s{n}, s{sWave}
        s_add_u32 s{n}, s{n}, 15
        s_lshr_b32 s{n}, s{n}, 4
        """)

    seq, done = [], set()

    def wait_for(op):
        if op in done:
            return
        i = seq.index(op)
        a(f"s_waitcnt vmcnt({len(seq) - 1 - i})")
        done.update(seq[: i + 1])

    def qperm(kk):
        return f"quad_perm:[{kk},{kk},{kk+2},{kk+2}] row_mask:0xf bank_mask:0xf"

    def issue(u, track=True):
        kb, kk, h = u // 4, (u // 2) % 2, u % 2
        slot = RING + 4 * (u % NRING)
        guard = u >= p["guard"]
        if guard:
            a(f"s_cmp_gt_u32 s{sSteps}, {u}")
            a(f"s_cselect_b64 exec, -1, 1")
        ga = (vGA, vGA2)[u % 2]
        a(f"v_add_u32_dpp v{ga}, v{REC+4*kb+2*h}, v{vCoff} {qperm(kk)}")
        a(f"buffer_load_dwordx4 v[{slot}:{slot+3}], v{ga}, s[{rM}:{rM+3}], 0 offen")
        if track:
            seq.append(("G", u))
        if guard:
            a("s_mov_b64 exec, -1")

    def process(u, wait=None):
        kb, kk, h = u // 4, (u // 2) % 2, u % 2
        slot = RING + 4 * (u % NRING)
        if u % 4 == 0:
            for hh in range(2):
                a(f"v_lshlrev_b32_sdwa v{vLa+hh}, 6, v{REC+4*kb+2*hh+1} dst_sel:DWORD dst_unused:UNUSED_PAD src0_sel:DWORD src1_sel:WORD_0")
        a(f"v_and_b32_dpp v{vC}, v{REC+4*kb+2*h+1}, v{vMask} {qperm(kk)}")
        a(f"v_xor_b32_dpp v{vL}, v{vLa+h}, v{vLoff} {qperm(kk)}")
        if wait is None:
            wait_for(("G", u))
        else:
            a(f"s_waitcnt vmcnt({wait})")
        if p["no_valu"]:
            return
        for i in range(4):
            a(f"v_cndmask_b32 v{vE+i}, v{slot+i}, v{slot+(i^2)}, s[{sSwap}:{sSwap+1}]")
        for j in range(1, 4):
            a(f"v_xor_b32 v{vL+j}, {8*j}, v{vL}")
        for half in range(2):
            for j in range(4):
                a(f"v_perm_b32 v{vX+j}, v{vE+2*half+1}, v{vE+2*half}, v{vSel+j}")
            if half:
                for j in range(4):
                    a(f"v_xor_b32 v{vL+j}, 32, v{vL+j}")
            if p["pk"]:
                for j in (0, 2):
                    a(f"v_pk_mul_f32 v[{vX+j}:{vX+j+1}], v[{vX+j}:{vX+j+1}], v[{vC}:{vC+1}] op_sel_hi:[1,0]")
            else:
                for j in range(4):
                    a(f"v_mul_f32 v{vX+j}, v{vC}, v{vX+j}")
            for j in range(4):
                a(f"v_cvt_f64_f32 v[{vD+2*j}:{vD+2*j+1}], v{vX+j}")
            for j in range(4):
                if not p["no_ds"]:
                    a(f"ds_add_f64 v{vL+j}, v[{vD+2*j}:{vD+2*j+1}] offset:{ACC}")

    def load_m():
        for t in range(3):
            a(f"buffer_load_dwordx2 v[{vM+2*t}:{vM+2*t+1}], v{vEo[t]}, s[{rM}:{rM+3}], 0 offen")

    a(f"""
    v_and_b32 v32, 1, v1
    v_bfe_u32 v33, v1, 1, 3
    v_lshlrev_b32 v{vCoff}, 4, v32
    v_lshlrev_b32 v{vLoff}, 6, v32
    v_subrev_u32 v{vCoff}, 32, v{vCoff}
    v_lshl_add_u32 v{vLoff}, v33, 3, v{vLoff}
    v_mov_b32 v{vEight}, 8
    s_mov_b32 s{sT0}, 0x02020000
    s_mov_b32 s{sT1}, 0x01000c0c
    s_mov_b32 s{sSwap}, 0xff00ff00
    s_mov_b32 s{sSwap+1}, 0xff00ff00
    v_lshrrev_b32 v34, 1, v1
    v_lshlrev_b32 v34, 3, v34
    v_lshl_add_u32 v{vRb}, v32, 13, v34
    s_lshl_b32 s{sT2}, s{sWave}, 8
    s_add_u32 s{sT2}, s{sT2}, {SORT}
    v_lshlrev_b32 v{vPar}, 1, v32
    v_and_b32 v33, 3, v33
    v_add_u32 v{vRb}, s{sT2}, v{vRb}
    v_and_b32 v{vJ}, 15, v1
    v_lshrrev_b32 v35, 4, v1
    v_add_u32 v{vJ1}, 1, v{vJ}
    v_lshl_add_u32 v46, v{vJ}, 2, v35
    v_lshlrev_b32 v46, {14 if p['xmap'] else 11}, v46
    v_and_b32 v47, 31, v1
    v_lshrrev_b32 v34, 5, v1
    v_lshlrev_b32 v47, 6, v47
    v_lshl_add_u32 v47, v34, 5, v47
    s_lshr_b32 s{sT2}, s{sWave}, {3 if p['xmap'] else 0}
    s_lshl_b32 s{sT2}, s{sT2}, {18 if p['xmap'] else 15}
    s_and_b32 s{sT3}, s{sWave}, {7 if p['xmap'] else 0}
    s_lshl_b32 s{sT3}, s{sT3}, 11
    s_add_u32 s{sT2}, s{sT2}, s{sT3}
    v_add_u32 v31, s{sT2}, v46
    v_lshrrev_b32 v31, 11, v31
    v_mul_u32_u24 v31, {CHG}, v31
    s_lshl_b32 s{sT3}, s{sBkt}, 3
    s_add_u32 s{sT2}, s{sT2}, s{sT3}
    v_mov_b32 v{vEn}, 0
    v_mov_b32 v{vEn+1}, 0
    v_mov_b32 v36, 0
    """)
    for j in range(4):
        a(f"v_xor_b32 v34, {j}, v33")
        a(f"v_mul_lo_u32 v34, v34, s{sT0}")
        a(f"v_add_u32 v{vSel+j}, s{sT1}, v34")
    a(f"""
    s_mov_b32 s{sT3}, 0x40000
    s_cmp_lg_u32 s{sWave}, 0
    s_cbranch_scc1 KB_ROWS_CLEAR
    """)
    a(f"""
    KB_POLL_CLEAR:
    global_load_dword v37, v36, s[{sDbg}:{sDbg+1}] sc1
    s_waitcnt vmcnt(0)
    v_readfirstlane_b32 s{sT0}, v37
    s_cmp_ge_u32 s{sT0}, {NCH}
    s_cbranch_scc1 KB_ROWS_CLEAR
    s_sub_u32 s{sT3}, s{sT3}, 1
    s_cbranch_scc1 K_END
    s_sleep 16
    s_branch KB_POLL_CLEAR
    KB_ROWS_CLEAR:
    """)
    a(f"""
    s_waitcnt vmcnt(0)
    s_barrier
    """)
    ts.mark("pub")
    a(f"""
    s_cmp_lg_u32 s{sWave}, 0
    s_cbranch_scc1 KB_PUBLISHED
    buffer_store_dwordx4 v[{vEnt}:{vEnt+3}], v47, s[{rOff}:{rOff+3}], s{sTot1} offen {p['pub_pol']}
    buffer_store_dwordx4 v[{vEnt+4}:{vEnt+7}], v47, s[{rOff}:{rOff+3}], s{sTot1} offen offset:16 {p['pub_pol']}
    KB_PUBLISHED:
    """)
    a(f"""
    s_mov_b32 exec_lo, 0x000f000f
    s_mov_b32 exec_hi, 0x000f000f
    s_mov_b32 s{sSteps}, 0
    KB_POLL:
    buffer_load_dwordx2 v[{vEn}:{vEn+1}], v46, s[{rOff}:{rOff+3}], s{sT2} offen {p['poll_pol']}
    s_waitcnt vmcnt(0)
    v_cmpx_le_i32 vcc, 0, v{vEn}
    s_sub_u32 s{sT3}, s{sT3}, 1
    s_cbranch_execz KB_READY
    s_cbranch_scc1 K_END
    """)
    a(f"""
    s_sleep {p['sleep']}
    s_branch KB_POLL
    KB_READY:
    s_mov_b64 exec, -1
    s_nop 1
    """)
    ts.mark("ready")
    a(f"""
    v_and_b32 v{vSt[0]}, 0xffff, v{vEn}
    v_bfe_u32 v{vLn[0]}, v{vEn}, 16, 15
    v_and_b32 v{vSt[1]}, 0xffff, v{vEn+1}
    v_lshrrev_b32 v{vLn[1]}, 16, v{vEn+1}
    s_mov_b32 s{sT3}, 0x80000000
    s_mov_b32 s{sPhase}, {1 if p['force_fb'] else 0}
    v_add_u32 v{vSt[0]}, v{vSt[0]}, v31
    v_add_u32 v{vSt[1]}, v{vSt[1]}, v31
    """)
    indices(0)
    ts.mark("idx")
    indices(1)
    a(f"""
    v_add_u32_dpp v36, v{vLn[1]}, v{vLn[1]} quad_perm:[1,0,3,2] row_mask:0xf bank_mask:0xf
    s_lshl_b32 s{sT0}, s{sPhase}, 20
    v_mov_b32 v35, 0
    v_add_u32_dpp v36, v36, v36 quad_perm:[2,3,0,1] row_mask:0xf bank_mask:0xf
    v_add_u32 v36, s{sT0}, v36
    s_mov_b32 exec_lo, 0x00010001
    s_mov_b32 exec_hi, 0x00010001
    ds_add_u32 v35, v36 offset:{MISC}
    s_mov_b64 exec, -1
    """)
    hist(0, True)
    ts.mark("h0")
    def late_loads(pos):
        if p["r1pos"] == pos:
            for k in range(NRB):
                skip(1, k, "KB_RAW1")
                load(RAW[1][k])
            a("KB_RAW1:")
        if p["mpos"] == pos:
            load_m()
        if p["pf"] and p["pfpos"] == pos:
            a.comment("the youngest waves touch this workgroup's share of m, one dword per cache line, ahead of the gathers")
            n = p["pf"]
            per = -(-p['pfrows'] * 32 // 128 // NCH)
            lanes = -(-per // n)
            a(f"""
            s_cmp_lt_u32 s{sWave}, {16 - n}
            s_cbranch_scc1 KB_NO_TOUCH
            s_sub_u32 s{sT0}, s{sWave}, {16 - n}
            s_mul_i32 s{sT0}, s{sT0}, {lanes}
            s_mul_i32 s{sT1}, s2, {per}
            s_add_u32 s{sT0}, s{sT0}, s{sT1}
            v_add_u32 v85, s{sT0}, v1
            v_lshlrev_b32 v85, 7, v85
            s_bfm_b64 exec, {lanes}, 0
            buffer_load_dword v30, v85, s[{rM}:{rM+3}], 0 offen
            s_mov_b64 exec, -1
            KB_NO_TOUCH:
            """)

    late_loads(0)
    a(f"s_cmp_lg_u32 s{sWave}, 0")
    a("s_cbranch_scc1 KB_CONV0W")
    convert_all(0, 84, "W")
    a("s_waitcnt lgkmcnt(0)")
    a("s_barrier")
    ts.mark("B2")
    a(f"""
    s_cmp_lg_u32 s{sWave}, 0
    s_cbranch_scc1 KB_NOSCAN0
    """)
    scan(0, 28, 84)
    a("KB_NOSCAN0:")
    late_loads(1)
    a(f"""
    s_cmp_eq_u32 s{sWave}, 0
    s_cbranch_scc1 KB_CONV0
    """)
    convert_all(0, 84)
    a(f"""
    v_mov_b32 v84, 0
    s_mov_b32 s{sT2}, 0x200000
    KB_WAIT_SCAN0:
    ds_read_b32 v87, v84 offset:{MISC + 16}
    ds_read_b32 v86, v84 offset:{MISC}
    s_sub_u32 s{sT2}, s{sT2}, 1
    s_cbranch_scc1 K_END
    s_waitcnt lgkmcnt(0)
    v_readfirstlane_b32 s{sT1}, v87
    v_readfirstlane_b32 s{sT0}, v86
    s_bitcmp1_b32 s{sT1}, 31
    s_cbranch_scc0 KB_WAIT_SCAN0
    s_bitset0_b32 s{sT1}, 31
    s_mov_b32 s{sN0}, s{sT1}
    s_cmp_gt_u32 s{sT0}, {SORTCAP // 2}
    s_cbranch_scc1 KB_UNSORTED
    s_sub_u32 s{sT1}, s{sT1}, {NMIN * 512 * 8}
    s_cmp_gt_u32 s{sT1}, {(SORTCAP - NMIN * 512) * 8}
    s_cbranch_scc1 KB_UNSORTED
    """)
    scatter(0, 84)
    late_loads(2)
    a(f"s_mov_b32 s{sPhase}, 2")
    a(f"s_mov_b32 s{sSteps}, {NU}")
    a("s_waitcnt lgkmcnt(0)")
    a("s_barrier")
    ts.mark("B4")
    a("s_setprio 3")
    for k in range(3):
        for h in range(2):
            a(f"ds_read_b64 v[{REC+4*k+2*h}:{REC+4*k+2*h+1}], v{vRb} offset:{16384 * k + 4096 * h}")
    a("s_waitcnt lgkmcnt(4)")
    if p["mpos"] == 6:
        load_m()
    issue(0, track=False)
    if p["mpos"] == 4:
        load_m()
    younger = 1 + (3 if p["mpos"] in (1, 2, 4, 6) and p["mpos"] >= p["r1pos"] else 0)
    a(f"s_waitcnt vmcnt({younger})")
    hist(1, False)
    a(f"""
    s_waitcnt lgkmcnt(0)
    s_barrier
    s_cmp_lg_u32 s{sWave}, 0
    s_cbranch_scc1 KB_SCANNED1
    """)
    scan(1, 68, 80)
    a("KB_SCANNED1:")
    issue(1, track=False)
    if p["mpos"] == 5:
        load_m()
    convert_all(1, 84)
    if p["early0"]:
        issue(2, track=False)
        process(0, wait=2)
    a(f"""
    v_mov_b32 v80, 0
    s_mov_b32 s{sT2}, 0x200000
    KB_WAIT_SCAN1:
    ds_read_b32 v81, v80 offset:{MISC + 20}
    s_sub_u32 s{sT2}, s{sT2}, 1
    s_cbranch_scc1 K_END
    s_waitcnt lgkmcnt(0)
    v_readfirstlane_b32 s{sN1}, v81
    s_bitcmp1_b32 s{sN1}, 31
    s_cbranch_scc0 KB_WAIT_SCAN1
    s_bitset0_b32 s{sN1}, 31
    """)
    scatter(1, 80)
    a(f"""
    v_mov_b32 v81, 1
    s_mov_b64 exec, 1
    ds_add_u32 v80, v81 offset:{MISC + 32}
    s_mov_b64 exec, -1
    """)
    if p["early0"]:
        issue(3, track=False)
        ts.mark("loop")
        a("s_setprio 2")
        a("s_branch KB_LOOP1")
    else:
        issue(2, track=False)
        a("s_branch KB_LOOP")
    a(f"""
    KB_UNSORTED:
    """)
    if p["mpos"] >= 2:
        load_m()
    a(f"""
    s_waitcnt vmcnt(0)
    v_mov_b32 v48, v{vSt[0]}
    v_mov_b32 v49, v{vSt[1]}
    v_mov_b32 v50, v{vLn[0]}
    v_mov_b32 v51, v{vLn[1]}
    s_mov_b32 s{sPhase}, 0
    s_mov_b32 s{sSeg}, -1
    s_mov_b32 s{sLen}, 0
    s_mov_b32 s{sBase}, 0
    KB_NEXT_PASS:
    s_cmp_lt_u32 s{sBase}, s{sLen}
    s_cbranch_scc1 KB_PASS
    s_add_u32 s{sSeg}, s{sSeg}, 1
    s_cmp_ge_u32 s{sSeg}, 32
    s_cbranch_scc1 KB_DONE
    s_bfe_u32 s{sT0}, s{sSeg}, 0x20002
    s_lshl_b32 s{sT0}, s{sT0}, 4
    s_and_b32 s{sT1}, s{sSeg}, 3
    s_or_b32 s{sT0}, s{sT0}, s{sT1}
    s_mov_b32 s{sBase}, 0
    v_readlane_b32 s{sStart}, v48, s{sT0}
    v_readlane_b32 s{sLen}, v50, s{sT0}
    s_cmp_lt_u32 s{sSeg}, 16
    s_cbranch_scc1 KB_NEXT_PASS
    v_readlane_b32 s{sStart}, v49, s{sT0}
    v_readlane_b32 s{sLen}, v51, s{sT0}
    s_nop 0
    s_branch KB_NEXT_PASS
    KB_PASS:
    s_sub_u32 s{sSteps}, s{sLen}, s{sBase}
    s_add_u32 s{sT0}, s{sStart}, s{sBase}
    s_add_u32 s{sBase}, s{sBase}, 256
    """)
    for k in range(4):
        r = REC + 4 * k
        a(f"""
        v_add_u32 v{r}, {64 * k}, v1
        v_cmp_gt_u32 vcc, s{sSteps}, v{r}
        v_add_u32 v{r}, s{sT0}, v{r}
        v_cndmask_b32 v{r}, -1, v{r}, vcc
        """)
        load(r)
    a(f"""
    s_add_u32 s{sSteps}, s{sSteps}, 63
    s_lshr_b32 s{sSteps}, s{sSteps}, 6
    s_min_u32 s{sSteps}, s{sSteps}, 4
    s_lshl_b32 s{sSteps}, s{sSteps}, 2
    s_waitcnt vmcnt(0)
    """)
    for k in range(4):
        convert(REC + 4 * k)
    a("s_nop 1")
    for u in range(DEPTH):
        issue(u)
    a("KB_LOOP:")
    ts.mark("loop")
    for t in range(3 if p["mpos"] == 3 else 0):
        a(f"buffer_load_dwordx2 v[{vM+2*t}:{vM+2*t+1}], v{vEo[t]}, s[{rM}:{rM+3}], 0 offen")
        seq.append(("M", t))

    def stage(i):
        a(f"s_cmp_lg_u32 s{sPhase}, 2")
        a(f"s_cbranch_scc1 KB_STAGED{i}")
        if i == 0:
            a(f"""
            s_lshl_b32 s{sT0}, s{sN0}, 12
            s_add_u32 s{sSteps}, s{sN0}, s{sN1}
            v_subrev_u32 v80, s{sT0}, v{vRb}
            v_subrev_u32 v82, s{sN0}, v{vPar}
            v_add_u32 v81, 0x10000, v80
            v_mov_b32 v83, 0
            s_mov_b32 s{sT1}, 0x200000
            KB_WAIT_SORTED:
            ds_read_b32 v84, v83 offset:{MISC + 32}
            s_sub_u32 s{sT1}, s{sT1}, 1
            s_cbranch_scc1 K_END
            s_waitcnt lgkmcnt(0)
            v_readfirstlane_b32 s{sT0}, v84
            s_cmp_lt_u32 s{sT0}, 16
            s_cbranch_scc1 KB_WAIT_SORTED
            """)
            for k in range(NMIN // 4, 6):
                for h in range(2):
                    u0 = 4 * k + h
                    base, off = (80, 16384 * k + 4096 * h) if k < 4 else (81, 16384 * (k - 4) + 4096 * h)
                    a(f"v_cmpx_le_i32 vcc, {-u0}, v82")
                    a(f"ds_read_b64 v[{REC+4*k+2*h}:{REC+4*k+2*h+1}], v{base} offset:{off}")
                    a(f"s_mov_b64 exec, -1")
            a("s_nop 2")
        else:
            a("s_waitcnt lgkmcnt(0)")
        a(f"KB_STAGED{i}:")

    def sprefetch(region):
        if region * 262144 >= E * 32:
            return
        st = 512 // p["spfn"]
        a(f"""
        s_add_u32 s{sIn}, s{sOutI}, {region * 262144}
        s_min_u32 s{sIn}, s{sIn}, {E * 32 - 512}
        s_add_u32 s{sIn}, s{sIn}, s{sM}
        s_addc_u32 s{sIn+1}, s{sM+1}, 0
        """)
        for i in range(p["spfn"]):
            a(f"s_load_dword s{rIn + i}, s[{sIn}:{sIn+1}], {st * i}")

    prio = {int(x.split(":")[0]): int(x.split(":")[1]) for x in p["prio"].split(",") if x}
    stages = [int(x) for x in p["stages"].split(",")]
    assert stages[1] + 1 + DEPTH <= NMIN
    for u in range(NU):
        if u == 1:
            a("KB_LOOP1:")
        if u in prio:
            a(f"s_setprio {prio[u]}")
        if u + DEPTH < NU:
            issue(u + DEPTH)
        if p["spf"]:
            if u == 0:
                a(f"s_lshr_b32 s{sOutI}, s2, 3")
                a(f"s_lshl_b32 s{sOutI}, s{sOutI}, 4")
                a(f"s_add_u32 s{sOutI}, s{sOutI}, s{sWave}")
                a(f"s_lshl_b32 s{sOutI}, s{sOutI}, 9")
            sprefetch(u + DEPTH + p["spf"])
        process(u)
        ts.mark(f"s{u}")
        for i, at in enumerate(stages):
            if at == u:
                stage(i)
        if u < NU - 1:
            a(f"s_cmp_le_u32 s{sSteps}, {u+1}")
            a(f"s_cbranch_scc1 KB_LOOPED")
    a("KB_LOOPED:")
    a(f"""
    s_waitcnt vmcnt(0)
    s_cmp_lg_u32 s{sPhase}, 2
    s_cbranch_scc1 KB_NEXT_PASS
    """)
    a("KB_DONE:")
    vA, vMf, vRf, vF, vB = 8, 32, 44, 68, 80
    a(f"""
    v_and_b32 v64, 15, v1
    v_lshrrev_b32 v65, 4, v1
    v_bfe_u32 v66, v1, 2, 1
    v_bfe_u32 v67, v1, 1, 1
    v_lshlrev_b32 v64, 7, v64
    s_lshl_b32 s{sT0}, s{sWave}, 11
    v_lshl_add_u32 v64, v65, 5, v64
    v_lshlrev_b32 v66, 6, v66
    v_lshl_add_u32 v64, v67, 4, v64
    v_xor_b32 v64, v64, v66
    v_add_u32 v64, s{sT0}, v64
    s_mov_b32 s{sSwap}, 0xcccccccc
    s_mov_b32 s{sSwap+1}, 0xcccccccc
    v_add_u32 v65, 0x10000, v64
    v_xor_b32 v66, 16, v64
    v_xor_b32 v67, 16, v65
    """)
    for t in range(3):
        for src, dst_ in ((vM, vMf), (vR, vRf)):
            a(f"v_lshlrev_b32 v{dst_+4*t}, 16, v{src+2*t}")
            a(f"v_and_b32 v{dst_+4*t+1}, v{vMask}, v{src+2*t}")
            a(f"v_lshlrev_b32 v{dst_+4*t+2}, 16, v{src+2*t+1}")
            a(f"v_and_b32 v{dst_+4*t+3}, v{vMask}, v{src+2*t+1}")
    a("s_waitcnt lgkmcnt(0)")
    a("s_barrier")
    ts.mark("fin")
    op = (" " + p["out_pol"]) if p["out_pol"] else ""

    def tiles(ts_):
        for t in ts_:
            base, off = (64, 32768 * t + ACC) if t < 2 else (65, ACC)
            a(f"ds_read_b128 v[{vA+8*t}:{vA+8*t+3}], v{base} offset:{off}")
            a(f"ds_read_b128 v[{vA+8*t+4}:{vA+8*t+7}], v{base+2} offset:{off}")
        for n, t in enumerate(ts_):
            f, b = vF + 4 * t, vB + 2 * t
            a(f"s_waitcnt lgkmcnt({2 * (len(ts_) - 1 - n)})")
            for i in range(4):
                a(f"v_cvt_f32_f64 v{f+i}, v[{vA+8*t+2*i}:{vA+8*t+2*i+1}]")
            a(f"v_cvt_pk_bf16_f32 v{f}, v{f}, v{f+1}")
            a(f"v_cvt_pk_bf16_f32 v{f+2}, v{f+2}, v{f+3}")
            a(f"v_cndmask_b32 v{b}, v{f}, v{f+2}, s[{sSwap}:{sSwap+1}]")
            a(f"v_cndmask_b32 v{b+1}, v{f+2}, v{f}, s[{sSwap}:{sSwap+1}]")
            a(f"v_mfma_f32_16x16x16_bf16 v[{vA+8*t}:{vA+8*t+3}], v[{vWd}:{vWd+1}], v[{b}:{b+1}], 0")
        for t in ts_:
            f, b = vF + 4 * t, vB + 2 * t
            for i in range(4):
                a(f"v_mul_f32 v{f+i}, v{vA+8*t+i}, v{vS+4*t+i}")
            a(f"v_cvt_pk_bf16_f32 v{b}, v{f}, v{f+1}")
            a(f"v_cvt_pk_bf16_f32 v{b+1}, v{f+2}, v{f+3}")
            a(f"v_mfma_f32_16x16x16_bf16 v[{vA+8*t+4}:{vA+8*t+7}], v[{vWu}:{vWu+1}], v[{b}:{b+1}], 0")
        for t in ts_:
            b = vB + 2 * t
            for i in range(4):
                a(f"v_fmac_f32 v{vMf+4*t+i}, v{vA+8*t+4+i}, v{vRf+4*t+i}")
            a(f"v_cvt_pk_bf16_f32 v{b}, v{vMf+4*t}, v{vMf+4*t+1}")
            a(f"v_cvt_pk_bf16_f32 v{b+1}, v{vMf+4*t+2}, v{vMf+4*t+3}")
            a(f"buffer_store_dwordx2 v[{b}:{b+1}], v{vEo[t]}, s[{rOut}:{rOut+3}], 0 offen{op}")

    a(f"s_cmp_ge_u32 s{sWave}, 8")
    a("s_cbranch_scc1 KB_TWO_TILES")
    tiles([0, 1, 2])
    a("s_branch KB_STORED")
    a("KB_TWO_TILES:")
    tiles([0, 1])
    a("KB_STORED:")


def build(p):
    ref = open("standalone__molecular_angular_gemnet__graph.s.ref").read().split("\n")
    out = [l for l in ref if l.startswith(";") and "@launch" not in l and "Override launch" not in l and "grid=ceil" not in l]
    if p["diag"]:
        out.append(f"; @launch kernel={NAME} grid=(256,1,1) block=(1024,1,1) lds={LDS}")
        out.append("; @launch kernel=diag_kernel grid=(1,1,1) block=(256,1,1) lds=1024")
    else:
        out.append(f"; @launch grid=(256,1,1) block=(1024,1,1) lds={LDS}")
    out.append('.amdgcn_target "amdgcn-amd-amdhsa--gfx950"')
    out.append(".text")
    a = Asm()
    ts = Stamps(a, p)
    a.raw(f".globl {NAME}\n.p2align 8\n.type {NAME},@function\n{NAME}:")
    phase_a(a, p, ts)
    phase_b(a, p, ts)
    if p["ts"]:
        a("s_waitcnt vmcnt(0)")
        ts.mark("end")
        ts.flush()
    a("K_END:")
    a("s_endpgm")
    extra = ""
    if p["diag"]:
        from diag import diag_kernel
        f = p["diag"].split(",")
        a.raw(diag_kernel((int(f[0]), int(f[1]), f[2], int(f[3]), int(f[4]), f[5]), p["mult"]))
        extra += ".p2align 6\n" + kd("diag_kernel", 32, 32)
    return "\n".join(out) + "\n" + a.text() + '.section .rodata,"a"\n.p2align 6\n' + kd(NAME, 128, 102 if p['ts'] else 96) + extra


if __name__ == "__main__":
    ap = argparse.ArgumentParser()
    ap.add_argument("-o", default="standalone__molecular_angular_gemnet__graph.s")
    ap.add_argument("kv", nargs="*")
    args = ap.parse_args()
    p = dict(P)
    for kv in args.kv:
        k, v = kv.split("=")
        p[k] = v.replace("+", " ") if not isinstance(P[k], int) else int(v, 0)
    open(args.o, "w").write(build(p))
```

```python
import argparse
from emit import Asm
from gen1 import kd, scan_add

NAME = "standalone__molecular_angular_gemnet__graph_kernel"
E, T = 160000, 2560000
NB, BS = 256, 625
NCH, CH = 256, 10000
CHG = 5280
CH_STRIDE = CHG * 12
OFFROW = 2048
HALF = 626 * 128 - 1

P = dict(ws_rec=0, ld_pol="nt", depth=2, ts=0, no_ds=0, no_valu=0, prio="0:2,7:1,14:0",
         diag="", mult=10, guard=16, force_fb=0, sleep=2, out_pol="", tsel="start,histA,scanA,scatA,pub,ready,end", tswave=0, stages='3,4', scanwave=0, warm=0, wstride=128, mearly=0, mpos=2, r1pos=1, pf=0, pfpos=1, pfrows=80128, early0=0, msplit=8, pre=3, nmin=8, l2pf=0, l2pos=2, l2wait=1, spf=0, spfn=4, poll_pol='sc1', pub_pol='sc1', rec_pol='sc1', anglate=3, pk=0, xmap=1, touch=0, angw=13)

CNT1 = 3072 - 626 * 4
MISC = 6144
ACC = 6400
SORT = ACC + 81920
SORTCAP = 6144
STAGE = SORT
ACNT = STAGE + 65536
WL = ACNT + 2080
DL = WL + 1552
LDS = DL + 1280

sM, sIn, sOutI, sDist, sAng, sCen, sFreq, sWr = 4, 6, 8, 10, 12, 14, 16, 18
sWs, sWd, sWu, sOut, sDbg, sWsp = 20, 22, 24, 26, 28, 30
rIn, rOutI, rAng, rRecW, rOff, rM, rDist, rOut, rRecR = 32, 36, 40, 44, 48, 52, 56, 60, 64
sAct, sSwap = 68, 70
sWave, sBkt, sF, sT0, sT1, sT2, sT3 = 3, 72, 73, 74, 75, 76, 77
sTot0, sTot1, sBase, sRem0, sRem1, sN0, sN1, sSteps, sPhase, sMk = 78, 79, 80, 81, 82, 83, 84, 85, 86, 87
sTS = 88

vMask, vM, vWd, vWu, vS, vR = 96, 98, 104, 106, 108, 120
vEnt = 72
vEo = (97, 126, 127)
vDist = 108


def srd(a, d, lo, nbytes, add=None, stride=0):
    if add is None:
        a(f"s_mov_b32 s{d}, s{lo}")
        a(f"s_and_b32 s{d+1}, s{lo+1}, 0xffff")
    else:
        a(f"s_add_u32 s{d}, s{lo}, {add}")
        a(f"s_addc_u32 s{d+1}, s{lo+1}, 0")
        a(f"s_and_b32 s{d+1}, s{d+1}, 0xffff")
    if stride:
        a(f"s_or_b32 s{d+1}, s{d+1}, {stride << 16}")
    a(f"s_mov_b32 s{d+2}, {nbytes}")
    a(f"s_mov_b32 s{d+3}, 0x20000")


class Stamps:
    def __init__(self, a, p):
        self.a, self.on, self.n = a, p["ts"], 0
        self.sel = p["tsel"].split(",")
        self.wave = p["tswave"]

    def mark(self, name):
        if self.on and name in self.sel:
            op = "s_memtime" if self.on == 2 else "s_memrealtime"
            k = self.sel.index(name)
            self.a(f"{op} s[{sTS+2*k}:{sTS+2*k+1}]")
        if self.on and name + "_c" in self.sel:
            k = self.sel.index(name + "_c")
            self.a(f"s_memtime s[{sTS+2*k}:{sTS+2*k+1}]")

    def flush(self):
        if not self.on:
            return
        a = self.a
        a(f"""
        s_waitcnt lgkmcnt(0)
        s_lshl_b32 s4, s2, 4
        s_add_u32 s4, s4, s{sWave}
        s_lshl_b32 s4, s4, 6
        s_add_u32 s5, s4, {(200 << 20) + 65536}
        s_add_u32 s8, s{sWsp}, s5
        s_addc_u32 s9, s{sWsp+1}, 0
        s_lshl_b32 s4, s2, 6
        s_add_u32 s4, s4, {200 << 20}
        s_add_u32 s6, s{sWsp}, s4
        s_addc_u32 s7, s{sWsp+1}, 0
        v_lshlrev_b32 v2, 3, v1
        v_mov_b32 v4, 0
        v_mov_b32 v5, 0
        """)
        for k in range(len(self.sel)):
            a(f"v_writelane_b32 v4, s{sTS+2*k}, {k}")
        a(f"""
        s_mov_b64 exec, 0xff
        global_store_dwordx2 v2, v[4:5], s[8:9]
        s_cmp_lg_u32 s{sWave}, {self.wave}
        s_cbranch_scc1 TS_DONE
        global_store_dwordx2 v2, v[4:5], s[6:7]
        TS_DONE:
        """)


def zero_quad(a, r):
    for i in range(4):
        a(f"v_mov_b32 v{r+i}, 0")


def warm(a, p):
    n = p['warm']
    if not n:
        return
    a(f"s_mul_i32 s{sT2}, s2, {16 * n * p['wstride']}")
    a(f"s_mul_i32 s{sT3}, s{sWave}, {n * p['wstride']}")
    a(f"s_add_u32 s{sT2}, s{sT2}, s{sT3}")
    a(f"s_min_u32 s{sT2}, s{sT2}, {E * 32 - n * p['wstride']}")
    a(f"s_add_u32 s{sIn}, s{sM}, s{sT2}")
    a(f"s_addc_u32 s{sIn+1}, s{sM+1}, 0")
    for i in range(n):
        a(f"s_load_dword s{rIn + i % 12}, s[{sIn}:{sIn+1}], {p['wstride'] * i}")


def rbf_block(a, b, after_reads):
    a.comment("radial basis (same bf16 rounding steps as the reference), S = rbf@w_sbf, R = rbf@w_rbf")
    c0, c1, aS, aR, T0 = b, b + 1, b + 2, b + 4, b + 8
    a(f"""
    v_lshlrev_b32 v{T0}, 3, v95
    v_lshrrev_b32 v{T0+1}, 4, v95
    v_and_b32 v{T0+2}, 63, v{T0}
    v_add_u32 v{T0}, {WL}, v{T0}
    v_lshl_add_u32 v{T0+2}, v{T0+1}, 6, v{T0+2}
    v_lshlrev_b32 v{T0+1}, 2, v{T0+1}
    v_add_u32 v{T0+2}, {WL + 1024}, v{T0+2}
    v_add_u32 v{T0+1}, {WL + 1536}, v{T0+1}
    ds_read_b64_tr_b16 v[{vWd}:{vWd+1}], v{T0}
    ds_read_b64_tr_b16 v[{vWu}:{vWu+1}], v{T0} offset:512
    ds_read_b64_tr_b16 v[{aS}:{aS+1}], v{T0+2}
    ds_read_b64_tr_b16 v[{aR}:{aR+1}], v{T0+2} offset:256
    ds_read_b32 v{c1}, v{T0+1}
    s_mov_b32 s{sT0}, 0xc1200000
    s_mov_b32 s{sT1}, 0x3fb8aa3b
    s_waitcnt lgkmcnt(0)
    v_lshlrev_b32 v{c0}, 16, v{c1}
    v_and_b32 v{c1}, v{vMask}, v{c1}
    """)
    after_reads()
    for t in range(3):
        a(f"v_mov_b32 v{T0+1+4*t}, 0")

    def each(fn):
        for t in range(3):
            fn(t, T0 + 2 + 4 * t, T0 + 3 + 4 * t)

    def rnd():
        each(lambda t, x0, x1: a(f"v_cvt_pk_bf16_f32 v{x0}, v{x0}, v{x1}"))
        each(lambda t, x0, x1: a(f"v_and_b32 v{x1}, v{vMask}, v{x0}"))
        each(lambda t, x0, x1: a(f"v_lshlrev_b32 v{x0}, 16, v{x0}"))

    each(lambda t, x0, x1: a(f"v_lshlrev_b32 v{vDist+t}, 16, v{vDist+t}"))
    each(lambda t, x0, x1: a(f"v_sub_f32 v{x0}, v{vDist+t}, v{c0}\nv_sub_f32 v{x1}, v{vDist+t}, v{c1}"))
    rnd()
    each(lambda t, x0, x1: a(f"v_mul_f32 v{x0}, v{x0}, v{x0}\nv_mul_f32 v{x1}, v{x1}, v{x1}"))
    rnd()
    each(lambda t, x0, x1: a(f"v_mul_f32 v{x0}, s{sT0}, v{x0}\nv_mul_f32 v{x1}, s{sT0}, v{x1}"))
    rnd()
    each(lambda t, x0, x1: a(f"v_mul_f32 v{x0}, s{sT1}, v{x0}\nv_mul_f32 v{x1}, s{sT1}, v{x1}"))
    each(lambda t, x0, x1: a(f"v_exp_f32 v{x0}, v{x0}\nv_exp_f32 v{x1}, v{x1}"))
    each(lambda t, x0, x1: a(f"v_cvt_pk_bf16_f32 v{T0+4*t}, v{x0}, v{x1}"))
    for t in range(3):
        a(f"v_mfma_f32_16x16x16_bf16 v[{vS+4*t}:{vS+4*t+3}], v[{aS}:{aS+1}], v[{T0+4*t}:{T0+1+4*t}], 0")
    a(f"v_mfma_f32_16x16x16_bf16 v[{T0+12}:{T0+15}], v[{aR}:{aR+1}], v[{T0+8}:{T0+9}], 0")
    a(f"s_nop 3")
    a(f"v_mfma_f32_16x16x16_bf16 v[{T0+8}:{T0+11}], v[{aR}:{aR+1}], v[{T0+4}:{T0+5}], 0")
    a(f"s_nop 3")
    a(f"v_mfma_f32_16x16x16_bf16 v[{T0+4}:{T0+7}], v[{aR}:{aR+1}], v[{T0}:{T0+1}], 0")
    for t in (2, 1, 0):
        a(f"v_cvt_pk_bf16_f32 v{vR+2*t}, v{T0+4+4*t}, v{T0+5+4*t}")
        a(f"v_cvt_pk_bf16_f32 v{vR+2*t+1}, v{T0+6+4*t}, v{T0+7+4*t}")


def phase_a(a, p, ts):
    ld = (" " + p["ld_pol"]) if p["ld_pol"] else ""
    vO, vI, vAn, vKey, vRank, vW, vCos = 4, 14, 24, 30, 40, 50, 60
    vZ, vT16 = 84, 94
    a(f"""
    s_cmp_ge_u32 s2, {NCH}
    s_cbranch_scc1 K_END
    s_load_dwordx16 s[4:19], s[0:1], 0
    s_load_dwordx8 s[20:27], s[0:1], 64
    s_load_dwordx4 s[28:31], s[0:1], 96
    """)
    ts.mark("entry")
    a(f"""
    v_lshlrev_b32 v1, 3, v0
    v_lshlrev_b32 v2, 2, v0
    v_lshlrev_b32 v{vT16}, 4, v0
    v_lshrrev_b32 v70, 6, v0
    v_and_b32 v95, 63, v0
    s_mul_i32 s{rM}, s2, {CH * 4}
    s_mul_i32 s{rOut}, s2, {CH * 2}
    v_cmp_gt_u32 vcc, 1000, v0
    v_readfirstlane_b32 s{sWave}, v70
    """)
    so4 = [rM, rM + 1, rM + 2, rM + 3, rDist]
    so2 = [rOut, rOut + 1, rOut + 2, rOut + 3, rDist + 1]
    for j in range(1, 5):
        a(f"s_add_u32 s{so4[j]}, s{rM}, {8000*j}")
        a(f"s_add_u32 s{so2[j]}, s{rOut}, {4000*j}")
    a(f"s_mov_b64 s[{sAct}:{sAct+1}], vcc")
    zero_quad(a, vZ)
    a(f"""
    v_add_u32 v71, {ACNT}, v{vT16}
    v_cmp_gt_u32 vcc, {(WL - ACNT) // 16}, v0
    v_mov_b32 v3, 6
    v_mov_b32 v29, {ACNT}
    v_mov_b32 v65, {ACNT + 1024}
    s_mov_b64 exec, vcc
    ds_write_b128 v71, v[{vZ}:{vZ+3}]
    s_mov_b64 exec, -1
    s_waitcnt lgkmcnt(0)
    s_barrier
    """)
    srd(a, rOutI, sOutI, T * 4)
    srd(a, rIn, sIn, T * 4)
    srd(a, rAng, sAng, T * 2)
    a(f"s_load_dword s{sF}, s[{sFreq}:{sFreq+1}], 0")
    srd(a, rOff, sWsp, NCH * OFFROW, add=str(p["ws_rec"] + NCH * CH_STRIDE))
    a(f"""
    s_mul_i32 s{sTot1}, s2, {OFFROW}
    s_cmp_lg_u32 s{sWave}, 0
    s_cbranch_scc1 KA_CLEARED
    buffer_store_dwordx4 v[{vZ}:{vZ+3}], v{vT16}, s[{rOff}:{rOff+3}], s{sTot1} offen sc1
    buffer_store_dwordx4 v[{vZ}:{vZ+3}], v{vT16}, s[{rOff}:{rOff+3}], s{sTot1} offen offset:1024 sc1
    KA_CLEARED:
    """)
    if p["touch"]:
        a.comment("wave 3 touches the unused tail of every chunk slot so the address translations are warm")
        a(f"""
        s_cmp_lg_u32 s{sWave}, 3
        s_cbranch_scc1 KA_NO_TOUCH
        s_add_u32 s{sT0}, s{sWsp}, {p['ws_rec'] + CH_STRIDE - 128}
        s_addc_u32 s{sT1}, s{sWsp+1}, 0
        v_mul_u32_u24 v70, {CH_STRIDE}, v95
        """)
        for i in range(4):
            a(f"global_load_dword v{76+i}, v70, s[{sT0}:{sT0+1}]")
            if i < 3:
                a(f"v_add_u32 v70, {64 * CH_STRIDE}, v70")
        a("KA_NO_TOUCH:")
    a(f"""
    s_and_b32 s{sBkt}, s2, 7
    s_lshl_b32 s{sBkt}, s{sBkt}, 5
    s_lshr_b32 s{sT0}, s2, 3
    s_or_b32 s{sBkt}, s{sBkt}, s{sT0}
    s_cmp_lg_u32 s{sWave}, 2
    s_cbranch_scc1 KA_NO_DIST
    """)
    srd(a, rRecR, sDist, E * 2)
    a(f"""
    s_mul_i32 s{sT0}, s{sBkt}, {BS * 2}
    s_and_b32 s{sT0}, s{sT0}, -4
    v_lshl_add_u32 v70, v95, 4, s{sT0}
    buffer_load_dwordx4 v[76:79], v70, s[{rRecR}:{rRecR+3}], 0 offen
    s_mov_b64 exec, 0xffff
    buffer_load_dwordx4 v[80:83], v70, s[{rRecR}:{rRecR+3}], 0 offen offset:1024
    s_mov_b64 exec, -1
    KA_NO_DIST:
    """)
    a(f"""
    s_cmp_lg_u32 s{sWave}, 1
    s_cbranch_scc1 KA_NO_WEIGHTS
    v_lshlrev_b32 v70, 4, v95
    v_and_b32 v71, 0x1ff, v70
    s_mov_b32 exec_hi, 0
    global_load_dwordx4 v[76:79], v71, s[{sWd}:{sWd+1}]
    s_mov_b32 exec_lo, 0
    s_mov_b32 exec_hi, -1
    global_load_dwordx4 v[76:79], v71, s[{sWu}:{sWu+1}]
    v_and_b32 v71, 0xff, v70
    s_mov_b32 exec_hi, 1
    global_load_dwordx4 v[80:83], v71, s[{sCen}:{sCen+1}]
    s_mov_b64 exec, -1
    v_and_b32 v71, 0xff, v70
    s_mov_b64 exec, 0xffff
    global_load_dwordx4 v[80:83], v71, s[{sWs}:{sWs+1}]
    s_mov_b32 exec_lo, 0xffff0000
    global_load_dwordx4 v[80:83], v71, s[{sWr}:{sWr+1}]
    s_mov_b64 exec, -1
    KA_NO_WEIGHTS:
    """)
    a(f"s_mov_b64 exec, s[{sAct}:{sAct+1}]")
    if p["anglate"] >= 2:
        a("s_setprio 3")
    for j in range(5):
        a(f"buffer_load_dwordx2 v[{vO+2*j}:{vO+2*j+1}], v1, s[{rOutI}:{rOutI+3}], s{so4[j]} offen{ld}")
        a(f"buffer_load_dwordx2 v[{vI+2*j}:{vI+2*j+1}], v1, s[{rIn}:{rIn+3}], s{so4[j]} offen{ld}")
    def load_angles():
        for j in range(5):
            a(f"buffer_load_dword v{vAn+j}, v2, s[{rAng}:{rAng+3}], s{so2[j]} offen{ld}")

    if p["anglate"] == 0:
        load_angles()
    if p["anglate"] == 2:
        a("s_setprio 0")
        load_angles()
    if p["anglate"] == 3:
        a("s_setprio 0")
        a(f"s_cmp_lt_u32 s{sWave}, {p['angw']}")
        a("s_cbranch_scc1 KA_ANG_LATER")
        load_angles()
        a("KA_ANG_LATER:")
    a("s_mov_b64 exec, -1")
    ts.mark("start")
    a(f"""
    v_add_u32 v70, {STAGE}, v{vT16}
    v_add_u32 v71, 0x10000, v{vT16}
    v_cmp_gt_u32 vcc, {(SORT - 81920) // 16}, v0
    ds_write_b128 v70, v[{vZ}:{vZ+3}]
    ds_write_b128 v70, v[{vZ}:{vZ+3}] offset:16384
    ds_write_b128 v70, v[{vZ}:{vZ+3}] offset:32768
    ds_write_b128 v70, v[{vZ}:{vZ+3}] offset:49152
    ds_write_b128 v{vT16}, v[{vZ}:{vZ+3}]
    ds_write_b128 v{vT16}, v[{vZ}:{vZ+3}] offset:16384
    ds_write_b128 v{vT16}, v[{vZ}:{vZ+3}] offset:32768
    ds_write_b128 v{vT16}, v[{vZ}:{vZ+3}] offset:49152
    ds_write_b128 v71, v[{vZ}:{vZ+3}]
    s_mov_b64 exec, vcc
    ds_write_b128 v71, v[{vZ}:{vZ+3}] offset:16384
    s_mov_b64 exec, -1
    """)

    def epilogue_operands(b):
        a.comment("output addresses: lane = (n = lane&15 edge in tile, g = lane>>4 feature group); distances of the three tiles")
        a(f"""
        s_mul_i32 s{sT0}, s{sBkt}, {BS}
        s_lshl_b32 s{sT1}, s{sWave}, 4
        v_and_b32 v{b+0}, 15, v95
        v_lshrrev_b32 v{b+1}, 4, v95
        v_add_u32 v{b+2}, s{sT1}, v{b+0}
        v_lshlrev_b32 v{b+3}, 3, v{b+1}
        s_lshl_b32 s{sT2}, s{sBkt}, 1
        s_and_b32 s{sT2}, s{sT2}, 2
        s_add_u32 s{sT2}, s{sT2}, {DL}
        v_mov_b32 v{b+6}, 0x80000000
        v_lshl_add_u32 v{b+7}, v{b+2}, 1, s{sT2}
        v_mov_b32 v{vMask}, 0xffff0000
        """)
        for t in range(3):
            a(f"ds_read_u16 v{vDist+t}, v{b+7} offset:{512 * t}")
        srd(a, rM, sM, E * 32)
        srd(a, rOut, sOut, E * 32)
        for t in range(3):
            a(f"""
            v_add_u32 v{b+4}, {256 * t}, v{b+2}
            v_cmp_gt_u32 vcc, {BS}, v{b+4}
            v_add_u32 v{b+4}, s{sT0}, v{b+4}
            v_lshl_add_u32 v{b+5}, v{b+4}, 5, v{b+3}
            v_cndmask_b32 v{vEo[t]}, v{b+6}, v{b+5}, vcc
            """)

    NPRE = 19
    sChO, sRow, sChG, sMag, sHalf, sNeg, sHi, sK = sTot0, sTot1, sBase, sRem0, sRem1, sN0, sN1, sSteps
    a(f"""
    s_mul_i32 s{sChO}, s2, {CH_STRIDE}
    s_add_u32 s{sChO}, s{sChO}, {p['ws_rec']}
    s_mov_b32 s{sMag}, 6871948
    s_mov_b32 s{sHalf}, {HALF}
    s_mov_b32 s{sNeg}, {-BS}
    s_mov_b32 s{sHi}, 0xffff0000
    s_mov_b32 s{sK}, 2048
    """)
    srd(a, rRecW, sWsp, 0, add=f"s{sChO}")
    srd(a, rRecR, sWsp, NCH * CHG, add=str(p["ws_rec"]), stride=12)
    a(f"s_mov_b64 exec, s[{sAct}:{sAct+1}]")
    for j in range(5):
        o0, o1, i0, i1 = vO + 2 * j, vO + 2 * j + 1, vI + 2 * j, vI + 2 * j + 1
        k0, k1_, r0, r1 = vKey + 2 * j, vKey + 1 + 2 * j, vRank + 2 * j, vRank + 1 + 2 * j
        q0, q1, l0, l1 = 72, 73, 74, 75
        if p["anglate"] == 3:
            a(f"""
            s_cmp_lt_u32 s{sWave}, {p['angw']}
            s_cbranch_scc0 KA_W{j}
            s_waitcnt vmcnt({8 - 2 * j})
            KA_W{j}:
            """)
        a(f"""
        s_waitcnt vmcnt({(0 if p['anglate'] == 1 else 5) + 8 - 2 * j})
        v_mul_hi_u32_u24 v{q0}, s{sMag}, v{o0}
        v_mul_hi_u32_u24 v{q1}, s{sMag}, v{o1}
        v_cmp_le_u32 vcc, s{sHalf}, v{i0}
        v_cmp_le_u32 s[{sSwap}:{sSwap+1}], s{sHalf}, v{i1}
        v_mad_i32_i24 v{l0}, v{q0}, s{sNeg}, v{o0}
        v_mad_i32_i24 v{l1}, v{q1}, s{sNeg}, v{o1}
        v_cndmask_b32 v{k0}, v29, v65, vcc
        v_cndmask_b32 v{k1_}, v29, v65, s[{sSwap}:{sSwap+1}]
        v_lshl_add_u32 v{k0}, v{q0}, 2, v{k0}
        v_lshl_add_u32 v{k1_}, v{q1}, 2, v{k1_}
        ds_add_rtn_u32 v{r0}, v{k0}, v3
        ds_add_rtn_u32 v{r1}, v{k1_}, v3
        v_bfe_u32 v{q0}, v{l0}, 2, 1
        v_bfe_u32 v{q1}, v{l1}, 2, 1
        v_lshl_add_u32 v{i0}, v{i0}, 10, v{l0}
        v_lshl_add_u32 v{i1}, v{i1}, 10, v{l1}
        v_or_b32 v{q0}, s{sK}, v{q0}
        v_or_b32 v{q1}, s{sK}, v{q1}
        v_lshl_add_u32 v{vW+2*j}, v{i0}, 1, v{q0}
        v_lshl_add_u32 v{vW+2*j+1}, v{i1}, 1, v{q1}
        """)
    if p["anglate"] == 3:
        a(f"s_cmp_lt_u32 s{sWave}, {p['angw']}")
        a("s_cbranch_scc0 KA_ANG_DONE")
        load_angles()
        a("KA_ANG_DONE:")
    a("s_mov_b64 exec, -1")
    a("s_waitcnt lgkmcnt(0)")
    a(f"s_lshl_b32 s{sF}, s{sF}, 16")
    ts.mark("histA")
    a("s_barrier")
    if p["anglate"] == 1:
        a(f"s_mov_b64 exec, s[{sAct}:{sAct+1}]")
        load_angles()
        a("s_mov_b64 exec, -1")

    def cos_block(tag):
        a.comment("cos(bf16(freq * angle)) rounded to bf16, two angles per register")
        a(f"s_cmp_eq_u32 s{sWave}, 0")
        a("s_cbranch_scc1 KA_ANGLES0")
        a(f"s_waitcnt vmcnt({3 * p['mearly']})")
        a("KA_ANGLES0:")
        a(f"s_waitcnt vmcnt({3 * p['mearly'] + 1})")
        xs = [(4 + 2 * j, 5 + 2 * j) for j in range(5)]
        for j, (x0, x1) in enumerate(xs):
            a(f"v_lshlrev_b32 v{x0}, 16, v{vAn+j}")
            a(f"v_and_b32 v{x1}, s{sHi}, v{vAn+j}")
        a(f"s_cmp_eq_u32 s{sF}, 0x3f800000")
        a(f"s_cbranch_scc1 K_UNIT_FREQ{tag}")
        for x0, x1 in xs:
            a(f"v_mul_f32 v{x0}, s{sF}, v{x0}")
            a(f"v_mul_f32 v{x1}, s{sF}, v{x1}")
        for x0, x1 in xs:
            a(f"v_cvt_pk_bf16_f32 v{x0}, v{x0}, v{x1}")
        for x0, x1 in xs:
            a(f"v_and_b32 v{x1}, s{sHi}, v{x0}")
            a(f"v_lshlrev_b32 v{x0}, 16, v{x0}")
        a(f"K_UNIT_FREQ{tag}:")
        for op in ("v_mul_f32 v{0}, 0.15915494, v{0}", "v_fract_f32 v{0}, v{0}", "v_cos_f32 v{0}, v{0}"):
            for x0, x1 in xs:
                a(op.format(x0))
                a(op.format(x1))
        for j, (x0, x1) in enumerate(xs):
            a(f"v_cvt_pk_bf16_f32 v{vCos+j}, v{x0}, v{x1}")

    a(f"""
    s_cmp_eq_u32 s{sWave}, 0
    s_cbranch_scc1 KA_SCAN
    s_cmp_gt_u32 s{sWave}, 2
    s_cbranch_scc1 KA_SCANNED
    s_mov_b32 s{sT0}, {DL}
    s_cmp_eq_u32 s{sWave}, 1
    s_cselect_b32 s{sT0}, {WL}, s{sT0}
    s_cselect_b32 s{sT1}, -1, 0xffff
    s_cselect_b32 s{sT2}, 1, 0
    v_lshl_add_u32 v70, v95, 4, s{sT0}
    ds_write_b128 v70, v[76:79]
    s_mov_b32 exec_lo, s{sT1}
    s_mov_b32 exec_hi, s{sT2}
    ds_write_b128 v70, v[80:83] offset:1024
    s_mov_b64 exec, -1
    s_waitcnt lgkmcnt(0)
    s_branch KA_SCANNED
    """)
    a("KA_SCAN:")
    a(f"""
    v_mov_b32 v70, 0
    v_mov_b32 v71, 1
    s_mov_b64 exec, 1
    global_atomic_add v70, v71, s[{sDbg}:{sDbg+1}]
    s_mov_b64 exec, -1
    v_lshlrev_b32 v70, 5, v95
    v_add_u32 v69, {ACNT}, v70
    ds_read_b128 v[72:75], v69
    ds_read_b128 v[76:79], v69 offset:16
    s_mov_b32 s{sT1}, 43691
    s_waitcnt lgkmcnt(0)
    """)
    for i in range(8):
        a(f"v_and_b32 v{80+i}, 2, v{72+i}")
    for i in range(8):
        a(f"v_mad_u32_u24 v{72+i}, v{80+i}, 3, v{72+i}")
    for i in range(1, 8):
        a(f"v_add_u32 v{72+i}, v{71+i}, v{72+i}")
    a("v_mov_b32 v71, v79")
    scan_add(a, 71)
    a(f"v_sub_u32 v80, v71, v79")
    a(f"v_readlane_b32 s{sT0}, v71, 63")
    for i in range(1, 8):
        a(f"v_add_u32 v{80+i}, v80, v{71+i}")
    for i in range(8):
        a(f"v_add_u32 v{72+i}, {STAGE}, v{80+i}")
    a(f"""
    v_mov_b32 v88, s{sT0}
    ds_write_b128 v69, v[72:75]
    ds_write_b128 v69, v[76:79] offset:16
    ds_write_b32 v29, v88 offset:2048
    s_waitcnt lgkmcnt(0)
    """)
    a("KA_SCANNED:")
    a("s_barrier")
    ts.mark("scanA")
    a("ds_read_b32 v68, v29 offset:2048")
    a(f"s_mov_b64 exec, s[{sAct}:{sAct+1}]")
    vB = 14
    for i in range(10):
        a(f"ds_read_b32 v{vB+i}, v{vKey+i}")
    a("s_mov_b64 exec, -1")
    a(f"s_cmp_lg_u32 s{sWave}, 0")
    a("s_cbranch_scc1 KA_HAVE_ENTRIES")
    a(f"v_mov_b32 v88, v71")
    for i in range(9):
        a(f"v_mul_u32_u24 v{80+i}, s{sT1}, v{80+i}")
    for i in range(9):
        a(f"v_lshrrev_b32 v{80+i}, 19, v{80+i}")
    reg = lambda i: vEnt + 2 * (i % 4) + i // 4
    for i in range(8):
        a(f"v_sub_u32 v{reg(i)}, v{81+i}, v{80+i}")
    for i in range(8):
        a(f"v_lshl_or_b32 v{reg(i)}, v{reg(i)}, 16, v{80+i}")
    for i in range(4):
        a(f"v_permlane32_swap_b32 v{reg(i)}, v{reg(i + 4)}")
    for i in range(4):
        a(f"v_or_b32 v{reg(i)}, 0x80000000, v{reg(i)}")
    a("KA_HAVE_ENTRIES:")
    if p["mearly"]:
        epilogue_operands(4)
        for t in range(3):
            a(f"buffer_load_dwordx2 v[{vM+2*t}:{vM+2*t+1}], v{vEo[t]}, s[{rM}:{rM+3}], 0 offen")
    a(f"s_mov_b64 exec, s[{sAct}:{sAct+1}]")
    for i in range(10):
        a(f"v_and_b32 v{vKey+i}, 2, v{vRank+i}")
        a(f"v_sub_u32 v{vRank+i}, v{vRank+i}, v{vKey+i}")
    a("s_waitcnt lgkmcnt(0)")
    for i in range(10):
        a(f"v_add_u32 v{vB+i}, v{vB+i}, v{vRank+i}")
        a(f"ds_write_b32 v{vB+i}, v{vW+i}")
        a(f"v_sub_u32 v{vKey+i}, v{vB+i}, v{vKey+i}")
    cos_block("A")
    for i in range(10):
        a(f"ds_write_b16{'_d16_hi' if i % 2 else ''} v{vKey+i}, v{vCos+i//2} offset:8")
    a("s_mov_b64 exec, -1")
    a(f"v_readfirstlane_b32 s{rRecW+2}, v68")
    a(f"v_add_u32 v69, {STAGE}, v{vT16}")
    for i in range(1, 4):
        a(f"v_add_u32 v{65+i}, {i*16384}, v{vT16}")
    a(f"s_add_u32 s{rRecW+2}, s{rRecW+2}, 15")
    a(f"s_and_b32 s{rRecW+2}, s{rRecW+2}, -16")
    a("s_waitcnt lgkmcnt(0)")
    a("s_barrier")
    ts.mark("scatA")
    for i in range(4):
        a(f"ds_read_b128 v[{4+4*i}:{7+4*i}], v69 offset:{16384 * i}")
    for i in range(4):
        a(f"s_waitcnt lgkmcnt({3 - i})")
        a(f"buffer_store_dwordx4 v[{4+4*i}:{7+4*i}], v{vT16 if i == 0 else 65+i}, s[{rRecW}:{rRecW+3}], 0 offen sc1")
    if not p["mearly"]:
        epilogue_operands(20)
    rbf_block(a, 32, lambda: warm(a, p))
    a("v_mov_b32 v1, v95")


def phase_b(a, p, ts):
    DEPTH = p["depth"]
    NU = 24
    NRB = 5
    NMIN = p['nmin']
    vCoff, vLoff, vSel = 2, 3, 4
    PRE = max(p['pre'], DEPTH)
    REC, RING, NRING = 8, 32, max(DEPTH + 1, PRE)
    RAW = ([REC + 4 * k for k in range(NRB)], [48, 52, 56, 60, 88])
    RANK = (74, 20)
    vLa, vC, vGA, vL, vE, vX, vD = 64, 66, 67, 68, 72, 76, 80
    vBin = (64, 68)
    vRb, vPar, vEight, vGA2 = 92, 93, 94, 95
    vEn = 44
    vSt, vLn, vJ, vJ1 = (40, 41), (42, 43), 38, 39
    sOv, sN = (sRem0, sRem1), (sN0, sN1)
    sSeg, sLen, sStart = sTot0, sMk, sT2

    def convert(r, t=80):
        a(f"""
        v_and_b32 v{r+3}, 0x7ff, v{r+1}
        v_lshrrev_b32 v{t}, 6, v{r+1}
        v_and_b32 v{r+1}, 0x7ff, v{r}
        v_lshrrev_b32 v{r}, 6, v{r}
        v_and_or_b32 v{r+3}, v{r+2}, v{vMask}, v{r+3}
        v_lshl_or_b32 v{r+1}, v{r+2}, 16, v{r+1}
        v_and_b32 v{r+2}, -32, v{t}
        v_and_b32 v{r}, -32, v{r}
        """)

    def skip(beta, k, label):
        if k == NRB - 1:
            a(f"s_cmp_eq_u32 s{sOv[beta]}, 0")
            a(f"s_cbranch_scc1 {label}")

    def load(r):
        a(f"buffer_load_dwordx3 v[{r}:{r+2}], v{r}, s[{rRecR}:{rRecR+3}], 0 idxen {p['rec_pol']}".rstrip())

    def indices(beta):
        r = RAW[beta][4]
        a(f"""
        v_cmp_lt_u32 vcc, 16, v{vLn[beta]}
        s_mov_b32 s{sOv[beta]}, 0
        s_cbranch_vccz KB_SHORT{beta}
        s_mov_b32 s{sOv[beta]}, 1
        s_bcnt1_i32_b64 s{sT0}, vcc
        v_cmp_lt_u32 s[{sAct}:{sAct+1}], 32, v{vLn[beta]}
        s_cmp_gt_u32 s{sT0}, 4
        s_cselect_b32 s{sPhase}, 1, s{sPhase}
        v_mov_b32 v{r+2}, 0
        v_mov_b32 v{r+3}, 0
        s_cmp_lg_u64 s[{sAct}:{sAct+1}], 0
        s_cselect_b32 s{sPhase}, 1, s{sPhase}
        """)
        for i in range(4):
            a(f"""
            s_ff1_i32_b64 s{sT0}, vcc
            s_bitset0_b64 vcc, s{sT0}
            v_readlane_b32 s{sT1}, v{vSt[beta]}, s{sT0}
            v_readlane_b32 s{sT0}, v{vLn[beta]}, s{sT0}
            s_add_u32 s{sT1}, s{sT1}, 16
            s_sub_u32 s{sT0}, s{sT0}, 16
            v_writelane_b32 v{r+2}, s{sT1}, {16 * i}
            v_writelane_b32 v{r+3}, s{sT0}, {16 * i}
            """)
            if i < 3:
                a(f"s_cmp_eq_u64 vcc, 0")
                a(f"s_cbranch_scc1 KB_LONG{beta}")
        a(f"""
        KB_LONG{beta}:
        s_nop 1
        v_add_u32_dpp v{r}, v{r+2}, v{vJ} row_newbcast:0 row_mask:0xf bank_mask:0xf
        v_sub_u32_dpp v{r+1}, v{r+3}, v{vJ1} row_newbcast:0 row_mask:0xf bank_mask:0xf
        v_and_or_b32 v{r}, v{r+1}, s{sT3}, v{r}
        """)
        if beta == 0:
            load(r)
        a(f"KB_SHORT{beta}:")
        for k in range(4):
            r = RAW[beta][k]
            a(f"v_add_u32_dpp v{r}, v{vSt[beta]}, v{vJ} row_newbcast:{k} row_mask:0xf bank_mask:0xf")
            a(f"v_sub_u32_dpp v{r+1}, v{vLn[beta]}, v{vJ1} row_newbcast:{k} row_mask:0xf bank_mask:0xf")
            a(f"v_and_or_b32 v{r}, v{r+1}, s{sT3}, v{r}")
            if beta == 0:
                load(r)

    def hist(beta, waits):
        off = f" offset:{CNT1}" if beta else ""
        for k in range(NRB):
            skip(beta, k, f"KB_HISTED{beta}")
            if waits and k < 4:
                a(f"s_waitcnt vmcnt({3 - k})")
            r = RAW[beta][k]
            for h in range(2):
                a(f"v_lshrrev_b32 v{vBin[beta]+2*k+h}, 16, v{r+h}")
            for h in range(2):
                a(f"v_and_b32 v{vBin[beta]+2*k+h}, -4, v{vBin[beta]+2*k+h}")
            for h in range(2):
                a(f"v_cmpx_ne_u32 vcc, 0, v{r+h}")
                a(f"ds_add_rtn_u32 v{RANK[beta]+2*k+h}, v{vBin[beta]+2*k+h}, v{vEight}{off}")
                a(f"s_mov_b64 exec, -1")
        a(f"KB_HISTED{beta}:")

    def scan(beta, B, t):
        a.comment("one wave: exclusive scan of the bin counters (bytes); null records behind the last real one")
        a(f"""
        v_mul_u32_u24 v{t}, 48, v1
        ds_read_b128 v[{B}:{B+3}], v{t} offset:{3072 * beta}
        ds_read_b128 v[{B+4}:{B+7}], v{t} offset:{3072 * beta + 16}
        ds_read_b128 v[{B+8}:{B+11}], v{t} offset:{3072 * beta + 32}
        v_mov_b32 v{t+2}, 0
        s_waitcnt lgkmcnt(0)
        """)
        for i in range(1, 12):
            a(f"v_add_u32 v{B+i}, v{B+i-1}, v{B+i}")
        a(f"v_mov_b32 v{t+1}, v{B+11}")
        scan_add(a, t + 1)
        a(f"v_readlane_b32 s{sT0}, v{t+1}, 63")
        a(f"v_sub_u32 v{t+1}, v{t+1}, v{B+11}")
        a(f"v_add_u32 v{t+1}, {SORT}, v{t+1}")
        for i in range(11, 0, -1):
            a(f"v_add_u32 v{B+i}, v{t+1}, v{B+i-1}")
        a(f"v_mov_b32 v{B}, v{t+1}")
        a(f"""
        s_or_b32 s{sT1}, s{sT0}, 0x80000000
        s_min_u32 s{sT0}, s{sT0}, {SORTCAP * 8}
        s_add_u32 s{sT0}, s{sT0}, {SORT}
        v_mov_b32 v{t+3}, s{sT1}
        v_lshl_add_u32 v{t+1}, v1, 2, s{sT0}
        ds_write_b128 v{t}, v[{B}:{B+3}] offset:{3072 * beta}
        ds_write_b128 v{t}, v[{B+4}:{B+7}] offset:{3072 * beta + 16}
        ds_write_b128 v{t}, v[{B+8}:{B+11}] offset:{3072 * beta + 32}
        ds_write_b32 v{t+1}, v{t+2}
        ds_write_b32 v{t+2}, v{t+3} offset:{MISC + 16 + 4 * beta}
        """)

    def convert_all(beta, t, tag=""):
        for k in range(NRB):
            skip(beta, k, f"KB_CONV{beta}{tag}")
            convert(RAW[beta][k], t)
        a(f"KB_CONV{beta}{tag}:")

    def scatter(beta, t):
        off = f" offset:{CNT1}" if beta else ""
        for k in range(NRB):
            skip(beta, k, f"KB_BASES{beta}")
            for h in range(2):
                b = vBin[beta] + 2 * k + h
                if beta:
                    a(f"v_lshrrev_b32 v{b}, 10, v{RAW[beta][k]+2*h}")
                    a(f"v_and_b32 v{b}, -4, v{b}")
                a(f"ds_read_b32 v{b}, v{b}{off}")
        a(f"KB_BASES{beta}:")
        a("s_waitcnt lgkmcnt(0)")
        for k in range(NRB):
            skip(beta, k, f"KB_SCATTERED{beta}")
            for h in range(2):
                d, b = RAW[beta][k] + 2 * h, vBin[beta] + 2 * k + h
                a(f"v_add_u32 v{b}, v{b}, v{RANK[beta]+2*k+h}")
                a(f"v_cmpx_ne_u32 vcc, 0, v{d}")
                a(f"ds_write_b64 v{b}, v[{d}:{d+1}]")
                a(f"s_mov_b64 exec, -1")
        a(f"KB_SCATTERED{beta}:")
        n = sN[beta]
        a(f"""
        s_add_u32 s{n}, s{n}, 255
        s_lshr_b32 s{n}, s{n}, 8
        s_sub_u32 s{n}, s{n}, s{sWave}
        s_add_u32 s{n}, s{n}, 15
        s_lshr_b32 s{n}, s{n}, 4
        """)

    seq, done = [], set()

    def wait_for(op):
        if op in done:
            return
        i = seq.index(op)
        a(f"s_waitcnt vmcnt({len(seq) - 1 - i})")
        done.update(seq[: i + 1])

    def qperm(kk):
        return f"quad_perm:[{kk},{kk},{kk+2},{kk+2}] row_mask:0xf bank_mask:0xf"

    def issue(u, track=True):
        kb, kk, h = u // 4, (u // 2) % 2, u % 2
        slot = RING + 4 * (u % NRING)
        guard = u >= p["guard"]
        if guard:
            a(f"s_cmp_gt_u32 s{sSteps}, {u}")
            a(f"s_cselect_b64 exec, -1, 1")
        ga = (vGA, vGA2)[u % 2]
        a(f"v_add_u32_dpp v{ga}, v{REC+4*kb+2*h}, v{vCoff} {qperm(kk)}")
        a(f"buffer_load_dwordx4 v[{slot}:{slot+3}], v{ga}, s[{rM}:{rM+3}], 0 offen")
        if track:
            seq.append(("G", u))
        if guard:
            a("s_mov_b64 exec, -1")

    def process(u, wait=None):
        kb, kk, h = u // 4, (u // 2) % 2, u % 2
        slot = RING + 4 * (u % NRING)
        if u % 4 == 0:
            for hh in range(2):
                a(f"v_lshlrev_b32_sdwa v{vLa+hh}, 6, v{REC+4*kb+2*hh+1} dst_sel:DWORD dst_unused:UNUSED_PAD src0_sel:DWORD src1_sel:WORD_0")
        a(f"v_and_b32_dpp v{vC}, v{REC+4*kb+2*h+1}, v{vMask} {qperm(kk)}")
        a(f"v_xor_b32_dpp v{vL}, v{vLa+h}, v{vLoff} {qperm(kk)}")
        if wait is None:
            wait_for(("G", u))
        else:
            a(f"s_waitcnt vmcnt({wait})")
        if p["no_valu"]:
            return
        for i in range(4):
            a(f"v_cndmask_b32 v{vE+i}, v{slot+i}, v{slot+(i^2)}, s[{sSwap}:{sSwap+1}]")
        for j in range(1, 4):
            a(f"v_xor_b32 v{vL+j}, {8*j}, v{vL}")
        for half in range(2):
            for j in range(4):
                a(f"v_perm_b32 v{vX+j}, v{vE+2*half+1}, v{vE+2*half}, v{vSel+j}")
            if half:
                for j in range(4):
                    a(f"v_xor_b32 v{vL+j}, 32, v{vL+j}")
            if p["pk"]:
                for j in (0, 2):
                    a(f"v_pk_mul_f32 v[{vX+j}:{vX+j+1}], v[{vX+j}:{vX+j+1}], v[{vC}:{vC+1}] op_sel_hi:[1,0]")
            else:
                for j in range(4):
                    a(f"v_mul_f32 v{vX+j}, v{vC}, v{vX+j}")
            for j in range(4):
                a(f"v_cvt_f64_f32 v[{vD+2*j}:{vD+2*j+1}], v{vX+j}")
            for j in range(4):
                if not p["no_ds"]:
                    a(f"ds_add_f64 v{vL+j}, v[{vD+2*j}:{vD+2*j+1}] offset:{ACC}")

    def load_m():
        for t in range(3):
            a(f"buffer_load_dwordx2 v[{vM+2*t}:{vM+2*t+1}], v{vEo[t]}, s[{rM}:{rM+3}], 0 offen")

    a(f"""
    v_and_b32 v32, 1, v1
    v_bfe_u32 v33, v1, 1, 3
    v_lshlrev_b32 v{vCoff}, 4, v32
    v_lshlrev_b32 v{vLoff}, 6, v32
    v_subrev_u32 v{vCoff}, 32, v{vCoff}
    v_lshl_add_u32 v{vLoff}, v33, 3, v{vLoff}
    v_mov_b32 v{vEight}, 8
    s_mov_b32 s{sT0}, 0x02020000
    s_mov_b32 s{sT1}, 0x01000c0c
    s_mov_b32 s{sSwap}, 0xff00ff00
    s_mov_b32 s{sSwap+1}, 0xff00ff00
    v_lshrrev_b32 v34, 1, v1
    v_lshlrev_b32 v34, 3, v34
    v_lshl_add_u32 v{vRb}, v32, 13, v34
    s_lshl_b32 s{sT2}, s{sWave}, 8
    s_add_u32 s{sT2}, s{sT2}, {SORT}
    v_lshlrev_b32 v{vPar}, 1, v32
    v_and_b32 v33, 3, v33
    v_add_u32 v{vRb}, s{sT2}, v{vRb}
    v_and_b32 v{vJ}, 15, v1
    v_lshrrev_b32 v35, 4, v1
    v_add_u32 v{vJ1}, 1, v{vJ}
    v_lshl_add_u32 v46, v{vJ}, 2, v35
    v_lshlrev_b32 v46, {14 if p['xmap'] else 11}, v46
    v_and_b32 v47, 31, v1
    v_lshrrev_b32 v34, 5, v1
    v_lshlrev_b32 v47, 6, v47
    v_lshl_add_u32 v47, v34, 5, v47
    s_lshr_b32 s{sT2}, s{sWave}, {3 if p['xmap'] else 0}
    s_lshl_b32 s{sT2}, s{sT2}, {18 if p['xmap'] else 15}
    s_and_b32 s{sT3}, s{sWave}, {7 if p['xmap'] else 0}
    s_lshl_b32 s{sT3}, s{sT3}, 11
    s_add_u32 s{sT2}, s{sT2}, s{sT3}
    v_add_u32 v31, s{sT2}, v46
    v_lshrrev_b32 v31, 11, v31
    v_mul_u32_u24 v31, {CHG}, v31
    s_lshl_b32 s{sT3}, s{sBkt}, 3
    s_add_u32 s{sT2}, s{sT2}, s{sT3}
    v_mov_b32 v{vEn}, 0
    v_mov_b32 v{vEn+1}, 0
    v_mov_b32 v36, 0
    """)
    for j in range(4):
        a(f"v_xor_b32 v34, {j}, v33")
        a(f"v_mul_lo_u32 v34, v34, s{sT0}")
        a(f"v_add_u32 v{vSel+j}, s{sT1}, v34")
    a(f"""
    s_mov_b32 s{sT3}, 0x40000
    s_cmp_lg_u32 s{sWave}, 0
    s_cbranch_scc1 KB_ROWS_CLEAR
    """)
    a(f"""
    KB_POLL_CLEAR:
    global_load_dword v37, v36, s[{sDbg}:{sDbg+1}] sc1
    s_waitcnt vmcnt(0)
    v_readfirstlane_b32 s{sT0}, v37
    s_cmp_ge_u32 s{sT0}, {NCH}
    s_cbranch_scc1 KB_ROWS_CLEAR
    s_sub_u32 s{sT3}, s{sT3}, 1
    s_cbranch_scc1 K_END
    s_sleep 16
    s_branch KB_POLL_CLEAR
    KB_ROWS_CLEAR:
    """)
    a(f"""
    s_waitcnt vmcnt(0)
    s_barrier
    """)
    ts.mark("pub")
    a(f"""
    s_cmp_lg_u32 s{sWave}, 0
    s_cbranch_scc1 KB_PUBLISHED
    buffer_store_dwordx4 v[{vEnt}:{vEnt+3}], v47, s[{rOff}:{rOff+3}], s{sTot1} offen {p['pub_pol']}
    buffer_store_dwordx4 v[{vEnt+4}:{vEnt+7}], v47, s[{rOff}:{rOff+3}], s{sTot1} offen offset:16 {p['pub_pol']}
    KB_PUBLISHED:
    """)
    a(f"""
    s_mov_b32 exec_lo, 0x000f000f
    s_mov_b32 exec_hi, 0x000f000f
    s_mov_b32 s{sSteps}, 0
    KB_POLL:
    buffer_load_dwordx2 v[{vEn}:{vEn+1}], v46, s[{rOff}:{rOff+3}], s{sT2} offen {p['poll_pol']}
    s_waitcnt vmcnt(0)
    v_cmpx_le_i32 vcc, 0, v{vEn}
    s_sub_u32 s{sT3}, s{sT3}, 1
    s_cbranch_execz KB_READY
    s_cbranch_scc1 K_END
    """)
    a(f"""
    s_sleep {p['sleep']}
    s_branch KB_POLL
    KB_READY:
    s_mov_b64 exec, -1
    s_nop 1
    """)
    ts.mark("ready")
    a(f"""
    v_and_b32 v{vSt[0]}, 0xffff, v{vEn}
    v_bfe_u32 v{vLn[0]}, v{vEn}, 16, 15
    v_and_b32 v{vSt[1]}, 0xffff, v{vEn+1}
    v_lshrrev_b32 v{vLn[1]}, 16, v{vEn+1}
    s_mov_b32 s{sT3}, 0x80000000
    s_mov_b32 s{sPhase}, {1 if p['force_fb'] else 0}
    v_add_u32 v{vSt[0]}, v{vSt[0]}, v31
    v_add_u32 v{vSt[1]}, v{vSt[1]}, v31
    """)
    indices(0)
    ts.mark("idx")
    indices(1)
    a(f"""
    v_add_u32_dpp v36, v{vLn[1]}, v{vLn[1]} quad_perm:[1,0,3,2] row_mask:0xf bank_mask:0xf
    s_lshl_b32 s{sT0}, s{sPhase}, 20
    v_mov_b32 v35, 0
    v_add_u32_dpp v36, v36, v36 quad_perm:[2,3,0,1] row_mask:0xf bank_mask:0xf
    v_add_u32 v36, s{sT0}, v36
    s_mov_b32 exec_lo, 0x00010001
    s_mov_b32 exec_hi, 0x00010001
    ds_add_u32 v35, v36 offset:{MISC}
    s_mov_b64 exec, -1
    """)
    hist(0, True)
    ts.mark("h0")
    def late_loads(pos):
        if p["r1pos"] == pos:
            for k in range(NRB):
                skip(1, k, "KB_RAW1")
                load(RAW[1][k])
            a("KB_RAW1:")
        if p["mpos"] == pos:
            load_m()
        if p["mpos"] == 7 and pos == 2:
            a(f"s_cmp_ge_u32 s{sWave}, {p['msplit']}")
            a("s_cbranch_scc1 KB_M_LATER")
            load_m()
            a("KB_M_LATER:")
        if p["l2pf"] and p["l2pos"] == pos:
            n = p["l2pf"]
            a(f"""
            s_lshr_b32 s{sT0}, s2, 3
            s_lshl_b32 s{sT0}, s{sT0}, 4
            s_add_u32 s{sT0}, s{sT0}, s{sWave}
            s_mul_i32 s{sT0}, s{sT0}, {n}
            v_add_u32 v85, s{sT0}, v1
            v_lshlrev_b32 v85, 7, v85
            s_bfm_b64 exec, {n}, 0
            buffer_load_dword v30, v85, s[{rM}:{rM+3}], 0 offen
            s_mov_b64 exec, -1
            """)
            if p["l2wait"]:
                a("s_waitcnt vmcnt(0)")
        if p["pf"] and p["pfpos"] == pos:
            a.comment("the youngest waves touch this workgroup's share of m, one dword per cache line, ahead of the gathers")
            n = p["pf"]
            per = -(-p['pfrows'] * 32 // 128 // NCH)
            lanes = -(-per // n)
            a(f"""
            s_cmp_lt_u32 s{sWave}, {16 - n}
            s_cbranch_scc1 KB_NO_TOUCH
            s_sub_u32 s{sT0}, s{sWave}, {16 - n}
            s_mul_i32 s{sT0}, s{sT0}, {lanes}
            s_mul_i32 s{sT1}, s2, {per}
            s_add_u32 s{sT0}, s{sT0}, s{sT1}
            v_add_u32 v85, s{sT0}, v1
            v_lshlrev_b32 v85, 7, v85
            s_bfm_b64 exec, {lanes}, 0
            buffer_load_dword v30, v85, s[{rM}:{rM+3}], 0 offen
            s_mov_b64 exec, -1
            KB_NO_TOUCH:
            """)

    late_loads(0)
    a(f"s_cmp_lg_u32 s{sWave}, 0")
    a("s_cbranch_scc1 KB_CONV0W")
    convert_all(0, 84, "W")
    a("s_waitcnt lgkmcnt(0)")
    a("s_barrier")
    ts.mark("B2")
    a(f"""
    s_cmp_lg_u32 s{sWave}, 0
    s_cbranch_scc1 KB_NOSCAN0
    """)
    scan(0, 28, 84)
    a("KB_NOSCAN0:")
    late_loads(1)
    a(f"""
    s_cmp_eq_u32 s{sWave}, 0
    s_cbranch_scc1 KB_CONV0
    """)
    convert_all(0, 84)
    a(f"""
    v_mov_b32 v84, 0
    s_mov_b32 s{sT2}, 0x200000
    KB_WAIT_SCAN0:
    ds_read_b32 v87, v84 offset:{MISC + 16}
    ds_read_b32 v86, v84 offset:{MISC}
    s_sub_u32 s{sT2}, s{sT2}, 1
    s_cbranch_scc1 K_END
    s_waitcnt lgkmcnt(0)
    v_readfirstlane_b32 s{sT1}, v87
    v_readfirstlane_b32 s{sT0}, v86
    s_bitcmp1_b32 s{sT1}, 31
    s_cbranch_scc0 KB_WAIT_SCAN0
    s_bitset0_b32 s{sT1}, 31
    s_mov_b32 s{sN0}, s{sT1}
    s_cmp_gt_u32 s{sT0}, {SORTCAP // 2}
    s_cbranch_scc1 KB_UNSORTED
    s_sub_u32 s{sT1}, s{sT1}, {NMIN * 512 * 8}
    s_cmp_gt_u32 s{sT1}, {(SORTCAP - NMIN * 512) * 8}
    s_cbranch_scc1 KB_UNSORTED
    """)
    scatter(0, 84)
    late_loads(2)
    a(f"s_mov_b32 s{sPhase}, 2")
    a(f"s_mov_b32 s{sSteps}, {NU}")
    a("s_waitcnt lgkmcnt(0)")
    a("s_barrier")
    ts.mark("B4")
    a("s_setprio 3")
    for k in range(3):
        for h in range(2):
            a(f"ds_read_b64 v[{REC+4*k+2*h}:{REC+4*k+2*h+1}], v{vRb} offset:{16384 * k + 4096 * h}")
    a("s_waitcnt lgkmcnt(4)")
    if p["mpos"] == 6:
        load_m()
    if p["mpos"] == 7:
        a(f"s_cmp_lt_u32 s{sWave}, {p['msplit']}")
        a("s_cbranch_scc1 KB_M_DONE")
        load_m()
        a("KB_M_DONE:")
    issue(0, track=False)
    if p["mpos"] == 4:
        load_m()
    younger = 1 + (3 if p["mpos"] in (1, 2, 4, 6, 7) and p["mpos"] >= p["r1pos"] else 0)
    a(f"s_waitcnt vmcnt({younger})")
    hist(1, False)
    a(f"""
    s_waitcnt lgkmcnt(0)
    s_barrier
    s_cmp_lg_u32 s{sWave}, 0
    s_cbranch_scc1 KB_SCANNED1
    """)
    scan(1, 68, 80)
    a("KB_SCANNED1:")
    issue(1, track=False)
    if p["mpos"] == 5:
        load_m()
    convert_all(1, 84)
    if p["early0"]:
        issue(2, track=False)
        process(0, wait=2)
    a(f"""
    v_mov_b32 v80, 0
    s_mov_b32 s{sT2}, 0x200000
    KB_WAIT_SCAN1:
    ds_read_b32 v81, v80 offset:{MISC + 20}
    s_sub_u32 s{sT2}, s{sT2}, 1
    s_cbranch_scc1 K_END
    s_waitcnt lgkmcnt(0)
    v_readfirstlane_b32 s{sN1}, v81
    s_bitcmp1_b32 s{sN1}, 31
    s_cbranch_scc0 KB_WAIT_SCAN1
    s_bitset0_b32 s{sN1}, 31
    """)
    scatter(1, 80)
    a(f"""
    v_mov_b32 v81, 1
    s_mov_b64 exec, 1
    ds_add_u32 v80, v81 offset:{MISC + 32}
    s_mov_b64 exec, -1
    """)
    if p["early0"]:
        issue(3, track=False)
        ts.mark("loop")
        a("s_setprio 2")
        a("s_branch KB_LOOP1")
    else:
        for u in range(2, PRE):
            issue(u, track=False)
        a("s_branch KB_LOOP")
    a(f"""
    KB_UNSORTED:
    """)
    if p["mpos"] >= 2:
        load_m()
    a(f"""
    s_waitcnt vmcnt(0)
    v_mov_b32 v60, v{vSt[0]}
    v_mov_b32 v61, v{vSt[1]}
    v_mov_b32 v62, v{vLn[0]}
    v_mov_b32 v63, v{vLn[1]}
    s_mov_b32 s{sPhase}, 0
    s_mov_b32 s{sSeg}, -1
    s_mov_b32 s{sLen}, 0
    s_mov_b32 s{sBase}, 0
    KB_NEXT_PASS:
    s_cmp_lt_u32 s{sBase}, s{sLen}
    s_cbranch_scc1 KB_PASS
    s_add_u32 s{sSeg}, s{sSeg}, 1
    s_cmp_ge_u32 s{sSeg}, 32
    s_cbranch_scc1 KB_DONE
    s_bfe_u32 s{sT0}, s{sSeg}, 0x20002
    s_lshl_b32 s{sT0}, s{sT0}, 4
    s_and_b32 s{sT1}, s{sSeg}, 3
    s_or_b32 s{sT0}, s{sT0}, s{sT1}
    s_mov_b32 s{sBase}, 0
    v_readlane_b32 s{sStart}, v60, s{sT0}
    v_readlane_b32 s{sLen}, v62, s{sT0}
    s_cmp_lt_u32 s{sSeg}, 16
    s_cbranch_scc1 KB_NEXT_PASS
    v_readlane_b32 s{sStart}, v61, s{sT0}
    v_readlane_b32 s{sLen}, v63, s{sT0}
    s_nop 0
    s_branch KB_NEXT_PASS
    KB_PASS:
    s_sub_u32 s{sSteps}, s{sLen}, s{sBase}
    s_add_u32 s{sT0}, s{sStart}, s{sBase}
    s_add_u32 s{sBase}, s{sBase}, 256
    """)
    for k in range(4):
        r = REC + 4 * k
        a(f"""
        v_add_u32 v{r}, {64 * k}, v1
        v_cmp_gt_u32 vcc, s{sSteps}, v{r}
        v_add_u32 v{r}, s{sT0}, v{r}
        v_cndmask_b32 v{r}, -1, v{r}, vcc
        """)
        load(r)
    a(f"""
    s_add_u32 s{sSteps}, s{sSteps}, 63
    s_lshr_b32 s{sSteps}, s{sSteps}, 6
    s_min_u32 s{sSteps}, s{sSteps}, 4
    s_lshl_b32 s{sSteps}, s{sSteps}, 2
    s_waitcnt vmcnt(0)
    """)
    for k in range(4):
        convert(REC + 4 * k)
    a("s_nop 1")
    for u in range(PRE):
        issue(u)
    a("KB_LOOP:")
    ts.mark("loop")
    for t in range(3 if p["mpos"] == 3 else 0):
        a(f"buffer_load_dwordx2 v[{vM+2*t}:{vM+2*t+1}], v{vEo[t]}, s[{rM}:{rM+3}], 0 offen")
        seq.append(("M", t))

    def stage(i):
        a(f"s_cmp_lg_u32 s{sPhase}, 2")
        a(f"s_cbranch_scc1 KB_STAGED{i}")
        if i == 0:
            a(f"""
            s_lshl_b32 s{sT0}, s{sN0}, 12
            s_add_u32 s{sSteps}, s{sN0}, s{sN1}
            v_subrev_u32 v80, s{sT0}, v{vRb}
            v_subrev_u32 v82, s{sN0}, v{vPar}
            v_add_u32 v81, 0x10000, v80
            v_mov_b32 v83, 0
            s_mov_b32 s{sT1}, 0x200000
            KB_WAIT_SORTED:
            ds_read_b32 v84, v83 offset:{MISC + 32}
            s_sub_u32 s{sT1}, s{sT1}, 1
            s_cbranch_scc1 K_END
            s_waitcnt lgkmcnt(0)
            v_readfirstlane_b32 s{sT0}, v84
            s_cmp_lt_u32 s{sT0}, 16
            s_cbranch_scc1 KB_WAIT_SORTED
            """)
            for k in range(NMIN // 4, 6):
                for h in range(2):
                    u0 = 4 * k + h
                    base, off = (80, 16384 * k + 4096 * h) if k < 4 else (81, 16384 * (k - 4) + 4096 * h)
                    a(f"v_cmpx_le_i32 vcc, {-u0}, v82")
                    a(f"ds_read_b64 v[{REC+4*k+2*h}:{REC+4*k+2*h+1}], v{base} offset:{off}")
                    a(f"s_mov_b64 exec, -1")
            a("s_nop 2")
        else:
            a("s_waitcnt lgkmcnt(0)")
        a(f"KB_STAGED{i}:")

    def sprefetch(region):
        if region * 262144 >= E * 32:
            return
        st = 512 // p["spfn"]
        a(f"""
        s_add_u32 s{sIn}, s{sOutI}, {region * 262144}
        s_min_u32 s{sIn}, s{sIn}, {E * 32 - 512}
        s_add_u32 s{sIn}, s{sIn}, s{sM}
        s_addc_u32 s{sIn+1}, s{sM+1}, 0
        """)
        for i in range(p["spfn"]):
            a(f"s_load_dword s{rIn + i}, s[{sIn}:{sIn+1}], {st * i}")

    prio = {int(x.split(":")[0]): int(x.split(":")[1]) for x in p["prio"].split(",") if x}
    stages = [int(x) for x in p["stages"].split(",")]
    assert stages[1] + 1 + DEPTH <= NMIN
    for u in range(NU):
        if u == 1:
            a("KB_LOOP1:")
        if u in prio:
            a(f"s_setprio {prio[u]}")
        if PRE <= u + DEPTH < NU:
            issue(u + DEPTH)
        if p["spf"]:
            if u == 0:
                a(f"s_lshr_b32 s{sOutI}, s2, 3")
                a(f"s_lshl_b32 s{sOutI}, s{sOutI}, 4")
                a(f"s_add_u32 s{sOutI}, s{sOutI}, s{sWave}")
                a(f"s_lshl_b32 s{sOutI}, s{sOutI}, 9")
            sprefetch(u + DEPTH + p["spf"])
        process(u)
        ts.mark(f"s{u}")
        for i, at in enumerate(stages):
            if at == u:
                stage(i)
        if u < NU - 1:
            a(f"s_cmp_le_u32 s{sSteps}, {u+1}")
            a(f"s_cbranch_scc1 KB_LOOPED")
    a("KB_LOOPED:")
    a(f"""
    s_waitcnt vmcnt(0)
    s_cmp_lg_u32 s{sPhase}, 2
    s_cbranch_scc1 KB_NEXT_PASS
    """)
    a("KB_DONE:")
    vA, vMf, vRf, vF, vB = 8, 32, 44, 68, 80
    a(f"""
    v_and_b32 v64, 15, v1
    v_lshrrev_b32 v65, 4, v1
    v_bfe_u32 v66, v1, 2, 1
    v_bfe_u32 v67, v1, 1, 1
    v_lshlrev_b32 v64, 7, v64
    s_lshl_b32 s{sT0}, s{sWave}, 11
    v_lshl_add_u32 v64, v65, 5, v64
    v_lshlrev_b32 v66, 6, v66
    v_lshl_add_u32 v64, v67, 4, v64
    v_xor_b32 v64, v64, v66
    v_add_u32 v64, s{sT0}, v64
    s_mov_b32 s{sSwap}, 0xcccccccc
    s_mov_b32 s{sSwap+1}, 0xcccccccc
    v_add_u32 v65, 0x10000, v64
    v_xor_b32 v66, 16, v64
    v_xor_b32 v67, 16, v65
    """)
    for t in range(3):
        for src, dst_ in ((vM, vMf), (vR, vRf)):
            a(f"v_lshlrev_b32 v{dst_+4*t}, 16, v{src+2*t}")
            a(f"v_and_b32 v{dst_+4*t+1}, v{vMask}, v{src+2*t}")
            a(f"v_lshlrev_b32 v{dst_+4*t+2}, 16, v{src+2*t+1}")
            a(f"v_and_b32 v{dst_+4*t+3}, v{vMask}, v{src+2*t+1}")
    a("s_waitcnt lgkmcnt(0)")
    a("s_barrier")
    ts.mark("fin")
    op = (" " + p["out_pol"]) if p["out_pol"] else ""

    def tiles(ts_):
        for t in ts_:
            base, off = (64, 32768 * t + ACC) if t < 2 else (65, ACC)
            a(f"ds_read_b128 v[{vA+8*t}:{vA+8*t+3}], v{base} offset:{off}")
            a(f"ds_read_b128 v[{vA+8*t+4}:{vA+8*t+7}], v{base+2} offset:{off}")
        for n, t in enumerate(ts_):
            f, b = vF + 4 * t, vB + 2 * t
            a(f"s_waitcnt lgkmcnt({2 * (len(ts_) - 1 - n)})")
            for i in range(4):
                a(f"v_cvt_f32_f64 v{f+i}, v[{vA+8*t+2*i}:{vA+8*t+2*i+1}]")
            a(f"v_cvt_pk_bf16_f32 v{f}, v{f}, v{f+1}")
            a(f"v_cvt_pk_bf16_f32 v{f+2}, v{f+2}, v{f+3}")
            a(f"v_cndmask_b32 v{b}, v{f}, v{f+2}, s[{sSwap}:{sSwap+1}]")
            a(f"v_cndmask_b32 v{b+1}, v{f+2}, v{f}, s[{sSwap}:{sSwap+1}]")
            a(f"v_mfma_f32_16x16x16_bf16 v[{vA+8*t}:{vA+8*t+3}], v[{vWd}:{vWd+1}], v[{b}:{b+1}], 0")
        for t in ts_:
            f, b = vF + 4 * t, vB + 2 * t
            for i in range(4):
                a(f"v_mul_f32 v{f+i}, v{vA+8*t+i}, v{vS+4*t+i}")
            a(f"v_cvt_pk_bf16_f32 v{b}, v{f}, v{f+1}")
            a(f"v_cvt_pk_bf16_f32 v{b+1}, v{f+2}, v{f+3}")
            a(f"v_mfma_f32_16x16x16_bf16 v[{vA+8*t+4}:{vA+8*t+7}], v[{vWu}:{vWu+1}], v[{b}:{b+1}], 0")
        for t in ts_:
            b = vB + 2 * t
            for i in range(4):
                a(f"v_fmac_f32 v{vMf+4*t+i}, v{vA+8*t+4+i}, v{vRf+4*t+i}")
            a(f"v_cvt_pk_bf16_f32 v{b}, v{vMf+4*t}, v{vMf+4*t+1}")
            a(f"v_cvt_pk_bf16_f32 v{b+1}, v{vMf+4*t+2}, v{vMf+4*t+3}")
            a(f"buffer_store_dwordx2 v[{b}:{b+1}], v{vEo[t]}, s[{rOut}:{rOut+3}], 0 offen{op}")

    a(f"s_cmp_ge_u32 s{sWave}, 8")
    a("s_cbranch_scc1 KB_TWO_TILES")
    tiles([0, 1, 2])
    a("s_branch KB_STORED")
    a("KB_TWO_TILES:")
    tiles([0, 1])
    a("KB_STORED:")


def build(p):
    ref = open("standalone__molecular_angular_gemnet__graph.s.ref").read().split("\n")
    out = [l for l in ref if l.startswith(";") and "@launch" not in l and "Override launch" not in l and "grid=ceil" not in l]
    if p["diag"]:
        out.append(f"; @launch kernel={NAME} grid=(256,1,1) block=(1024,1,1) lds={LDS}")
        out.append("; @launch kernel=diag_kernel grid=(1,1,1) block=(256,1,1) lds=1024")
    else:
        out.append(f"; @launch grid=(256,1,1) block=(1024,1,1) lds={LDS}")
    out.append('.amdgcn_target "amdgcn-amd-amdhsa--gfx950"')
    out.append(".text")
    a = Asm()
    ts = Stamps(a, p)
    a.raw(f".globl {NAME}\n.p2align 8\n.type {NAME},@function\n{NAME}:")
    phase_a(a, p, ts)
    phase_b(a, p, ts)
    if p["ts"]:
        a("s_waitcnt vmcnt(0)")
        ts.mark("end")
        ts.flush()
    a("K_END:")
    a("s_endpgm")
    extra = ""
    if p["diag"]:
        from diag import diag_kernel
        f = p["diag"].split(",")
        a.raw(diag_kernel((int(f[0]), int(f[1]), f[2], int(f[3]), int(f[4]), f[5]), p["mult"]))
        extra += ".p2align 6\n" + kd("diag_kernel", 32, 32)
    return "\n".join(out) + "\n" + a.text() + '.section .rodata,"a"\n.p2align 6\n' + kd(NAME, 128, 102 if p['ts'] else 96) + extra


if __name__ == "__main__":
    ap = argparse.ArgumentParser()
    ap.add_argument("-o", default="standalone__molecular_angular_gemnet__graph.s")
    ap.add_argument("kv", nargs="*")
    args = ap.parse_args()
    p = dict(P)
    for kv in args.kv:
        k, v = kv.split("=")
        p[k] = v.replace("+", " ") if not isinstance(P[k], int) else int(v, 0)
    open(args.o, "w").write(build(p))
```

```python
import argparse
from emit import Asm
from gen1 import kd, scan_add

NAME = "standalone__molecular_angular_gemnet__graph_kernel"
E, T = 160000, 2560000
NB, BS = 256, 625
NCH, CH = 256, 10000
CHG = 5280
CH_STRIDE = CHG * 12
OFFROW = 2048
HALF = 626 * 128 - 1

P = dict(ws_rec=0, ld_pol="nt", depth=2, ts=0, no_ds=0, no_valu=0, prio="0:2,7:1,14:0",
         diag="", mult=10, guard=16, force_fb=0, sleep=2, out_pol="", tsel="start,histA,scanA,scatA,pub,ready,end", tswave=0, stages='3,4', scanwave=0, warm=0, wstride=128, mearly=0, mpos=2, r1pos=1, pf=0, pfpos=1, pfrows=80128, early0=0, codepf=0, msplit=8, pre=3, nmin=8, l2pf=0, l2pos=2, l2wait=1, spf=0, spfn=4, poll_pol='sc1', pub_pol='sc1', rec_pol='sc1', anglate=3, pk=0, xmap=1, touch=0, angw=13)

CNT1 = 3072 - 626 * 4
MISC = 6144
ACC = 6400
SORT = ACC + 81920
SORTCAP = 6144
STAGE = SORT
ACNT = STAGE + 65536
WL = ACNT + 2080
DL = WL + 1552
LDS = DL + 1280

sM, sIn, sOutI, sDist, sAng, sCen, sFreq, sWr = 4, 6, 8, 10, 12, 14, 16, 18
sWs, sWd, sWu, sOut, sDbg, sWsp = 20, 22, 24, 26, 28, 30
rIn, rOutI, rAng, rRecW, rOff, rM, rDist, rOut, rRecR = 32, 36, 40, 44, 48, 52, 56, 60, 64
sAct, sSwap = 68, 70
sWave, sBkt, sF, sT0, sT1, sT2, sT3 = 3, 72, 73, 74, 75, 76, 77
sTot0, sTot1, sBase, sRem0, sRem1, sN0, sN1, sSteps, sPhase, sMk = 78, 79, 80, 81, 82, 83, 84, 85, 86, 87
sTS = 88

vMask, vM, vWd, vWu, vS, vR = 96, 98, 104, 106, 108, 120
vEnt = 72
vEo = (97, 126, 127)
vDist = 108


def srd(a, d, lo, nbytes, add=None, stride=0):
    if add is None:
        a(f"s_mov_b32 s{d}, s{lo}")
        a(f"s_and_b32 s{d+1}, s{lo+1}, 0xffff")
    else:
        a(f"s_add_u32 s{d}, s{lo}, {add}")
        a(f"s_addc_u32 s{d+1}, s{lo+1}, 0")
        a(f"s_and_b32 s{d+1}, s{d+1}, 0xffff")
    if stride:
        a(f"s_or_b32 s{d+1}, s{d+1}, {stride << 16}")
    a(f"s_mov_b32 s{d+2}, {nbytes}")
    a(f"s_mov_b32 s{d+3}, 0x20000")


class Stamps:
    def __init__(self, a, p):
        self.a, self.on, self.n = a, p["ts"], 0
        self.sel = p["tsel"].split(",")
        self.wave = p["tswave"]

    def mark(self, name):
        if self.on and name in self.sel:
            op = "s_memtime" if self.on == 2 else "s_memrealtime"
            k = self.sel.index(name)
            self.a(f"{op} s[{sTS+2*k}:{sTS+2*k+1}]")
        if self.on and name + "_c" in self.sel:
            k = self.sel.index(name + "_c")
            self.a(f"s_memtime s[{sTS+2*k}:{sTS+2*k+1}]")

    def flush(self):
        if not self.on:
            return
        a = self.a
        a(f"""
        s_waitcnt lgkmcnt(0)
        s_lshl_b32 s4, s2, 4
        s_add_u32 s4, s4, s{sWave}
        s_lshl_b32 s4, s4, 6
        s_add_u32 s5, s4, {(200 << 20) + 65536}
        s_add_u32 s8, s{sWsp}, s5
        s_addc_u32 s9, s{sWsp+1}, 0
        s_lshl_b32 s4, s2, 6
        s_add_u32 s4, s4, {200 << 20}
        s_add_u32 s6, s{sWsp}, s4
        s_addc_u32 s7, s{sWsp+1}, 0
        v_lshlrev_b32 v2, 3, v1
        v_mov_b32 v4, 0
        v_mov_b32 v5, 0
        """)
        for k in range(len(self.sel)):
            a(f"v_writelane_b32 v4, s{sTS+2*k}, {k}")
        a(f"""
        s_mov_b64 exec, 0xff
        global_store_dwordx2 v2, v[4:5], s[8:9]
        s_cmp_lg_u32 s{sWave}, {self.wave}
        s_cbranch_scc1 TS_DONE
        global_store_dwordx2 v2, v[4:5], s[6:7]
        TS_DONE:
        """)


def zero_quad(a, r):
    for i in range(4):
        a(f"v_mov_b32 v{r+i}, 0")


def warm(a, p):
    n = p['warm']
    if not n:
        return
    a(f"s_mul_i32 s{sT2}, s2, {16 * n * p['wstride']}")
    a(f"s_mul_i32 s{sT3}, s{sWave}, {n * p['wstride']}")
    a(f"s_add_u32 s{sT2}, s{sT2}, s{sT3}")
    a(f"s_min_u32 s{sT2}, s{sT2}, {E * 32 - n * p['wstride']}")
    a(f"s_add_u32 s{sIn}, s{sM}, s{sT2}")
    a(f"s_addc_u32 s{sIn+1}, s{sM+1}, 0")
    for i in range(n):
        a(f"s_load_dword s{rIn + i % 12}, s[{sIn}:{sIn+1}], {p['wstride'] * i}")


def rbf_block(a, b, after_reads):
    a.comment("radial basis (same bf16 rounding steps as the reference), S = rbf@w_sbf, R = rbf@w_rbf")
    c0, c1, aS, aR, T0 = b, b + 1, b + 2, b + 4, b + 8
    a(f"""
    v_lshlrev_b32 v{T0}, 3, v95
    v_lshrrev_b32 v{T0+1}, 4, v95
    v_and_b32 v{T0+2}, 63, v{T0}
    v_add_u32 v{T0}, {WL}, v{T0}
    v_lshl_add_u32 v{T0+2}, v{T0+1}, 6, v{T0+2}
    v_lshlrev_b32 v{T0+1}, 2, v{T0+1}
    v_add_u32 v{T0+2}, {WL + 1024}, v{T0+2}
    v_add_u32 v{T0+1}, {WL + 1536}, v{T0+1}
    ds_read_b64_tr_b16 v[{vWd}:{vWd+1}], v{T0}
    ds_read_b64_tr_b16 v[{vWu}:{vWu+1}], v{T0} offset:512
    ds_read_b64_tr_b16 v[{aS}:{aS+1}], v{T0+2}
    ds_read_b64_tr_b16 v[{aR}:{aR+1}], v{T0+2} offset:256
    ds_read_b32 v{c1}, v{T0+1}
    s_mov_b32 s{sT0}, 0xc1200000
    s_mov_b32 s{sT1}, 0x3fb8aa3b
    s_waitcnt lgkmcnt(0)
    v_lshlrev_b32 v{c0}, 16, v{c1}
    v_and_b32 v{c1}, v{vMask}, v{c1}
    """)
    after_reads()
    for t in range(3):
        a(f"v_mov_b32 v{T0+1+4*t}, 0")

    def each(fn):
        for t in range(3):
            fn(t, T0 + 2 + 4 * t, T0 + 3 + 4 * t)

    def rnd():
        each(lambda t, x0, x1: a(f"v_cvt_pk_bf16_f32 v{x0}, v{x0}, v{x1}"))
        each(lambda t, x0, x1: a(f"v_and_b32 v{x1}, v{vMask}, v{x0}"))
        each(lambda t, x0, x1: a(f"v_lshlrev_b32 v{x0}, 16, v{x0}"))

    each(lambda t, x0, x1: a(f"v_lshlrev_b32 v{vDist+t}, 16, v{vDist+t}"))
    each(lambda t, x0, x1: a(f"v_sub_f32 v{x0}, v{vDist+t}, v{c0}\nv_sub_f32 v{x1}, v{vDist+t}, v{c1}"))
    rnd()
    each(lambda t, x0, x1: a(f"v_mul_f32 v{x0}, v{x0}, v{x0}\nv_mul_f32 v{x1}, v{x1}, v{x1}"))
    rnd()
    each(lambda t, x0, x1: a(f"v_mul_f32 v{x0}, s{sT0}, v{x0}\nv_mul_f32 v{x1}, s{sT0}, v{x1}"))
    rnd()
    each(lambda t, x0, x1: a(f"v_mul_f32 v{x0}, s{sT1}, v{x0}\nv_mul_f32 v{x1}, s{sT1}, v{x1}"))
    each(lambda t, x0, x1: a(f"v_exp_f32 v{x0}, v{x0}\nv_exp_f32 v{x1}, v{x1}"))
    each(lambda t, x0, x1: a(f"v_cvt_pk_bf16_f32 v{T0+4*t}, v{x0}, v{x1}"))
    for t in range(3):
        a(f"v_mfma_f32_16x16x16_bf16 v[{vS+4*t}:{vS+4*t+3}], v[{aS}:{aS+1}], v[{T0+4*t}:{T0+1+4*t}], 0")
    a(f"v_mfma_f32_16x16x16_bf16 v[{T0+12}:{T0+15}], v[{aR}:{aR+1}], v[{T0+8}:{T0+9}], 0")
    a(f"s_nop 3")
    a(f"v_mfma_f32_16x16x16_bf16 v[{T0+8}:{T0+11}], v[{aR}:{aR+1}], v[{T0+4}:{T0+5}], 0")
    a(f"s_nop 3")
    a(f"v_mfma_f32_16x16x16_bf16 v[{T0+4}:{T0+7}], v[{aR}:{aR+1}], v[{T0}:{T0+1}], 0")
    for t in (2, 1, 0):
        a(f"v_cvt_pk_bf16_f32 v{vR+2*t}, v{T0+4+4*t}, v{T0+5+4*t}")
        a(f"v_cvt_pk_bf16_f32 v{vR+2*t+1}, v{T0+6+4*t}, v{T0+7+4*t}")


def phase_a(a, p, ts):
    ld = (" " + p["ld_pol"]) if p["ld_pol"] else ""
    vO, vI, vAn, vKey, vRank, vW, vCos = 4, 14, 24, 30, 40, 50, 60
    vZ, vT16 = 84, 94
    a(f"""
    s_cmp_ge_u32 s2, {NCH}
    s_cbranch_scc1 K_END
    s_load_dwordx16 s[4:19], s[0:1], 0
    s_load_dwordx8 s[20:27], s[0:1], 64
    s_load_dwordx4 s[28:31], s[0:1], 96
    """)
    ts.mark("entry")
    a(f"""
    v_lshlrev_b32 v1, 3, v0
    v_lshlrev_b32 v2, 2, v0
    v_lshlrev_b32 v{vT16}, 4, v0
    v_lshrrev_b32 v70, 6, v0
    v_and_b32 v95, 63, v0
    s_mul_i32 s{rM}, s2, {CH * 4}
    s_mul_i32 s{rOut}, s2, {CH * 2}
    v_cmp_gt_u32 vcc, 1000, v0
    v_readfirstlane_b32 s{sWave}, v70
    """)
    so4 = [rM, rM + 1, rM + 2, rM + 3, rDist]
    so2 = [rOut, rOut + 1, rOut + 2, rOut + 3, rDist + 1]
    for j in range(1, 5):
        a(f"s_add_u32 s{so4[j]}, s{rM}, {8000*j}")
        a(f"s_add_u32 s{so2[j]}, s{rOut}, {4000*j}")
    a(f"s_mov_b64 s[{sAct}:{sAct+1}], vcc")
    zero_quad(a, vZ)
    a(f"""
    v_add_u32 v71, {ACNT}, v{vT16}
    v_cmp_gt_u32 vcc, {(WL - ACNT) // 16}, v0
    v_mov_b32 v3, 6
    v_mov_b32 v29, {ACNT}
    v_mov_b32 v65, {ACNT + 1024}
    s_mov_b64 exec, vcc
    ds_write_b128 v71, v[{vZ}:{vZ+3}]
    s_mov_b64 exec, -1
    s_waitcnt lgkmcnt(0)
    s_barrier
    """)
    srd(a, rOutI, sOutI, T * 4)
    srd(a, rIn, sIn, T * 4)
    srd(a, rAng, sAng, T * 2)
    a(f"s_load_dword s{sF}, s[{sFreq}:{sFreq+1}], 0")
    srd(a, rOff, sWsp, NCH * OFFROW, add=str(p["ws_rec"] + NCH * CH_STRIDE))
    a(f"""
    s_mul_i32 s{sTot1}, s2, {OFFROW}
    s_cmp_lg_u32 s{sWave}, 0
    s_cbranch_scc1 KA_CLEARED
    buffer_store_dwordx4 v[{vZ}:{vZ+3}], v{vT16}, s[{rOff}:{rOff+3}], s{sTot1} offen sc1
    buffer_store_dwordx4 v[{vZ}:{vZ+3}], v{vT16}, s[{rOff}:{rOff+3}], s{sTot1} offen offset:1024 sc1
    KA_CLEARED:
    """)
    if p["touch"]:
        a.comment("wave 3 touches the unused tail of every chunk slot so the address translations are warm")
        a(f"""
        s_cmp_lg_u32 s{sWave}, 3
        s_cbranch_scc1 KA_NO_TOUCH
        s_add_u32 s{sT0}, s{sWsp}, {p['ws_rec'] + CH_STRIDE - 128}
        s_addc_u32 s{sT1}, s{sWsp+1}, 0
        v_mul_u32_u24 v70, {CH_STRIDE}, v95
        """)
        for i in range(4):
            a(f"global_load_dword v{76+i}, v70, s[{sT0}:{sT0+1}]")
            if i < 3:
                a(f"v_add_u32 v70, {64 * CH_STRIDE}, v70")
        a("KA_NO_TOUCH:")
    if p["codepf"]:
        a.comment("wave 4 reads one dword of every line of the code below, so later instruction fetches find it in L2")
        a(f"""
        s_cmp_lg_u32 s{sWave}, 4
        s_cbranch_scc1 KA_NO_CODE
        s_getpc_b64 s[{sT0}:{sT0+1}]
        v_lshlrev_b32 v70, 7, v95
        """)
        for i in range(p["codepf"]):
            a(f"global_load_dword v{76+i}, v70, s[{sT0}:{sT0+1}]")
            a(f"v_add_u32 v70, 8192, v70")
        a("KA_NO_CODE:")
    a(f"""
    s_and_b32 s{sBkt}, s2, 7
    s_lshl_b32 s{sBkt}, s{sBkt}, 5
    s_lshr_b32 s{sT0}, s2, 3
    s_or_b32 s{sBkt}, s{sBkt}, s{sT0}
    s_cmp_lg_u32 s{sWave}, 2
    s_cbranch_scc1 KA_NO_DIST
    """)
    srd(a, rRecR, sDist, E * 2)
    a(f"""
    s_mul_i32 s{sT0}, s{sBkt}, {BS * 2}
    s_and_b32 s{sT0}, s{sT0}, -4
    v_lshl_add_u32 v70, v95, 4, s{sT0}
    buffer_load_dwordx4 v[76:79], v70, s[{rRecR}:{rRecR+3}], 0 offen
    s_mov_b64 exec, 0xffff
    buffer_load_dwordx4 v[80:83], v70, s[{rRecR}:{rRecR+3}], 0 offen offset:1024
    s_mov_b64 exec, -1
    KA_NO_DIST:
    """)
    a(f"""
    s_cmp_lg_u32 s{sWave}, 1
    s_cbranch_scc1 KA_NO_WEIGHTS
    v_lshlrev_b32 v70, 4, v95
    v_and_b32 v71, 0x1ff, v70
    s_mov_b32 exec_hi, 0
    global_load_dwordx4 v[76:79], v71, s[{sWd}:{sWd+1}]
    s_mov_b32 exec_lo, 0
    s_mov_b32 exec_hi, -1
    global_load_dwordx4 v[76:79], v71, s[{sWu}:{sWu+1}]
    v_and_b32 v71, 0xff, v70
    s_mov_b32 exec_hi, 1
    global_load_dwordx4 v[80:83], v71, s[{sCen}:{sCen+1}]
    s_mov_b64 exec, -1
    v_and_b32 v71, 0xff, v70
    s_mov_b64 exec, 0xffff
    global_load_dwordx4 v[80:83], v71, s[{sWs}:{sWs+1}]
    s_mov_b32 exec_lo, 0xffff0000
    global_load_dwordx4 v[80:83], v71, s[{sWr}:{sWr+1}]
    s_mov_b64 exec, -1
    KA_NO_WEIGHTS:
    """)
    a(f"s_mov_b64 exec, s[{sAct}:{sAct+1}]")
    if p["anglate"] >= 2:
        a("s_setprio 3")
    for j in range(5):
        a(f"buffer_load_dwordx2 v[{vO+2*j}:{vO+2*j+1}], v1, s[{rOutI}:{rOutI+3}], s{so4[j]} offen{ld}")
        a(f"buffer_load_dwordx2 v[{vI+2*j}:{vI+2*j+1}], v1, s[{rIn}:{rIn+3}], s{so4[j]} offen{ld}")
    def load_angles():
        for j in range(5):
            a(f"buffer_load_dword v{vAn+j}, v2, s[{rAng}:{rAng+3}], s{so2[j]} offen{ld}")

    if p["anglate"] == 0:
        load_angles()
    if p["anglate"] == 2:
        a("s_setprio 0")
        load_angles()
    if p["anglate"] == 3:
        a("s_setprio 0")
        a(f"s_cmp_lt_u32 s{sWave}, {p['angw']}")
        a("s_cbranch_scc1 KA_ANG_LATER")
        load_angles()
        a("KA_ANG_LATER:")
    a("s_mov_b64 exec, -1")
    ts.mark("start")
    a(f"""
    v_add_u32 v70, {STAGE}, v{vT16}
    v_add_u32 v71, 0x10000, v{vT16}
    v_cmp_gt_u32 vcc, {(SORT - 81920) // 16}, v0
    ds_write_b128 v70, v[{vZ}:{vZ+3}]
    ds_write_b128 v70, v[{vZ}:{vZ+3}] offset:16384
    ds_write_b128 v70, v[{vZ}:{vZ+3}] offset:32768
    ds_write_b128 v70, v[{vZ}:{vZ+3}] offset:49152
    ds_write_b128 v{vT16}, v[{vZ}:{vZ+3}]
    ds_write_b128 v{vT16}, v[{vZ}:{vZ+3}] offset:16384
    ds_write_b128 v{vT16}, v[{vZ}:{vZ+3}] offset:32768
    ds_write_b128 v{vT16}, v[{vZ}:{vZ+3}] offset:49152
    ds_write_b128 v71, v[{vZ}:{vZ+3}]
    s_mov_b64 exec, vcc
    ds_write_b128 v71, v[{vZ}:{vZ+3}] offset:16384
    s_mov_b64 exec, -1
    """)

    def epilogue_operands(b):
        a.comment("output addresses: lane = (n = lane&15 edge in tile, g = lane>>4 feature group); distances of the three tiles")
        a(f"""
        s_mul_i32 s{sT0}, s{sBkt}, {BS}
        s_lshl_b32 s{sT1}, s{sWave}, 4
        v_and_b32 v{b+0}, 15, v95
        v_lshrrev_b32 v{b+1}, 4, v95
        v_add_u32 v{b+2}, s{sT1}, v{b+0}
        v_lshlrev_b32 v{b+3}, 3, v{b+1}
        s_lshl_b32 s{sT2}, s{sBkt}, 1
        s_and_b32 s{sT2}, s{sT2}, 2
        s_add_u32 s{sT2}, s{sT2}, {DL}
        v_mov_b32 v{b+6}, 0x80000000
        v_lshl_add_u32 v{b+7}, v{b+2}, 1, s{sT2}
        v_mov_b32 v{vMask}, 0xffff0000
        """)
        for t in range(3):
            a(f"ds_read_u16 v{vDist+t}, v{b+7} offset:{512 * t}")
        srd(a, rM, sM, E * 32)
        srd(a, rOut, sOut, E * 32)
        for t in range(3):
            a(f"""
            v_add_u32 v{b+4}, {256 * t}, v{b+2}
            v_cmp_gt_u32 vcc, {BS}, v{b+4}
            v_add_u32 v{b+4}, s{sT0}, v{b+4}
            v_lshl_add_u32 v{b+5}, v{b+4}, 5, v{b+3}
            v_cndmask_b32 v{vEo[t]}, v{b+6}, v{b+5}, vcc
            """)

    NPRE = 19
    sChO, sRow, sChG, sMag, sHalf, sNeg, sHi, sK = sTot0, sTot1, sBase, sRem0, sRem1, sN0, sN1, sSteps
    a(f"""
    s_mul_i32 s{sChO}, s2, {CH_STRIDE}
    s_add_u32 s{sChO}, s{sChO}, {p['ws_rec']}
    s_mov_b32 s{sMag}, 6871948
    s_mov_b32 s{sHalf}, {HALF}
    s_mov_b32 s{sNeg}, {-BS}
    s_mov_b32 s{sHi}, 0xffff0000
    s_mov_b32 s{sK}, 2048
    """)
    srd(a, rRecW, sWsp, 0, add=f"s{sChO}")
    srd(a, rRecR, sWsp, NCH * CHG, add=str(p["ws_rec"]), stride=12)
    a(f"s_mov_b64 exec, s[{sAct}:{sAct+1}]")
    for j in range(5):
        o0, o1, i0, i1 = vO + 2 * j, vO + 2 * j + 1, vI + 2 * j, vI + 2 * j + 1
        k0, k1_, r0, r1 = vKey + 2 * j, vKey + 1 + 2 * j, vRank + 2 * j, vRank + 1 + 2 * j
        q0, q1, l0, l1 = 72, 73, 74, 75
        if p["anglate"] == 3:
            a(f"""
            s_cmp_lt_u32 s{sWave}, {p['angw']}
            s_cbranch_scc0 KA_W{j}
            s_waitcnt vmcnt({8 - 2 * j})
            KA_W{j}:
            """)
        a(f"""
        s_waitcnt vmcnt({(0 if p['anglate'] == 1 else 5) + 8 - 2 * j})
        v_mul_hi_u32_u24 v{q0}, s{sMag}, v{o0}
        v_mul_hi_u32_u24 v{q1}, s{sMag}, v{o1}
        v_cmp_le_u32 vcc, s{sHalf}, v{i0}
        v_cmp_le_u32 s[{sSwap}:{sSwap+1}], s{sHalf}, v{i1}
        v_mad_i32_i24 v{l0}, v{q0}, s{sNeg}, v{o0}
        v_mad_i32_i24 v{l1}, v{q1}, s{sNeg}, v{o1}
        v_cndmask_b32 v{k0}, v29, v65, vcc
        v_cndmask_b32 v{k1_}, v29, v65, s[{sSwap}:{sSwap+1}]
        v_lshl_add_u32 v{k0}, v{q0}, 2, v{k0}
        v_lshl_add_u32 v{k1_}, v{q1}, 2, v{k1_}
        ds_add_rtn_u32 v{r0}, v{k0}, v3
        ds_add_rtn_u32 v{r1}, v{k1_}, v3
        v_bfe_u32 v{q0}, v{l0}, 2, 1
        v_bfe_u32 v{q1}, v{l1}, 2, 1
        v_lshl_add_u32 v{i0}, v{i0}, 10, v{l0}
        v_lshl_add_u32 v{i1}, v{i1}, 10, v{l1}
        v_or_b32 v{q0}, s{sK}, v{q0}
        v_or_b32 v{q1}, s{sK}, v{q1}
        v_lshl_add_u32 v{vW+2*j}, v{i0}, 1, v{q0}
        v_lshl_add_u32 v{vW+2*j+1}, v{i1}, 1, v{q1}
        """)
    if p["anglate"] == 3:
        a(f"s_cmp_lt_u32 s{sWave}, {p['angw']}")
        a("s_cbranch_scc0 KA_ANG_DONE")
        load_angles()
        a("KA_ANG_DONE:")
    a("s_mov_b64 exec, -1")
    a("s_waitcnt lgkmcnt(0)")
    a(f"s_lshl_b32 s{sF}, s{sF}, 16")
    ts.mark("histA")
    a("s_barrier")
    if p["anglate"] == 1:
        a(f"s_mov_b64 exec, s[{sAct}:{sAct+1}]")
        load_angles()
        a("s_mov_b64 exec, -1")

    def cos_block(tag):
        a.comment("cos(bf16(freq * angle)) rounded to bf16, two angles per register")
        a(f"s_cmp_eq_u32 s{sWave}, 0")
        a("s_cbranch_scc1 KA_ANGLES0")
        a(f"s_waitcnt vmcnt({3 * p['mearly']})")
        a("KA_ANGLES0:")
        a(f"s_waitcnt vmcnt({3 * p['mearly'] + 1})")
        xs = [(4 + 2 * j, 5 + 2 * j) for j in range(5)]
        for j, (x0, x1) in enumerate(xs):
            a(f"v_lshlrev_b32 v{x0}, 16, v{vAn+j}")
            a(f"v_and_b32 v{x1}, s{sHi}, v{vAn+j}")
        a(f"s_cmp_eq_u32 s{sF}, 0x3f800000")
        a(f"s_cbranch_scc1 K_UNIT_FREQ{tag}")
        for x0, x1 in xs:
            a(f"v_mul_f32 v{x0}, s{sF}, v{x0}")
            a(f"v_mul_f32 v{x1}, s{sF}, v{x1}")
        for x0, x1 in xs:
            a(f"v_cvt_pk_bf16_f32 v{x0}, v{x0}, v{x1}")
        for x0, x1 in xs:
            a(f"v_and_b32 v{x1}, s{sHi}, v{x0}")
            a(f"v_lshlrev_b32 v{x0}, 16, v{x0}")
        a(f"K_UNIT_FREQ{tag}:")
        for op in ("v_mul_f32 v{0}, 0.15915494, v{0}", "v_fract_f32 v{0}, v{0}", "v_cos_f32 v{0}, v{0}"):
            for x0, x1 in xs:
                a(op.format(x0))
                a(op.format(x1))
        for j, (x0, x1) in enumerate(xs):
            a(f"v_cvt_pk_bf16_f32 v{vCos+j}, v{x0}, v{x1}")

    a(f"""
    s_cmp_eq_u32 s{sWave}, 0
    s_cbranch_scc1 KA_SCAN
    s_cmp_gt_u32 s{sWave}, 2
    s_cbranch_scc1 KA_SCANNED
    s_mov_b32 s{sT0}, {DL}
    s_cmp_eq_u32 s{sWave}, 1
    s_cselect_b32 s{sT0}, {WL}, s{sT0}
    s_cselect_b32 s{sT1}, -1, 0xffff
    s_cselect_b32 s{sT2}, 1, 0
    v_lshl_add_u32 v70, v95, 4, s{sT0}
    ds_write_b128 v70, v[76:79]
    s_mov_b32 exec_lo, s{sT1}
    s_mov_b32 exec_hi, s{sT2}
    ds_write_b128 v70, v[80:83] offset:1024
    s_mov_b64 exec, -1
    s_waitcnt lgkmcnt(0)
    s_branch KA_SCANNED
    """)
    a("KA_SCAN:")
    a(f"""
    v_mov_b32 v70, 0
    v_mov_b32 v71, 1
    s_mov_b64 exec, 1
    global_atomic_add v70, v71, s[{sDbg}:{sDbg+1}]
    s_mov_b64 exec, -1
    v_lshlrev_b32 v70, 5, v95
    v_add_u32 v69, {ACNT}, v70
    ds_read_b128 v[72:75], v69
    ds_read_b128 v[76:79], v69 offset:16
    s_mov_b32 s{sT1}, 43691
    s_waitcnt lgkmcnt(0)
    """)
    for i in range(8):
        a(f"v_and_b32 v{80+i}, 2, v{72+i}")
    for i in range(8):
        a(f"v_mad_u32_u24 v{72+i}, v{80+i}, 3, v{72+i}")
    for i in range(1, 8):
        a(f"v_add_u32 v{72+i}, v{71+i}, v{72+i}")
    a("v_mov_b32 v71, v79")
    scan_add(a, 71)
    a(f"v_sub_u32 v80, v71, v79")
    a(f"v_readlane_b32 s{sT0}, v71, 63")
    for i in range(1, 8):
        a(f"v_add_u32 v{80+i}, v80, v{71+i}")
    for i in range(8):
        a(f"v_add_u32 v{72+i}, {STAGE}, v{80+i}")
    a(f"""
    v_mov_b32 v88, s{sT0}
    ds_write_b128 v69, v[72:75]
    ds_write_b128 v69, v[76:79] offset:16
    ds_write_b32 v29, v88 offset:2048
    s_waitcnt lgkmcnt(0)
    """)
    a("KA_SCANNED:")
    a("s_barrier")
    ts.mark("scanA")
    a("ds_read_b32 v68, v29 offset:2048")
    a(f"s_mov_b64 exec, s[{sAct}:{sAct+1}]")
    vB = 14
    for i in range(10):
        a(f"ds_read_b32 v{vB+i}, v{vKey+i}")
    a("s_mov_b64 exec, -1")
    a(f"s_cmp_lg_u32 s{sWave}, 0")
    a("s_cbranch_scc1 KA_HAVE_ENTRIES")
    a(f"v_mov_b32 v88, v71")
    for i in range(9):
        a(f"v_mul_u32_u24 v{80+i}, s{sT1}, v{80+i}")
    for i in range(9):
        a(f"v_lshrrev_b32 v{80+i}, 19, v{80+i}")
    reg = lambda i: vEnt + 2 * (i % 4) + i // 4
    for i in range(8):
        a(f"v_sub_u32 v{reg(i)}, v{81+i}, v{80+i}")
    for i in range(8):
        a(f"v_lshl_or_b32 v{reg(i)}, v{reg(i)}, 16, v{80+i}")
    for i in range(4):
        a(f"v_permlane32_swap_b32 v{reg(i)}, v{reg(i + 4)}")
    for i in range(4):
        a(f"v_or_b32 v{reg(i)}, 0x80000000, v{reg(i)}")
    a("KA_HAVE_ENTRIES:")
    if p["mearly"]:
        epilogue_operands(4)
        for t in range(3):
            a(f"buffer_load_dwordx2 v[{vM+2*t}:{vM+2*t+1}], v{vEo[t]}, s[{rM}:{rM+3}], 0 offen")
    a(f"s_mov_b64 exec, s[{sAct}:{sAct+1}]")
    for i in range(10):
        a(f"v_and_b32 v{vKey+i}, 2, v{vRank+i}")
        a(f"v_sub_u32 v{vRank+i}, v{vRank+i}, v{vKey+i}")
    a("s_waitcnt lgkmcnt(0)")
    for i in range(10):
        a(f"v_add_u32 v{vB+i}, v{vB+i}, v{vRank+i}")
        a(f"ds_write_b32 v{vB+i}, v{vW+i}")
        a(f"v_sub_u32 v{vKey+i}, v{vB+i}, v{vKey+i}")
    cos_block("A")
    for i in range(10):
        a(f"ds_write_b16{'_d16_hi' if i % 2 else ''} v{vKey+i}, v{vCos+i//2} offset:8")
    a("s_mov_b64 exec, -1")
    a(f"v_readfirstlane_b32 s{rRecW+2}, v68")
    a(f"v_add_u32 v69, {STAGE}, v{vT16}")
    for i in range(1, 4):
        a(f"v_add_u32 v{65+i}, {i*16384}, v{vT16}")
    a(f"s_add_u32 s{rRecW+2}, s{rRecW+2}, 15")
    a(f"s_and_b32 s{rRecW+2}, s{rRecW+2}, -16")
    a("s_waitcnt lgkmcnt(0)")
    a("s_barrier")
    ts.mark("scatA")
    for i in range(4):
        a(f"ds_read_b128 v[{4+4*i}:{7+4*i}], v69 offset:{16384 * i}")
    for i in range(4):
        a(f"s_waitcnt lgkmcnt({3 - i})")
        a(f"buffer_store_dwordx4 v[{4+4*i}:{7+4*i}], v{vT16 if i == 0 else 65+i}, s[{rRecW}:{rRecW+3}], 0 offen sc1")
    if not p["mearly"]:
        epilogue_operands(20)
    rbf_block(a, 32, lambda: warm(a, p))
    a("v_mov_b32 v1, v95")


def phase_b(a, p, ts):
    DEPTH = p["depth"]
    NU = 24
    NRB = 5
    NMIN = p['nmin']
    vCoff, vLoff, vSel = 2, 3, 4
    PRE = max(p['pre'], DEPTH)
    REC, RING, NRING = 8, 32, max(DEPTH + 1, PRE)
    RAW = ([REC + 4 * k for k in range(NRB)], [48, 52, 56, 60, 88])
    RANK = (74, 20)
    vLa, vC, vGA, vL, vE, vX, vD = 64, 66, 67, 68, 72, 76, 80
    vBin = (64, 68)
    vRb, vPar, vEight, vGA2 = 92, 93, 94, 95
    vEn = 44
    vSt, vLn, vJ, vJ1 = (40, 41), (42, 43), 38, 39
    sOv, sN = (sRem0, sRem1), (sN0, sN1)
    sSeg, sLen, sStart = sTot0, sMk, sT2

    def convert(r, t=80):
        a(f"""
        v_and_b32 v{r+3}, 0x7ff, v{r+1}
        v_lshrrev_b32 v{t}, 6, v{r+1}
        v_and_b32 v{r+1}, 0x7ff, v{r}
        v_lshrrev_b32 v{r}, 6, v{r}
        v_and_or_b32 v{r+3}, v{r+2}, v{vMask}, v{r+3}
        v_lshl_or_b32 v{r+1}, v{r+2}, 16, v{r+1}
        v_and_b32 v{r+2}, -32, v{t}
        v_and_b32 v{r}, -32, v{r}
        """)

    def skip(beta, k, label):
        if k == NRB - 1:
            a(f"s_cmp_eq_u32 s{sOv[beta]}, 0")
            a(f"s_cbranch_scc1 {label}")

    def load(r):
        a(f"buffer_load_dwordx3 v[{r}:{r+2}], v{r}, s[{rRecR}:{rRecR+3}], 0 idxen {p['rec_pol']}".rstrip())

    def indices(beta):
        r = RAW[beta][4]
        a(f"""
        v_cmp_lt_u32 vcc, 16, v{vLn[beta]}
        s_mov_b32 s{sOv[beta]}, 0
        s_cbranch_vccz KB_SHORT{beta}
        s_mov_b32 s{sOv[beta]}, 1
        s_bcnt1_i32_b64 s{sT0}, vcc
        v_cmp_lt_u32 s[{sAct}:{sAct+1}], 32, v{vLn[beta]}
        s_cmp_gt_u32 s{sT0}, 4
        s_cselect_b32 s{sPhase}, 1, s{sPhase}
        v_mov_b32 v{r+2}, 0
        v_mov_b32 v{r+3}, 0
        s_cmp_lg_u64 s[{sAct}:{sAct+1}], 0
        s_cselect_b32 s{sPhase}, 1, s{sPhase}
        """)
        for i in range(4):
            a(f"""
            s_ff1_i32_b64 s{sT0}, vcc
            s_bitset0_b64 vcc, s{sT0}
            v_readlane_b32 s{sT1}, v{vSt[beta]}, s{sT0}
            v_readlane_b32 s{sT0}, v{vLn[beta]}, s{sT0}
            s_add_u32 s{sT1}, s{sT1}, 16
            s_sub_u32 s{sT0}, s{sT0}, 16
            v_writelane_b32 v{r+2}, s{sT1}, {16 * i}
            v_writelane_b32 v{r+3}, s{sT0}, {16 * i}
            """)
            if i < 3:
                a(f"s_cmp_eq_u64 vcc, 0")
                a(f"s_cbranch_scc1 KB_LONG{beta}")
        a(f"""
        KB_LONG{beta}:
        s_nop 1
        v_add_u32_dpp v{r}, v{r+2}, v{vJ} row_newbcast:0 row_mask:0xf bank_mask:0xf
        v_sub_u32_dpp v{r+1}, v{r+3}, v{vJ1} row_newbcast:0 row_mask:0xf bank_mask:0xf
        v_and_or_b32 v{r}, v{r+1}, s{sT3}, v{r}
        """)
        if beta == 0:
            load(r)
        a(f"KB_SHORT{beta}:")
        for k in range(4):
            r = RAW[beta][k]
            a(f"v_add_u32_dpp v{r}, v{vSt[beta]}, v{vJ} row_newbcast:{k} row_mask:0xf bank_mask:0xf")
            a(f"v_sub_u32_dpp v{r+1}, v{vLn[beta]}, v{vJ1} row_newbcast:{k} row_mask:0xf bank_mask:0xf")
            a(f"v_and_or_b32 v{r}, v{r+1}, s{sT3}, v{r}")
            if beta == 0:
                load(r)

    def hist(beta, waits):
        off = f" offset:{CNT1}" if beta else ""
        for k in range(NRB):
            skip(beta, k, f"KB_HISTED{beta}")
            if waits and k < 4:
                a(f"s_waitcnt vmcnt({3 - k})")
            r = RAW[beta][k]
            for h in range(2):
                a(f"v_lshrrev_b32 v{vBin[beta]+2*k+h}, 16, v{r+h}")
            for h in range(2):
                a(f"v_and_b32 v{vBin[beta]+2*k+h}, -4, v{vBin[beta]+2*k+h}")
            for h in range(2):
                a(f"v_cmpx_ne_u32 vcc, 0, v{r+h}")
                a(f"ds_add_rtn_u32 v{RANK[beta]+2*k+h}, v{vBin[beta]+2*k+h}, v{vEight}{off}")
                a(f"s_mov_b64 exec, -1")
        a(f"KB_HISTED{beta}:")

    def scan(beta, B, t):
        a.comment("one wave: exclusive scan of the bin counters (bytes); null records behind the last real one")
        a(f"""
        v_mul_u32_u24 v{t}, 48, v1
        ds_read_b128 v[{B}:{B+3}], v{t} offset:{3072 * beta}
        ds_read_b128 v[{B+4}:{B+7}], v{t} offset:{3072 * beta + 16}
        ds_read_b128 v[{B+8}:{B+11}], v{t} offset:{3072 * beta + 32}
        v_mov_b32 v{t+2}, 0
        s_waitcnt lgkmcnt(0)
        """)
        for i in range(1, 12):
            a(f"v_add_u32 v{B+i}, v{B+i-1}, v{B+i}")
        a(f"v_mov_b32 v{t+1}, v{B+11}")
        scan_add(a, t + 1)
        a(f"v_readlane_b32 s{sT0}, v{t+1}, 63")
        a(f"v_sub_u32 v{t+1}, v{t+1}, v{B+11}")
        a(f"v_add_u32 v{t+1}, {SORT}, v{t+1}")
        for i in range(11, 0, -1):
            a(f"v_add_u32 v{B+i}, v{t+1}, v{B+i-1}")
        a(f"v_mov_b32 v{B}, v{t+1}")
        a(f"""
        s_or_b32 s{sT1}, s{sT0}, 0x80000000
        s_min_u32 s{sT0}, s{sT0}, {SORTCAP * 8}
        s_add_u32 s{sT0}, s{sT0}, {SORT}
        v_mov_b32 v{t+3}, s{sT1}
        v_lshl_add_u32 v{t+1}, v1, 2, s{sT0}
        ds_write_b128 v{t}, v[{B}:{B+3}] offset:{3072 * beta}
        ds_write_b128 v{t}, v[{B+4}:{B+7}] offset:{3072 * beta + 16}
        ds_write_b128 v{t}, v[{B+8}:{B+11}] offset:{3072 * beta + 32}
        ds_write_b32 v{t+1}, v{t+2}
        ds_write_b32 v{t+2}, v{t+3} offset:{MISC + 16 + 4 * beta}
        """)

    def convert_all(beta, t, tag=""):
        for k in range(NRB):
            skip(beta, k, f"KB_CONV{beta}{tag}")
            convert(RAW[beta][k], t)
        a(f"KB_CONV{beta}{tag}:")

    def scatter(beta, t):
        off = f" offset:{CNT1}" if beta else ""
        for k in range(NRB):
            skip(beta, k, f"KB_BASES{beta}")
            for h in range(2):
                b = vBin[beta] + 2 * k + h
                if beta:
                    a(f"v_lshrrev_b32 v{b}, 10, v{RAW[beta][k]+2*h}")
                    a(f"v_and_b32 v{b}, -4, v{b}")
                a(f"ds_read_b32 v{b}, v{b}{off}")
        a(f"KB_BASES{beta}:")
        a("s_waitcnt lgkmcnt(0)")
        for k in range(NRB):
            skip(beta, k, f"KB_SCATTERED{beta}")
            for h in range(2):
                d, b = RAW[beta][k] + 2 * h, vBin[beta] + 2 * k + h
                a(f"v_add_u32 v{b}, v{b}, v{RANK[beta]+2*k+h}")
                a(f"v_cmpx_ne_u32 vcc, 0, v{d}")
                a(f"ds_write_b64 v{b}, v[{d}:{d+1}]")
                a(f"s_mov_b64 exec, -1")
        a(f"KB_SCATTERED{beta}:")
        n = sN[beta]
        a(f"""
        s_add_u32 s{n}, s{n}, 255
        s_lshr_b32 s{n}, s{n}, 8
        s_sub_u32 s{n}, s{n}, s{sWave}
        s_add_u32 s{n}, s{n}, 15
        s_lshr_b32 s{n}, s{n}, 4
        """)

    seq, done = [], set()

    def wait_for(op):
        if op in done:
            return
        i = seq.index(op)
        a(f"s_waitcnt vmcnt({len(seq) - 1 - i})")
        done.update(seq[: i + 1])

    def qperm(kk):
        return f"quad_perm:[{kk},{kk},{kk+2},{kk+2}] row_mask:0xf bank_mask:0xf"

    def issue(u, track=True):
        kb, kk, h = u // 4, (u // 2) % 2, u % 2
        slot = RING + 4 * (u % NRING)
        guard = u >= p["guard"]
        if guard:
            a(f"s_cmp_gt_u32 s{sSteps}, {u}")
            a(f"s_cselect_b64 exec, -1, 1")
        ga = (vGA, vGA2)[u % 2]
        a(f"v_add_u32_dpp v{ga}, v{REC+4*kb+2*h}, v{vCoff} {qperm(kk)}")
        a(f"buffer_load_dwordx4 v[{slot}:{slot+3}], v{ga}, s[{rM}:{rM+3}], 0 offen")
        if track:
            seq.append(("G", u))
        if guard:
            a("s_mov_b64 exec, -1")

    def process(u, wait=None):
        kb, kk, h = u // 4, (u // 2) % 2, u % 2
        slot = RING + 4 * (u % NRING)
        if u % 4 == 0:
            for hh in range(2):
                a(f"v_lshlrev_b32_sdwa v{vLa+hh}, 6, v{REC+4*kb+2*hh+1} dst_sel:DWORD dst_unused:UNUSED_PAD src0_sel:DWORD src1_sel:WORD_0")
        a(f"v_and_b32_dpp v{vC}, v{REC+4*kb+2*h+1}, v{vMask} {qperm(kk)}")
        a(f"v_xor_b32_dpp v{vL}, v{vLa+h}, v{vLoff} {qperm(kk)}")
        if wait is None:
            wait_for(("G", u))
        else:
            a(f"s_waitcnt vmcnt({wait})")
        if p["no_valu"]:
            return
        for i in range(4):
            a(f"v_cndmask_b32 v{vE+i}, v{slot+i}, v{slot+(i^2)}, s[{sSwap}:{sSwap+1}]")
        for j in range(1, 4):
            a(f"v_xor_b32 v{vL+j}, {8*j}, v{vL}")
        for half in range(2):
            for j in range(4):
                a(f"v_perm_b32 v{vX+j}, v{vE+2*half+1}, v{vE+2*half}, v{vSel+j}")
            if half:
                for j in range(4):
                    a(f"v_xor_b32 v{vL+j}, 32, v{vL+j}")
            if p["pk"]:
                for j in (0, 2):
                    a(f"v_pk_mul_f32 v[{vX+j}:{vX+j+1}], v[{vX+j}:{vX+j+1}], v[{vC}:{vC+1}] op_sel_hi:[1,0]")
            else:
                for j in range(4):
                    a(f"v_mul_f32 v{vX+j}, v{vC}, v{vX+j}")
            for j in range(4):
                a(f"v_cvt_f64_f32 v[{vD+2*j}:{vD+2*j+1}], v{vX+j}")
            for j in range(4):
                if not p["no_ds"]:
                    a(f"ds_add_f64 v{vL+j}, v[{vD+2*j}:{vD+2*j+1}] offset:{ACC}")

    def load_m():
        for t in range(3):
            a(f"buffer_load_dwordx2 v[{vM+2*t}:{vM+2*t+1}], v{vEo[t]}, s[{rM}:{rM+3}], 0 offen")

    a(f"""
    v_and_b32 v32, 1, v1
    v_bfe_u32 v33, v1, 1, 3
    v_lshlrev_b32 v{vCoff}, 4, v32
    v_lshlrev_b32 v{vLoff}, 6, v32
    v_subrev_u32 v{vCoff}, 32, v{vCoff}
    v_lshl_add_u32 v{vLoff}, v33, 3, v{vLoff}
    v_mov_b32 v{vEight}, 8
    s_mov_b32 s{sT0}, 0x02020000
    s_mov_b32 s{sT1}, 0x01000c0c
    s_mov_b32 s{sSwap}, 0xff00ff00
    s_mov_b32 s{sSwap+1}, 0xff00ff00
    v_lshrrev_b32 v34, 1, v1
    v_lshlrev_b32 v34, 3, v34
    v_lshl_add_u32 v{vRb}, v32, 13, v34
    s_lshl_b32 s{sT2}, s{sWave}, 8
    s_add_u32 s{sT2}, s{sT2}, {SORT}
    v_lshlrev_b32 v{vPar}, 1, v32
    v_and_b32 v33, 3, v33
    v_add_u32 v{vRb}, s{sT2}, v{vRb}
    v_and_b32 v{vJ}, 15, v1
    v_lshrrev_b32 v35, 4, v1
    v_add_u32 v{vJ1}, 1, v{vJ}
    v_lshl_add_u32 v46, v{vJ}, 2, v35
    v_lshlrev_b32 v46, {14 if p['xmap'] else 11}, v46
    v_and_b32 v47, 31, v1
    v_lshrrev_b32 v34, 5, v1
    v_lshlrev_b32 v47, 6, v47
    v_lshl_add_u32 v47, v34, 5, v47
    s_lshr_b32 s{sT2}, s{sWave}, {3 if p['xmap'] else 0}
    s_lshl_b32 s{sT2}, s{sT2}, {18 if p['xmap'] else 15}
    s_and_b32 s{sT3}, s{sWave}, {7 if p['xmap'] else 0}
    s_lshl_b32 s{sT3}, s{sT3}, 11
    s_add_u32 s{sT2}, s{sT2}, s{sT3}
    v_add_u32 v31, s{sT2}, v46
    v_lshrrev_b32 v31, 11, v31
    v_mul_u32_u24 v31, {CHG}, v31
    s_lshl_b32 s{sT3}, s{sBkt}, 3
    s_add_u32 s{sT2}, s{sT2}, s{sT3}
    v_mov_b32 v{vEn}, 0
    v_mov_b32 v{vEn+1}, 0
    v_mov_b32 v36, 0
    """)
    for j in range(4):
        a(f"v_xor_b32 v34, {j}, v33")
        a(f"v_mul_lo_u32 v34, v34, s{sT0}")
        a(f"v_add_u32 v{vSel+j}, s{sT1}, v34")
    a(f"""
    s_mov_b32 s{sT3}, 0x40000
    s_cmp_lg_u32 s{sWave}, 0
    s_cbranch_scc1 KB_ROWS_CLEAR
    """)
    a(f"""
    KB_POLL_CLEAR:
    global_load_dword v37, v36, s[{sDbg}:{sDbg+1}] sc1
    s_waitcnt vmcnt(0)
    v_readfirstlane_b32 s{sT0}, v37
    s_cmp_ge_u32 s{sT0}, {NCH}
    s_cbranch_scc1 KB_ROWS_CLEAR
    s_sub_u32 s{sT3}, s{sT3}, 1
    s_cbranch_scc1 K_END
    s_sleep 16
    s_branch KB_POLL_CLEAR
    KB_ROWS_CLEAR:
    """)
    a(f"""
    s_waitcnt vmcnt(0)
    s_barrier
    """)
    ts.mark("pub")
    a(f"""
    s_cmp_lg_u32 s{sWave}, 0
    s_cbranch_scc1 KB_PUBLISHED
    buffer_store_dwordx4 v[{vEnt}:{vEnt+3}], v47, s[{rOff}:{rOff+3}], s{sTot1} offen {p['pub_pol']}
    buffer_store_dwordx4 v[{vEnt+4}:{vEnt+7}], v47, s[{rOff}:{rOff+3}], s{sTot1} offen offset:16 {p['pub_pol']}
    KB_PUBLISHED:
    """)
    a(f"""
    s_mov_b32 exec_lo, 0x000f000f
    s_mov_b32 exec_hi, 0x000f000f
    s_mov_b32 s{sSteps}, 0
    KB_POLL:
    buffer_load_dwordx2 v[{vEn}:{vEn+1}], v46, s[{rOff}:{rOff+3}], s{sT2} offen {p['poll_pol']}
    s_waitcnt vmcnt(0)
    v_cmpx_le_i32 vcc, 0, v{vEn}
    s_sub_u32 s{sT3}, s{sT3}, 1
    s_cbranch_execz KB_READY
    s_cbranch_scc1 K_END
    """)
    a(f"""
    s_sleep {p['sleep']}
    s_branch KB_POLL
    KB_READY:
    s_mov_b64 exec, -1
    s_nop 1
    """)
    ts.mark("ready")
    a(f"""
    v_and_b32 v{vSt[0]}, 0xffff, v{vEn}
    v_bfe_u32 v{vLn[0]}, v{vEn}, 16, 15
    v_and_b32 v{vSt[1]}, 0xffff, v{vEn+1}
    v_lshrrev_b32 v{vLn[1]}, 16, v{vEn+1}
    s_mov_b32 s{sT3}, 0x80000000
    s_mov_b32 s{sPhase}, {1 if p['force_fb'] else 0}
    v_add_u32 v{vSt[0]}, v{vSt[0]}, v31
    v_add_u32 v{vSt[1]}, v{vSt[1]}, v31
    """)
    indices(0)
    ts.mark("idx")
    indices(1)
    a(f"""
    v_add_u32_dpp v36, v{vLn[1]}, v{vLn[1]} quad_perm:[1,0,3,2] row_mask:0xf bank_mask:0xf
    s_lshl_b32 s{sT0}, s{sPhase}, 20
    v_mov_b32 v35, 0
    v_add_u32_dpp v36, v36, v36 quad_perm:[2,3,0,1] row_mask:0xf bank_mask:0xf
    v_add_u32 v36, s{sT0}, v36
    s_mov_b32 exec_lo, 0x00010001
    s_mov_b32 exec_hi, 0x00010001
    ds_add_u32 v35, v36 offset:{MISC}
    s_mov_b64 exec, -1
    """)
    hist(0, True)
    ts.mark("h0")
    def late_loads(pos):
        if p["r1pos"] == pos:
            for k in range(NRB):
                skip(1, k, "KB_RAW1")
                load(RAW[1][k])
            a("KB_RAW1:")
        if p["mpos"] == pos:
            load_m()
        if p["mpos"] == 7 and pos == 2:
            a(f"s_cmp_ge_u32 s{sWave}, {p['msplit']}")
            a("s_cbranch_scc1 KB_M_LATER")
            load_m()
            a("KB_M_LATER:")
        if p["l2pf"] and p["l2pos"] == pos:
            n = p["l2pf"]
            a(f"""
            s_lshr_b32 s{sT0}, s2, 3
            s_lshl_b32 s{sT0}, s{sT0}, 4
            s_add_u32 s{sT0}, s{sT0}, s{sWave}
            s_mul_i32 s{sT0}, s{sT0}, {n}
            v_add_u32 v85, s{sT0}, v1
            v_lshlrev_b32 v85, 7, v85
            s_bfm_b64 exec, {n}, 0
            buffer_load_dword v30, v85, s[{rM}:{rM+3}], 0 offen
            s_mov_b64 exec, -1
            """)
            if p["l2wait"]:
                a("s_waitcnt vmcnt(0)")
        if p["pf"] and p["pfpos"] == pos:
            a.comment("the youngest waves touch this workgroup's share of m, one dword per cache line, ahead of the gathers")
            n = p["pf"]
            per = -(-p['pfrows'] * 32 // 128 // NCH)
            lanes = -(-per // n)
            a(f"""
            s_cmp_lt_u32 s{sWave}, {16 - n}
            s_cbranch_scc1 KB_NO_TOUCH
            s_sub_u32 s{sT0}, s{sWave}, {16 - n}
            s_mul_i32 s{sT0}, s{sT0}, {lanes}
            s_mul_i32 s{sT1}, s2, {per}
            s_add_u32 s{sT0}, s{sT0}, s{sT1}
            v_add_u32 v85, s{sT0}, v1
            v_lshlrev_b32 v85, 7, v85
            s_bfm_b64 exec, {lanes}, 0
            buffer_load_dword v30, v85, s[{rM}:{rM+3}], 0 offen
            s_mov_b64 exec, -1
            KB_NO_TOUCH:
            """)

    late_loads(0)
    a(f"s_cmp_lg_u32 s{sWave}, 0")
    a("s_cbranch_scc1 KB_CONV0W")
    convert_all(0, 84, "W")
    a("s_waitcnt lgkmcnt(0)")
    a("s_barrier")
    ts.mark("B2")
    a(f"""
    s_cmp_lg_u32 s{sWave}, 0
    s_cbranch_scc1 KB_NOSCAN0
    """)
    scan(0, 28, 84)
    a("KB_NOSCAN0:")
    late_loads(1)
    a(f"""
    s_cmp_eq_u32 s{sWave}, 0
    s_cbranch_scc1 KB_CONV0
    """)
    convert_all(0, 84)
    a(f"""
    v_mov_b32 v84, 0
    s_mov_b32 s{sT2}, 0x200000
    KB_WAIT_SCAN0:
    ds_read_b32 v87, v84 offset:{MISC + 16}
    ds_read_b32 v86, v84 offset:{MISC}
    s_sub_u32 s{sT2}, s{sT2}, 1
    s_cbranch_scc1 K_END
    s_waitcnt lgkmcnt(0)
    v_readfirstlane_b32 s{sT1}, v87
    v_readfirstlane_b32 s{sT0}, v86
    s_bitcmp1_b32 s{sT1}, 31
    s_cbranch_scc0 KB_WAIT_SCAN0
    s_bitset0_b32 s{sT1}, 31
    s_mov_b32 s{sN0}, s{sT1}
    s_cmp_gt_u32 s{sT0}, {SORTCAP // 2}
    s_cbranch_scc1 KB_UNSORTED
    s_sub_u32 s{sT1}, s{sT1}, {NMIN * 512 * 8}
    s_cmp_gt_u32 s{sT1}, {(SORTCAP - NMIN * 512) * 8}
    s_cbranch_scc1 KB_UNSORTED
    """)
    scatter(0, 84)
    late_loads(2)
    a(f"s_mov_b32 s{sPhase}, 2")
    a(f"s_mov_b32 s{sSteps}, {NU}")
    a("s_waitcnt lgkmcnt(0)")
    a("s_barrier")
    ts.mark("B4")
    a("s_setprio 3")
    for k in range(3):
        for h in range(2):
            a(f"ds_read_b64 v[{REC+4*k+2*h}:{REC+4*k+2*h+1}], v{vRb} offset:{16384 * k + 4096 * h}")
    a("s_waitcnt lgkmcnt(4)")
    if p["mpos"] == 6:
        load_m()
    if p["mpos"] == 7:
        a(f"s_cmp_lt_u32 s{sWave}, {p['msplit']}")
        a("s_cbranch_scc1 KB_M_DONE")
        load_m()
        a("KB_M_DONE:")
    issue(0, track=False)
    if p["mpos"] == 4:
        load_m()
    younger = 1 + (3 if p["mpos"] in (1, 2, 4, 6, 7) and p["mpos"] >= p["r1pos"] else 0)
    a(f"s_waitcnt vmcnt({younger})")
    hist(1, False)
    a(f"""
    s_waitcnt lgkmcnt(0)
    s_barrier
    s_cmp_lg_u32 s{sWave}, 0
    s_cbranch_scc1 KB_SCANNED1
    """)
    scan(1, 68, 80)
    a("KB_SCANNED1:")
    issue(1, track=False)
    if p["mpos"] == 5:
        load_m()
    convert_all(1, 84)
    if p["early0"]:
        issue(2, track=False)
        process(0, wait=2)
    a(f"""
    v_mov_b32 v80, 0
    s_mov_b32 s{sT2}, 0x200000
    KB_WAIT_SCAN1:
    ds_read_b32 v81, v80 offset:{MISC + 20}
    s_sub_u32 s{sT2}, s{sT2}, 1
    s_cbranch_scc1 K_END
    s_waitcnt lgkmcnt(0)
    v_readfirstlane_b32 s{sN1}, v81
    s_bitcmp1_b32 s{sN1}, 31
    s_cbranch_scc0 KB_WAIT_SCAN1
    s_bitset0_b32 s{sN1}, 31
    """)
    scatter(1, 80)
    a(f"""
    v_mov_b32 v81, 1
    s_mov_b64 exec, 1
    ds_add_u32 v80, v81 offset:{MISC + 32}
    s_mov_b64 exec, -1
    """)
    if p["early0"]:
        issue(3, track=False)
        ts.mark("loop")
        a("s_setprio 2")
        a("s_branch KB_LOOP1")
    else:
        for u in range(2, PRE):
            issue(u, track=False)
        a("s_branch KB_LOOP")
    a(f"""
    KB_UNSORTED:
    """)
    if p["mpos"] >= 2:
        load_m()
    a(f"""
    s_waitcnt vmcnt(0)
    v_mov_b32 v60, v{vSt[0]}
    v_mov_b32 v61, v{vSt[1]}
    v_mov_b32 v62, v{vLn[0]}
    v_mov_b32 v63, v{vLn[1]}
    s_mov_b32 s{sPhase}, 0
    s_mov_b32 s{sSeg}, -1
    s_mov_b32 s{sLen}, 0
    s_mov_b32 s{sBase}, 0
    KB_NEXT_PASS:
    s_cmp_lt_u32 s{sBase}, s{sLen}
    s_cbranch_scc1 KB_PASS
    s_add_u32 s{sSeg}, s{sSeg}, 1
    s_cmp_ge_u32 s{sSeg}, 32
    s_cbranch_scc1 KB_DONE
    s_bfe_u32 s{sT0}, s{sSeg}, 0x20002
    s_lshl_b32 s{sT0}, s{sT0}, 4
    s_and_b32 s{sT1}, s{sSeg}, 3
    s_or_b32 s{sT0}, s{sT0}, s{sT1}
    s_mov_b32 s{sBase}, 0
    v_readlane_b32 s{sStart}, v60, s{sT0}
    v_readlane_b32 s{sLen}, v62, s{sT0}
    s_cmp_lt_u32 s{sSeg}, 16
    s_cbranch_scc1 KB_NEXT_PASS
    v_readlane_b32 s{sStart}, v61, s{sT0}
    v_readlane_b32 s{sLen}, v63, s{sT0}
    s_nop 0
    s_branch KB_NEXT_PASS
    KB_PASS:
    s_sub_u32 s{sSteps}, s{sLen}, s{sBase}
    s_add_u32 s{sT0}, s{sStart}, s{sBase}
    s_add_u32 s{sBase}, s{sBase}, 256
    """)
    for k in range(4):
        r = REC + 4 * k
        a(f"""
        v_add_u32 v{r}, {64 * k}, v1
        v_cmp_gt_u32 vcc, s{sSteps}, v{r}
        v_add_u32 v{r}, s{sT0}, v{r}
        v_cndmask_b32 v{r}, -1, v{r}, vcc
        """)
        load(r)
    a(f"""
    s_add_u32 s{sSteps}, s{sSteps}, 63
    s_lshr_b32 s{sSteps}, s{sSteps}, 6
    s_min_u32 s{sSteps}, s{sSteps}, 4
    s_lshl_b32 s{sSteps}, s{sSteps}, 2
    s_waitcnt vmcnt(0)
    """)
    for k in range(4):
        convert(REC + 4 * k)
    a("s_nop 1")
    for u in range(PRE):
        issue(u)
    a("KB_LOOP:")
    ts.mark("loop")
    for t in range(3 if p["mpos"] == 3 else 0):
        a(f"buffer_load_dwordx2 v[{vM+2*t}:{vM+2*t+1}], v{vEo[t]}, s[{rM}:{rM+3}], 0 offen")
        seq.append(("M", t))

    def stage(i):
        a(f"s_cmp_lg_u32 s{sPhase}, 2")
        a(f"s_cbranch_scc1 KB_STAGED{i}")
        if i == 0:
            a(f"""
            s_lshl_b32 s{sT0}, s{sN0}, 12
            s_add_u32 s{sSteps}, s{sN0}, s{sN1}
            v_subrev_u32 v80, s{sT0}, v{vRb}
            v_subrev_u32 v82, s{sN0}, v{vPar}
            v_add_u32 v81, 0x10000, v80
            v_mov_b32 v83, 0
            s_mov_b32 s{sT1}, 0x200000
            KB_WAIT_SORTED:
            ds_read_b32 v84, v83 offset:{MISC + 32}
            s_sub_u32 s{sT1}, s{sT1}, 1
            s_cbranch_scc1 K_END
            s_waitcnt lgkmcnt(0)
            v_readfirstlane_b32 s{sT0}, v84
            s_cmp_lt_u32 s{sT0}, 16
            s_cbranch_scc1 KB_WAIT_SORTED
            """)
            for k in range(NMIN // 4, 6):
                for h in range(2):
                    u0 = 4 * k + h
                    base, off = (80, 16384 * k + 4096 * h) if k < 4 else (81, 16384 * (k - 4) + 4096 * h)
                    a(f"v_cmpx_le_i32 vcc, {-u0}, v82")
                    a(f"ds_read_b64 v[{REC+4*k+2*h}:{REC+4*k+2*h+1}], v{base} offset:{off}")
                    a(f"s_mov_b64 exec, -1")
            a("s_nop 2")
        else:
            a("s_waitcnt lgkmcnt(0)")
        a(f"KB_STAGED{i}:")

    def sprefetch(region):
        if region * 262144 >= E * 32:
            return
        st = 512 // p["spfn"]
        a(f"""
        s_add_u32 s{sIn}, s{sOutI}, {region * 262144}
        s_min_u32 s{sIn}, s{sIn}, {E * 32 - 512}
        s_add_u32 s{sIn}, s{sIn}, s{sM}
        s_addc_u32 s{sIn+1}, s{sM+1}, 0
        """)
        for i in range(p["spfn"]):
            a(f"s_load_dword s{rIn + i}, s[{sIn}:{sIn+1}], {st * i}")

    prio = {int(x.split(":")[0]): int(x.split(":")[1]) for x in p["prio"].split(",") if x}
    stages = [int(x) for x in p["stages"].split(",")]
    assert stages[1] + 1 + DEPTH <= NMIN
    for u in range(NU):
        if u == 1:
            a("KB_LOOP1:")
        if u in prio:
            a(f"s_setprio {prio[u]}")
        if PRE <= u + DEPTH < NU:
            issue(u + DEPTH)
        if p["spf"]:
            if u == 0:
                a(f"s_lshr_b32 s{sOutI}, s2, 3")
                a(f"s_lshl_b32 s{sOutI}, s{sOutI}, 4")
                a(f"s_add_u32 s{sOutI}, s{sOutI}, s{sWave}")
                a(f"s_lshl_b32 s{sOutI}, s{sOutI}, 9")
            sprefetch(u + DEPTH + p["spf"])
        process(u)
        ts.mark(f"s{u}")
        for i, at in enumerate(stages):
            if at == u:
                stage(i)
        if u < NU - 1:
            a(f"s_cmp_le_u32 s{sSteps}, {u+1}")
            a(f"s_cbranch_scc1 KB_LOOPED")
    a("KB_LOOPED:")
    a(f"""
    s_waitcnt vmcnt(0)
    s_cmp_lg_u32 s{sPhase}, 2
    s_cbranch_scc1 KB_NEXT_PASS
    """)
    a("KB_DONE:")
    vA, vMf, vRf, vF, vB = 8, 32, 44, 68, 80
    a(f"""
    v_and_b32 v64, 15, v1
    v_lshrrev_b32 v65, 4, v1
    v_bfe_u32 v66, v1, 2, 1
    v_bfe_u32 v67, v1, 1, 1
    v_lshlrev_b32 v64, 7, v64
    s_lshl_b32 s{sT0}, s{sWave}, 11
    v_lshl_add_u32 v64, v65, 5, v64
    v_lshlrev_b32 v66, 6, v66
    v_lshl_add_u32 v64, v67, 4, v64
    v_xor_b32 v64, v64, v66
    v_add_u32 v64, s{sT0}, v64
    s_mov_b32 s{sSwap}, 0xcccccccc
    s_mov_b32 s{sSwap+1}, 0xcccccccc
    v_add_u32 v65, 0x10000, v64
    v_xor_b32 v66, 16, v64
    v_xor_b32 v67, 16, v65
    """)
    for t in range(3):
        for src, dst_ in ((vM, vMf), (vR, vRf)):
            a(f"v_lshlrev_b32 v{dst_+4*t}, 16, v{src+2*t}")
            a(f"v_and_b32 v{dst_+4*t+1}, v{vMask}, v{src+2*t}")
            a(f"v_lshlrev_b32 v{dst_+4*t+2}, 16, v{src+2*t+1}")
            a(f"v_and_b32 v{dst_+4*t+3}, v{vMask}, v{src+2*t+1}")
    a("s_waitcnt lgkmcnt(0)")
    a("s_barrier")
    ts.mark("fin")
    op = (" " + p["out_pol"]) if p["out_pol"] else ""

    def tiles(ts_):
        for t in ts_:
            base, off = (64, 32768 * t + ACC) if t < 2 else (65, ACC)
            a(f"ds_read_b128 v[{vA+8*t}:{vA+8*t+3}], v{base} offset:{off}")
            a(f"ds_read_b128 v[{vA+8*t+4}:{vA+8*t+7}], v{base+2} offset:{off}")
        for n, t in enumerate(ts_):
            f, b = vF + 4 * t, vB + 2 * t
            a(f"s_waitcnt lgkmcnt({2 * (len(ts_) - 1 - n)})")
            for i in range(4):
                a(f"v_cvt_f32_f64 v{f+i}, v[{vA+8*t+2*i}:{vA+8*t+2*i+1}]")
            a(f"v_cvt_pk_bf16_f32 v{f}, v{f}, v{f+1}")
            a(f"v_cvt_pk_bf16_f32 v{f+2}, v{f+2}, v{f+3}")
            a(f"v_cndmask_b32 v{b}, v{f}, v{f+2}, s[{sSwap}:{sSwap+1}]")
            a(f"v_cndmask_b32 v{b+1}, v{f+2}, v{f}, s[{sSwap}:{sSwap+1}]")
            a(f"v_mfma_f32_16x16x16_bf16 v[{vA+8*t}:{vA+8*t+3}], v[{vWd}:{vWd+1}], v[{b}:{b+1}], 0")
        for t in ts_:
            f, b = vF + 4 * t, vB + 2 * t
            for i in range(4):
                a(f"v_mul_f32 v{f+i}, v{vA+8*t+i}, v{vS+4*t+i}")
            a(f"v_cvt_pk_bf16_f32 v{b}, v{f}, v{f+1}")
            a(f"v_cvt_pk_bf16_f32 v{b+1}, v{f+2}, v{f+3}")
            a(f"v_mfma_f32_16x16x16_bf16 v[{vA+8*t+4}:{vA+8*t+7}], v[{vWu}:{vWu+1}], v[{b}:{b+1}], 0")
        for t in ts_:
            b = vB + 2 * t
            for i in range(4):
                a(f"v_fmac_f32 v{vMf+4*t+i}, v{vA+8*t+4+i}, v{vRf+4*t+i}")
            a(f"v_cvt_pk_bf16_f32 v{b}, v{vMf+4*t}, v{vMf+4*t+1}")
            a(f"v_cvt_pk_bf16_f32 v{b+1}, v{vMf+4*t+2}, v{vMf+4*t+3}")
            a(f"buffer_store_dwordx2 v[{b}:{b+1}], v{vEo[t]}, s[{rOut}:{rOut+3}], 0 offen{op}")

    a(f"s_cmp_ge_u32 s{sWave}, 8")
    a("s_cbranch_scc1 KB_TWO_TILES")
    tiles([0, 1, 2])
    a("s_branch KB_STORED")
    a("KB_TWO_TILES:")
    tiles([0, 1])
    a("KB_STORED:")


def build(p):
    ref = open("standalone__molecular_angular_gemnet__graph.s.ref").read().split("\n")
    out = [l for l in ref if l.startswith(";") and "@launch" not in l and "Override launch" not in l and "grid=ceil" not in l]
    if p["diag"]:
        out.append(f"; @launch kernel={NAME} grid=(256,1,1) block=(1024,1,1) lds={LDS}")
        out.append("; @launch kernel=diag_kernel grid=(1,1,1) block=(256,1,1) lds=1024")
    else:
        out.append(f"; @launch grid=(256,1,1) block=(1024,1,1) lds={LDS}")
    out.append('.amdgcn_target "amdgcn-amd-amdhsa--gfx950"')
    out.append(".text")
    a = Asm()
    ts = Stamps(a, p)
    a.raw(f".globl {NAME}\n.p2align 8\n.type {NAME},@function\n{NAME}:")
    phase_a(a, p, ts)
    phase_b(a, p, ts)
    if p["ts"]:
        a("s_waitcnt vmcnt(0)")
        ts.mark("end")
        ts.flush()
    a("K_END:")
    a("s_endpgm")
    extra = ""
    if p["diag"]:
        from diag import diag_kernel
        f = p["diag"].split(",")
        a.raw(diag_kernel((int(f[0]), int(f[1]), f[2], int(f[3]), int(f[4]), f[5]), p["mult"]))
        extra += ".p2align 6\n" + kd("diag_kernel", 32, 32)
    return "\n".join(out) + "\n" + a.text() + '.section .rodata,"a"\n.p2align 6\n' + kd(NAME, 128, 102 if p['ts'] else 96) + extra


if __name__ == "__main__":
    ap = argparse.ArgumentParser()
    ap.add_argument("-o", default="standalone__molecular_angular_gemnet__graph.s")
    ap.add_argument("kv", nargs="*")
    args = ap.parse_args()
    p = dict(P)
    for kv in args.kv:
        k, v = kv.split("=")
        p[k] = v.replace("+", " ") if not isinstance(P[k], int) else int(v, 0)
    open(args.o, "w").write(build(p))
```
